```python
import torch

def _softmax(x, axis=-1):
    return torch.softmax(x, dim=axis)

def _gelu(x):
    return torch.nn.functional.gelu(x, approximate='tanh')

def _silu(x):
    return torch.nn.functional.silu(x)

def _sigmoid(x):
    return torch.sigmoid(x)

def _layernorm(x, axis=-1, eps=1e-05):
    m = x.mean(dim=axis, keepdim=True)
    v = x.var(dim=axis, keepdim=True, unbiased=False)
    return (x - m) / torch.sqrt(v + eps)

def _scatter_add(tgt, idx, src, axis=0):
    return tgt.clone().index_add_(axis, idx, src)

def _segment_sum(src, seg, n):
    out = torch.zeros((n,) + src.shape[1:], dtype=src.dtype)
    return out.index_add_(0, seg, src)

def _pad(x, pw):
    flat = tuple((v for pair in reversed(pw) for v in pair))
    return torch.nn.functional.pad(x, flat)
kernel_name = 'adaLN_cond__memory_aug_recurrent_mem_tr__mixer_gmlp__prompt'

def setup_inputs():

    _w = lambda a: (lambda t: t.to(torch.bfloat16) if t.is_floating_point() else t)(torch.as_tensor(a))

    def _A_setup():
        B, S, Dm = (1, 2048, 512)
        H, Dh = (32, 128)
        M, seg = (8, 32)
        seg = min(seg, S)
        S = S // seg * seg
        return {'x': _w((lambda *s: torch.randn(*s, dtype=torch.bfloat16) * 0.05)(B, S, Dm)), 'mem0': _w((lambda *s: torch.randn(*s, dtype=torch.bfloat16) * 0.4)(B, M, Dm)), 'Wq': _w((lambda *s: torch.randn(*s, dtype=torch.bfloat16) * 3.2)(Dm, H, Dh) * Dm ** (-0.5)), 'Wk': _w((lambda *s: torch.randn(*s, dtype=torch.bfloat16) * 3.2)(Dm, H, Dh) * Dm ** (-0.5)), 'Wv': _w((lambda *s: torch.randn(*s, dtype=torch.bfloat16) * 0.4)(Dm, H, Dh) * Dm ** (-0.5)), 'Wo': _w((lambda *s: torch.randn(*s, dtype=torch.bfloat16) * 0.4)(H, Dh, Dm) * (H * Dh) ** (-0.5)), 'seg_len': seg}
    _A_in = _A_setup()

    def _B_setup():
        B, S, D, F = (1, 2048, 512, 1376)
        Fh = F // 2
        return {'x': _w((lambda *s: torch.randn(*s, dtype=torch.bfloat16) * 0.05)(B, S, D)), 'w_in': _w((lambda *s: torch.randn(*s, dtype=torch.bfloat16) * 0.8)(D, 2 * Fh)), 'w_sp': _w(0.01 * (lambda *s: torch.randn(*s, dtype=torch.bfloat16) * 0.8)(S, S)), 'b_sp': _w(1.0 + 0.01 * (lambda *s: torch.randn(*s, dtype=torch.bfloat16) * 0.05)(S)), 'w_out': _w((lambda *s: torch.randn(*s, dtype=torch.bfloat16) * 0.05)(Fh, D))}
    _B_in = _B_setup()
    return {'A_x': _A_in['x'], 'A_mem0': _A_in['mem0'], 'A_Wq': _A_in['Wq'], 'A_Wk': _A_in['Wk'], 'A_Wv': _A_in['Wv'], 'A_Wo': _A_in['Wo'], 'A_seg_len': _A_in['seg_len'], 'B_x': _B_in['x'], 'B_w_in': _B_in['w_in'], 'B_w_sp': _B_in['w_sp'], 'B_b_sp': _B_in['b_sp'], 'B_w_out': _B_in['w_out'], 'c': _w((lambda *s: torch.randn(*s, dtype=torch.bfloat16) * 0.1)(1, 512) * 8.0), 'w_mod': _w((lambda *s: torch.randn(*s, dtype=torch.bfloat16) * 0.1)(512, 6 * 512) * 512 ** (-0.5) * 8.0)}

def reference(A_x, A_mem0, A_Wq, A_Wk, A_Wv, A_Wo, A_seg_len, B_x, B_w_in, B_w_sp, B_b_sp, B_w_out, c, w_mod):

    def _A_ref(x, mem0, Wq, Wk, Wv, Wo, seg_len):
        B, S, Dm = x.shape
        H, Dh = (Wq.shape[1], Wq.shape[2])
        M = mem0.shape[1]
        scale = Dh ** (-0.5)
        n_seg = S // seg_len
        L = M + seg_len
        idx = torch.arange(L)
        mask = (idx[:, None] < M) | (idx[:, None] >= idx[None, :])
        mem = mem0
        outs = []
        for s in range(n_seg):
            xs = x[:, s * seg_len:(s + 1) * seg_len, :].clone()
            h = torch.concatenate([mem, xs], axis=1)
            q = torch.einsum('btd,dhe->bhte', h, Wq)
            k = torch.einsum('btd,dhe->bhte', h, Wk)
            v = torch.einsum('btd,dhe->bhte', h, Wv)
            scores = torch.einsum('bhqe,bhke->bhqk', q, k) * scale
            scores = torch.where(mask[None, None], scores, -1000000000.0)
            p = _softmax(scores, axis=-1)
            o = torch.einsum('bhqk,bhke->bhqe', p, v)
            o = torch.einsum('bhte,hed->btd', o, Wo)
            mem = o[:, :M, :].clone()
            outs.append(o[:, M:, :])
        return torch.concatenate(outs, axis=1)

    def _B_ref(x, w_in, w_sp, b_sp, w_out):
        B, S, D = x.shape
        F = w_in.shape[-1]
        Fh = F // 2
        z = _gelu(torch.einsum('bsd,df->bsf', x, w_in))
        z1 = z[..., :Fh].clone()
        z2 = _layernorm(z[..., Fh:], axis=-1)
        g = torch.einsum('ts,bsf->btf', w_sp, z2) + b_sp[None, :, None]
        return torch.einsum('bsf,fd->bsd', z1 * g, w_out)
    x = A_x
    mod = (_silu(c) @ w_mod).reshape(c.shape[0], 6, 1, -1)
    sa, ca, ga, sb, cb, gb = (mod[:, 0].clone(), mod[:, 1].clone(), mod[:, 2].clone(), mod[:, 3].clone(), mod[:, 4].clone(), mod[:, 5].clone())
    h = _layernorm(x, axis=-1) * (1 + ca) + sa
    x = x + ga * _A_ref(h, A_mem0, A_Wq, A_Wk, A_Wv, A_Wo, A_seg_len)
    h = _layernorm(x, axis=-1) * (1 + cb) + sb
    x = x + gb * _B_ref(h, B_w_in, B_w_sp, B_b_sp, B_w_out)
    return x
```

```python
import re

def rng(prefix, base, n):
    return f"{prefix}{base}" if n == 1 else f"{prefix}[{base}:{base+n-1}]"
def v(b, n=1): return rng("v", b, n)
def a(b, n=1): return rng("a", b, n)
def s(b, n=1): return rng("s", b, n)

_REG = re.compile(r"^(-|abs\()?([vas])(\d+|\[(\d+):(\d+)\])\)?$")
def regs_of(tok):
    tok = tok.strip()
    if tok in ("vcc",): return {("s", 106), ("s", 107)}
    if tok == "vcc_lo": return {("s", 106)}
    if tok == "exec": return {("s", 126), ("s", 127)}
    if tok == "m0": return {("s", 124)}
    m = _REG.match(tok)
    if not m: return set()
    k = m.group(2)
    if m.group(4) is not None:
        return {(k, i) for i in range(int(m.group(4)), int(m.group(5)) + 1)}
    return {(k, int(m.group(3)))}

TRANS = ("v_exp_f32", "v_log_f32", "v_rcp_f32", "v_rsq_f32", "v_sqrt_f32", "v_sin_f32", "v_cos_f32", "v_rcp_iflag_f32")

class Ins:
    def __init__(self, text):
        self.text = text
        t = text.split(";")[0].strip()
        parts = t.split(None, 1)
        self.op = parts[0]
        rest = parts[1] if len(parts) > 1 else ""
        ops = [x.strip() for x in re.split(r",(?![^\[]*\])", rest)] if rest else []
        if ops:
            last = ops[-1].split()
            self.mods = " ".join(last[1:])
            ops[-1] = last[0] if last else ""
        else: self.mods = ""
        self.ops = ops
        op = self.op
        self.is_mfma = op.startswith("v_mfma") or op.startswith("v_smfmac")
        self.is_valu = op.startswith("v_") and not self.is_mfma
        self.is_ds = op.startswith("ds_")
        self.is_vmem = op.startswith("global_") or op.startswith("buffer_")
        self.is_salu = op.startswith("s_")
        self.dpp = "_dpp" in op or "row_" in self.mods or "quad_perm" in self.mods
        R = [regs_of(x) for x in ops]
        self.defs, self.uses = set(), set()
        self.srcc = set(); self.ab = set(); self.stdata = set()
        if self.is_mfma:
            self.defs = R[0]
            self.ab = R[1] | R[2]
            if op.startswith("v_smfmac"):
                self.srcc = R[0]; self.ab |= R[3]
            else:
                self.srcc = R[3]
            self.uses = self.ab | self.srcc
            self.passes = 8 if "32x32" in op else 4
        elif self.is_valu:
            if op.startswith("v_permlane") and "swap" in op:
                self.defs = R[0] | R[1]; self.uses = R[0] | R[1]
            elif op.startswith("v_cmp"):
                self.defs = R[0]; self.uses = set().union(*R[1:])
                if op.startswith("v_cmpx"): self.defs |= regs_of("exec")
            elif op.startswith(("v_add_co", "v_sub_co", "v_addc_co", "v_subb_co")):
                self.defs = R[0] | R[1]; self.uses = set().union(*R[2:])
            else:
                self.defs = R[0]; self.uses = set().union(*R[1:]) if len(R) > 1 else set()
                if op.startswith(("v_fmac", "v_dot2c", "v_pk_fmac")) or self.dpp or op.startswith("v_writelane"): self.uses |= R[0]
        elif self.is_ds:
            if op.startswith(("ds_read", "ds_bpermute", "ds_permute", "ds_swizzle")):
                self.defs = R[0]; self.uses = set().union(*R[1:])
            else:
                self.uses = set().union(*R)
        elif self.is_vmem:
            if "lds" in op or " lds" in (" " + self.mods) :
                self.uses = set().union(*R) | regs_of("m0")
            elif "_load" in op:
                self.defs = R[0]; self.uses = set().union(*R[1:])
            elif "atomic" in op and "sc0" in self.mods:
                self.defs = R[0]; self.uses = set().union(*R[1:])
            else:
                self.uses = set().union(*R) if R else set()
                if "store" in op and ("x4" in op or "x3" in op):
                    self.stdata = R[1] if op.startswith("global_") else R[0]
        elif self.is_salu:
            if op.startswith(("s_cmp", "s_cbranch", "s_branch", "s_waitcnt", "s_nop", "s_barrier", "s_endpgm", "s_sleep", "s_setprio", "s_bitcmp")):
                self.uses = set().union(*R) if R else set()
            else:
                self.defs = R[0] if R else set(); self.uses = set().union(*R[1:]) if len(R) > 1 else set()
                if "saveexec" in op: self.defs |= regs_of("exec")
        self.states = 1
        if op == "s_nop": self.states = int(ops[0], 0) + 1

def need(p, c):
    n = 0
    vg = lambda S: {r for r in S if r[0] in "va"}
    sg = lambda S: {r for r in S if r[0] == "s"}
    if p.is_valu and c.is_mfma and vg(p.defs) & c.uses: n = max(n, 2)
    if p.is_valu and c.is_mfma and regs_of("exec") & p.defs: n = max(n, 4)
    if p.is_mfma:
        big = 12 if p.passes == 8 else 8
        if c.is_mfma:
            if p.defs & c.ab: n = max(n, big)
            if p.defs & c.srcc and not (c.srcc == p.defs and c.passes == p.passes): n = max(n, big - 2)
            if p.defs & c.defs and not (p.defs & c.srcc) : n = max(n, big - 2)
        elif (c.is_valu or c.is_ds or c.is_vmem) and p.defs & (c.uses | c.defs): n = max(n, big)
        if c.is_valu and p.srcc & c.defs: n = max(n, 7 if p.passes == 8 else 3)
    if p.is_valu:
        if p.op.startswith(TRANS) and c.is_valu and not c.op.startswith(TRANS) and p.defs & c.uses: n = max(n, 1)
        if p.op.startswith(TRANS) and (c.is_mfma) and p.defs & c.uses: n = max(n, 2)
        if c.op.startswith("v_permlane") and vg(p.defs) & c.uses: n = max(n, 2)
        if c.is_valu and c.dpp and vg(p.defs) & c.uses: n = max(n, 2)
        if c.is_valu and c.dpp and regs_of("exec") & p.defs: n = max(n, 5)
        if sg(p.defs):
            if c.is_valu and sg(p.defs) & c.uses: n = max(n, 4 if c.op.startswith(("v_readlane", "v_writelane")) else 2)
            if c.is_vmem and sg(p.defs) & c.uses: n = max(n, 5)
            if c.is_salu and sg(p.defs) & c.uses and not c.op.startswith("s_cbranch"): n = max(n, 1)
        if c.op.startswith(("v_readfirstlane", "v_readlane")) and vg(p.defs) & c.uses: n = max(n, 1)
    if p.stdata and (c.is_valu or c.is_ds or c.is_vmem or c.is_mfma) and p.stdata & c.defs: n = max(n, 2)
    if p.is_salu and regs_of("m0") & p.defs and regs_of("m0") & c.uses and c.is_vmem: n = max(n, 1)
    return n

class Asm:
    def __init__(self):
        self.items = []
        self.uid = 0
    def __call__(self, text):
        for line in text.split("\n"):
            line = line.strip()
            if not line: continue
            if line.startswith(";"): self.items.append(("t", "    " + line))
            elif line.endswith(":"): self.items.append(("l", line[:-1]))
            elif line.startswith("."): self.items.append(("t", line))
            else: self.items.append(("i", Ins(line)))
    def label(self, name): self.items.append(("l", name))
    def raw(self, text): self.items.append(("t", text))
    def skip_begin(self): self.items.append(("sb", None))
    def skip_end(self): self.items.append(("se", None))
    def newlabel(self, p="L"):
        self.uid += 1
        return f"{p}_{self.uid}"
    def fix_hazards(self, verbose=False, cons=True):
        out = []; win = []
        added = 0; t = 0; pipe = 0; stack = []; winall = []
        for kind, x in self.items:
            if kind == "sb": stack.append((t, len(win), [id(p) for p, _ in win])); continue
            if kind == "se":
                t0, _, ids = stack.pop()
                win = [(p, tp + (t - t0) if id(p) in ids else tp) for p, tp in winall if t0 - tp < 100 or id(p) not in ids]
                continue
            if kind != "i":
                out.append((kind, x)); continue
            ti = max(t, pipe) if x.is_mfma else t
            req_t = ti
            for p, tp in win:
                n = need(p, x)
                if n: req_t = max(req_t, tp + 4 * (n + 1))
            if req_t > ti:
                k = (req_t - t + 3) // 4
                if verbose: print(f"hazard: +{k} before {x.text}")
                added += k
                while k > 0:
                    kk = min(k, 16)
                    out.append(("i", Ins(f"s_nop {kk-1}"))); t += 4 * kk; k -= kk
                ti = max(t, pipe) if x.is_mfma else t
            out.append(("i", x)); win.append((x, ti))
            t = ti + 4 * x.states
            if x.is_mfma and not cons: pipe = ti + 4 * x.passes
            if x.op in ("s_branch", "s_endpgm", "s_setpc_b64"): win = []; pipe = t
            if not stack: win = [(p, tp) for p, tp in win if t - tp < 100]
            winall = win
        self.items = out
        return added
    def text(self):
        o = []
        for kind, x in self.items:
            if kind == "i": o.append("    " + x.text)
            elif kind == "l": o.append(x + ":")
            elif kind in ("sb", "se"): pass
            else: o.append(x)
        return "\n".join(o) + "\n"

def kernel_header(name):
    return f".globl {name}\n.p2align 8\n.type {name},@function\n{name}:\n"
def kernel_desc(name, nvgpr=512, accum=256, nsgpr=100, kernarg=136):
    return f""".p2align 6
.amdhsa_kernel {name}
  .amdhsa_next_free_vgpr {nvgpr}
  .amdhsa_next_free_sgpr {nsgpr}
  .amdhsa_accum_offset {accum}
  .amdhsa_group_segment_fixed_size 0
  .amdhsa_kernarg_size {kernarg}
  .amdhsa_user_sgpr_count 2
  .amdhsa_user_sgpr_kernarg_segment_ptr 1
  .amdhsa_system_sgpr_workgroup_id_x 1
.end_amdhsa_kernel
"""
```

```python
from asm import *
from layout import *
from team import S_WS, S_DBG, S_RANK, S_WAVE, S_T, S_SPIN, np_f32_bits
from pre import unpack
import math
L16, XW, XR0, XR1, OW, ORD, FA = 1, 2, 3, 4, 5, 6, 7
MK = 8
QF, KF, VF, KM, VM, XO = 16, 32, 64, 96, 112, 128
S0, S1, S2 = 144, 148, 152
M_, T_, R_ = 156, 157, 158
PX, PM = 160, 164
OA = 168
OB = 200
ACC = 64
PK = 216
LDS_X, LDS_O = 0x0, 0x4000
OSTR = 528
S_REC, S_PART, S_SEG, S_C, S_PF, S_KF, S_QF = 64, 66, 68, 70, 72, 74, 76

def wait_flags(A, sbase, voff, nlanes, fail, tmp, sleep=1):
    L = A.newlabel("Lwf")
    A(f"s_mov_b32 s{S_SPIN}, 0")
    A(f"s_mov_b64 exec, {(1 << nlanes) - 1:#x}")
    A.label(L)
    A(f"global_load_dword v{tmp}, v{voff}, s[{sbase}:{sbase+1}] sc1")
    A(f"s_add_u32 s{S_SPIN}, s{S_SPIN}, 1"); A(f"s_cmp_gt_u32 s{S_SPIN}, 300000"); A(f"s_cbranch_scc1 {fail}")
    A("s_waitcnt vmcnt(0)")
    A(f"v_cmp_eq_u32 vcc, 0, v{tmp}")
    L2 = A.newlabel("Lwf")
    A(f"s_cbranch_vccz {L2}")
    if sleep: A(f"s_sleep {sleep}")
    A(f"s_branch {L}")
    A.label(L2)
    A("s_mov_b64 exec, -1")

def set_flag(A, sbase, off, vz, vone):
    A("s_waitcnt vmcnt(0)")
    A("s_mov_b64 exec, 1")
    A(f"global_store_dword v{vz}, v{vone}, s[{sbase}:{sbase+1}] offset:{off} sc1")
    A("s_mov_b64 exec, -1")

def load_w32(A, sw, pitch_log2, nrows, dst_fn, lds_base_sreg, tmp):
    ln, a0, a1, src = tmp, tmp + 1, tmp + 2, tmp + 3
    TR = tmp + 4
    A(f"v_and_b32 v{ln}, 63, v0")
    A(f"v_lshrrev_b32 v{a0}, 5, v{ln}"); A(f"v_lshlrev_b32 v{a0}, 11, v{a0}")
    A(f"v_bfe_u32 v{a1}, v{ln}, 2, 2"); A(f"v_lshl_add_u32 v{a0}, v{a1}, 8, v{a0}")
    A(f"v_bfe_u32 v{src}, v{ln}, 4, 1"); A(f"v_lshl_add_u32 v{a0}, v{src}, 5, v{a0}")
    A(f"v_and_b32 v{src}, 3, v{ln}"); A(f"v_lshl_add_u32 v{a0}, v{src}, 3, v{a0}")
    A(f"v_add_u32 v{a0}, s{lds_base_sreg}, v{a0}")
    for nt in range(4):
        A(f"v_xor_b32 v{src}, {nt}, v{a1}"); A(f"v_lshl_add_u32 v{TR+nt}, v{src}, 6, v{a0}")
    A(f"v_lshrrev_b32 v{a0}, 4, v{ln}"); A(f"v_xor_b32 v{a1}, v{a1}, v{a0}")
    A(f"v_lshlrev_b32 v{a0}, {pitch_log2}, v{a0}"); A(f"v_lshl_add_u32 v{a0}, v{a1}, 6, v{a0}")
    A(f"v_and_b32 v{a1}, 3, v{ln}"); A(f"v_lshl_add_u32 v{src}, v{a1}, 4, v{a0}")
    for rnd in range(nrows // 128):
        for i in range(32):
            A(f"s_add_u32 m0, s{lds_base_sreg}, {i*1024}")
            A(f"v_add_u32 v{a0+(i&1)}, {(rnd*128 + 4*i) << pitch_log2}, v{src}")
            A(f"global_load_lds_dwordx4 v{a0+(i&1)}, s[{sw}:{sw+1}]")
        for ks in range(8):
            A(f"s_waitcnt vmcnt({28-4*ks})")
            for nt in range(4):
                pre, b = dst_fn(nt, rnd * 8 + ks)
                A(f"ds_read_b64_tr_b16 {rng(pre, b, 2)}, v{TR+nt} offset:{ks*4096}")
                A(f"ds_read_b64_tr_b16 {rng(pre, b+2, 2)}, v{TR+nt} offset:{ks*4096+1024}")
        A("s_waitcnt lgkmcnt(0)")

def gen_attn(A, s_pair, s_phase, NA, fail, check=True):
    T = S_T
    A(f"s_load_dwordx2 s[{T}:{T+1}], s[0:1], {KA['Wo']}")
    A(f"s_lshl_b32 s{T+2}, s{s_pair}, 18"); A(f"s_lshl_b32 s{T+3}, s{S_WAVE}, 8"); A(f"s_add_u32 s{T+2}, s{T+2}, s{T+3}")
    A(f"s_lshl_b32 s{T+4}, s{S_WAVE}, 15")
    A("s_waitcnt lgkmcnt(0)")
    A(f"s_add_u32 s{T}, s{T}, s{T+2}"); A(f"s_addc_u32 s{T+1}, s{T+1}, 0")
    A("s_barrier")
    load_w32(A, T, 10, 256, lambda nt, ks: ("a", (ks * 4 + nt) * 4), T + 4, 16)
    A("s_barrier")
    ln, n_, g_, t0, t1, t2 = 16, 17, 18, 19, 20, 21
    A(f"v_and_b32 v{ln}, 63, v0"); A(f"v_and_b32 v{n_}, 15, v{ln}"); A(f"v_lshrrev_b32 v{g_}, 4, v{ln}")
    A(f"v_lshlrev_b32 v{L16}, 4, v{ln}")
    A(f"s_lshl_b32 s{T+5}, s{S_WAVE}, 12")
    A(f"v_lshrrev_b32 v{t0}, 2, v{n_}"); A(f"v_xor_b32 v{t0}, v{t0}, v{g_}"); A(f"v_lshlrev_b32 v{t0}, 3, v{t0}")
    A(f"v_lshl_add_u32 v{t0}, v{n_}, 5, v{t0}"); A(f"v_add_u32 v{XW}, s{T+5}, v{t0}")
    A(f"v_bfe_u32 v{t0}, v{ln}, 5, 1"); A(f"v_lshlrev_b32 v{t0}, 4, v{t0}")
    A(f"v_bfe_u32 v{t1}, v{ln}, 4, 1"); A(f"v_lshl_add_u32 v{t0}, v{t1}, 2, v{t0}")
    A(f"v_mov_b32 v{FA}, v{t0}")
    A(f"v_lshrrev_b32 v{t2}, 2, v{n_}"); A(f"v_add_u32 v{t0}, v{t0}, v{t2}")
    A(f"v_and_b32 v{t2}, 3, v{ln}"); A(f"v_xor_b32 v{t2}, v{t2}, v{t1}"); A(f"v_lshlrev_b32 v{t2}, 3, v{t2}")
    A(f"v_lshl_add_u32 v{t0}, v{t0}, 5, v{t2}")
    A(f"v_add_u32 v{XR0}, s{T+5}, v{t0}"); A(f"v_xor_b32 v{t0}, 16, v{t0}"); A(f"v_add_u32 v{t0}, 256, v{t0}"); A(f"v_add_u32 v{XR1}, s{T+5}, v{t0}")
    A(f"s_and_b32 s{T+6}, s{S_WAVE}, 1"); A(f"s_lshl_b32 s{T+7}, s{T+6}, 4")
    A(f"v_add_u32 v{t0}, s{T+7}, v{n_}")
    A(f"v_sub_u32 v{t0}, v{t0}, v{FA}")
    A(f"v_mov_b32 v{t1}, {np_f32_bits(-1e30):#x}")
    for kt in range(2):
        for r in range(4):
            A(f"v_cmp_gt_i32 vcc, {r + 8*kt}, v{t0}")
            A(f"v_cndmask_b32 v{MK+4*kt+r}, 0, v{t1}, vcc")
    A(f"v_add_u32 v{t0}, s{T+7}, v{n_}"); A(f"v_mul_u32_u24 v{t0}, {OSTR}, v{t0}"); A(f"v_lshl_add_u32 v{t0}, v{g_}, 3, v{t0}")
    A(f"s_lshr_b32 s{T+8}, s{S_WAVE}, 1"); A(f"s_lshl_b32 s{T+9}, s{T+8}, 8"); A(f"s_add_u32 s{T+9}, s{T+9}, {LDS_O}")
    A(f"v_add_u32 v{OW}, s{T+9}, v{t0}")
    A(f"v_and_b32 v{t0}, 31, v{ln}"); A(f"v_mul_u32_u24 v{t0}, {OSTR}, v{t0}"); A(f"v_lshrrev_b32 v{t1}, 5, v{ln}"); A(f"v_lshl_add_u32 v{t0}, v{t1}, 4, v{t0}")
    A(f"v_add_u32 v{ORD}, {LDS_O}, v{t0}")
    A(f"v_lshlrev_b32 v{FA}, 2, v{ln}")
    A(f"s_lshl_b32 s{T+10}, s{s_pair}, 1"); A(f"s_add_u32 s{T+10}, s{T+10}, s{T+8}")
    def base(dst, const, parts):
        A(f"s_add_u32 s{dst}, s{S_WS}, {const}"); A(f"s_addc_u32 s{dst+1}, s{S_WS+1}, 0")
        for sr, sh in parts:
            A(f"s_lshl_b32 s{T+11}, s{sr}, {sh}"); A(f"s_add_u32 s{dst}, s{dst}, s{T+11}"); A(f"s_addc_u32 s{dst+1}, s{dst+1}, 0")
    base(S_REC, REC_OFF, [(T + 10, 21), (s_phase, 15)])
    base(S_PART, PART_OFF, [(s_pair, 15), (S_WAVE, 13), (s_phase, 19)])
    base(S_PF, PARTFLAG, [(s_pair, 4), (S_WAVE, 2), (s_phase, 8)])
    base(S_KF, KMFLAG + 16, [(T + 10, 11), (s_phase, 4)])
    base(S_QF, QKVFLAG, [(T + 10, 7)])
    A(f"s_lshl_b32 s{T+12}, s{T+6}, 12")
    cval = np_f32_bits(128 ** -0.5 * math.log2(math.e))
    A(f"s_mov_b32 s{S_C}, {cval:#x}"); A(f"s_mov_b32 s{S_C+1}, {cval:#x}")
    A(f"s_mov_b32 s{S_SEG}, s{s_phase}")
    LOOP = A.newlabel("Lat"); END = A.newlabel("Late")
    A.label(LOOP)
    ad = [22, 23, 24, 25, 26, 27, 28]
    if check:
        A(f"s_lshr_b32 s{T}, s{S_SEG}, 3"); A(f"s_lshl_b32 s{T}, s{T}, 4")
        A(f"v_add_u32 v{ad[0]}, s{T}, v{FA}")
        wait_flags(A, S_QF, ad[0], 3, fail, ad[1])
    AD = OA
    for i in range(7): A(f"v_add_u32 v{AD+i}, {i*4096}, v{L16}")
    A(f"v_add_u32 v{AD+4}, s{T+12}, v{AD+4}")
    def ld(dst, areg, off): A(f"global_load_dwordx4 v[{dst}:{dst+3}], v{areg}, s[{S_REC}:{S_REC+1}] offset:{off} sc1")
    for i in range(4): ld(QF + 4 * i, AD + 4, i * 1024)
    for i in range(8): ld(KF + 4 * i, AD + (i >> 2), (i & 3) * 1024)
    for i in range(8): ld(VF + 4 * i, AD + 2 + (i >> 2), (i & 3) * 1024)
    A(f"v_add_u32 v{AD+5}, {7*4096}, v{L16}")
    if check: wait_flags(A, S_KF, FA, 4, fail, AD + 7)
    for i in range(4): ld(KM + 4 * i, AD + 6, i * 1024)
    for i in range(4): ld(VM + 4 * i, AD + 5, i * 1024)
    def mf(d, a_, b_, c, *extra):
        A(f"v_mfma_f32_16x16x32_bf16 v[{d}:{d+3}], v[{a_}:{a_+3}], v[{b_}:{b_+3}], {c}")
        for x in extra: A(x)
    A("s_waitcnt vmcnt(16)")
    for kb in range(4): mf(S1, KF + 4 * kb, QF + 4 * kb, f"v[{MK}:{MK+3}]" if kb == 0 else f"v[{S1}:{S1+3}]")
    for kb in range(4): mf(S2, KF + 16 + 4 * kb, QF + 4 * kb, f"v[{MK+4}:{MK+7}]" if kb == 0 else f"v[{S2}:{S2+3}]")
    for i in range(4):
        A(f"s_waitcnt vmcnt({7-i})")
        A(f"ds_write_b64 v{XW}, v[{KM+4*i}:{KM+4*i+1}] offset:{i*1024}")
        A(f"ds_write_b64 v{XW}, v[{KM+4*i+2}:{KM+4*i+3}] offset:{i*1024+512}")
    A("s_waitcnt lgkmcnt(0)")
    for kb in range(4):
        A(f"ds_read_b64_tr_b16 v[{XO+4*kb}:{XO+4*kb+1}], v{XR0} offset:{kb*1024}")
        A(f"ds_read_b64_tr_b16 v[{XO+4*kb+2}:{XO+4*kb+3}], v{XR1} offset:{kb*1024}")
    A(f"v_max3_f32 v{M_}, v{S1}, v{S1+1}, v{S1+2}")
    A(f"v_max3_f32 v{M_}, v{M_}, v{S1+3}, v{S2}")
    A(f"v_max3_f32 v{M_}, v{M_}, v{S2+1}, v{S2+2}")
    A(f"v_max_f32 v{M_}, v{M_}, v{S2+3}")
    for kb in range(4):
        A(f"s_waitcnt lgkmcnt({6-2*kb})")
        mf(S0, XO + 4 * kb, QF + 4 * kb, "0" if kb == 0 else f"v[{S0}:{S0+3}]")
    A(f"v_max3_f32 v{T_}, v{M_}, v{S0}, v{S0+1}")
    A(f"v_max3_f32 v{M_}, v{M_}, v{S0}, v{S0+1}")
    def xred(op):
        A(f"v_permlane32_swap_b32 v{M_}, v{T_}")
        A(f"{op} v{R_}, v{M_}, v{T_}"); A(f"{op} v{M_}, v{M_}, v{T_}")
        A(f"v_permlane16_swap_b32 v{M_}, v{R_}")
        A(f"{op} v{M_}, v{M_}, v{R_}")
    xred("v_max_f32")
    A(f"v_mul_f32 v{M_}, s{S_C}, v{M_}")
    for r in (S1, S1 + 2, S2, S2 + 2, S0):
        A(f"v_pk_fma_f32 v[{r}:{r+1}], v[{r}:{r+1}], s[{S_C}:{S_C+1}], v[{M_}:{M_+1}] op_sel_hi:[1,0,0] neg_lo:[0,0,1] neg_hi:[0,0,1]")
    vals = [S1, S1 + 1, S1 + 2, S1 + 3, S2, S2 + 1, S2 + 2, S2 + 3, S0, S0 + 1]
    for r in vals: A(f"v_exp_f32 v{r}, v{r}")
    A(f"v_pk_add_f32 v[{PX}:{PX+1}], v[{S1}:{S1+1}], v[{S1+2}:{S1+3}]")
    A(f"v_pk_add_f32 v[{PX+2}:{PX+3}], v[{S2}:{S2+1}], v[{S2+2}:{S2+3}]")
    A(f"v_pk_add_f32 v[{PX}:{PX+1}], v[{PX}:{PX+1}], v[{S0}:{S0+1}]")
    A(f"v_pk_add_f32 v[{PX}:{PX+1}], v[{PX}:{PX+1}], v[{PX+2}:{PX+3}]")
    A(f"v_add_f32 v{M_}, v{PX}, v{PX+1}"); A(f"v_add_f32 v{T_}, v{PX}, v{PX+1}")
    xred("v_add_f32")
    A(f"v_rcp_f32 v{M_}, v{M_}")
    for r in (S1, S1 + 2, S2, S2 + 2, S0):
        A(f"v_pk_mul_f32 v[{r}:{r+1}], v[{r}:{r+1}], v[{M_}:{M_+1}] op_sel_hi:[1,0]")
    for i, r in enumerate((S1, S1 + 2, S2, S2 + 2, S0, S0)): A(f"v_cvt_pk_bf16_f32 v{PX+i}, v{r}, v{r+1}")
    A("s_waitcnt vmcnt(0)")
    for dt in range(8): mf(OA + 4 * dt, VF + 4 * dt, PX, "0")
    A("s_barrier")
    for dt in range(8):
        A(f"v_mfma_f32_16x16x16_bf16 v[{OA+4*dt}:{OA+4*dt+3}], v[{VM+2*dt}:{VM+2*dt+1}], v[{PM}:{PM+1}], v[{OA+4*dt}:{OA+4*dt+3}]")
        if dt >= 3:
            d = dt - 3
            A(f"v_cvt_pk_bf16_f32 v{PK+2*(d&1)}, v{OA+4*d}, v{OA+4*d+1}"); A(f"v_cvt_pk_bf16_f32 v{PK+2*(d&1)+1}, v{OA+4*d+2}, v{OA+4*d+3}")
            A(f"ds_write_b64 v{OW}, v[{PK+2*(d&1)}:{PK+2*(d&1)+1}] offset:{d*32}")
    for d in range(5, 8):
        A(f"v_cvt_pk_bf16_f32 v{PK+2*(d&1)}, v{OA+4*d}, v{OA+4*d+1}"); A(f"v_cvt_pk_bf16_f32 v{PK+2*(d&1)+1}, v{OA+4*d+2}, v{OA+4*d+3}")
        A(f"ds_write_b64 v{OW}, v[{PK+2*(d&1)}:{PK+2*(d&1)+1}] offset:{d*32}")
    A("s_waitcnt lgkmcnt(0)")
    A("s_barrier")
    for ks in range(3): A(f"ds_read_b128 v[{OB+4*ks}:{OB+4*ks+3}], v{ORD} offset:{ks*32}")
    for ks in range(16):
        A(f"s_waitcnt lgkmcnt({min(2, 15-ks)})")
        for nt in range(4):
            acc = ACC + 16 * nt
            A(f"v_mfma_f32_32x32x16_bf16 v[{acc}:{acc+15}], {a((ks*4+nt)*4, 4)}, v[{OB+4*(ks&3)}:{OB+4*(ks&3)+3}], " + ("0" if ks == 0 else f"v[{acc}:{acc+15}]"))
            if nt == 0 and ks + 3 < 16: A(f"ds_read_b128 v[{OB+4*((ks+3)&3)}:{OB+4*((ks+3)&3)+3}], v{ORD} offset:{(ks+3)*32}")
    A(f"v_add_u32 v{AD}, 4096, v{L16}")
    for nt in range(4):
        acc = ACC + 16 * nt
        pk = PK + 8 * (nt & 1)
        for e in range(8): A(f"v_cvt_pk_bf16_f32 v{pk+e}, v{acc+2*e}, v{acc+2*e+1}")
        ar = L16 if nt < 2 else AD
        A(f"global_store_dwordx4 v{ar}, v[{pk}:{pk+3}], s[{S_PART}:{S_PART+1}] offset:{(nt&1)*2048} sc1")
        A(f"global_store_dwordx4 v{ar}, v[{pk+4}:{pk+7}], s[{S_PART}:{S_PART+1}] offset:{(nt&1)*2048+1024} sc1")
    set_flag(A, S_PF, 0, L16, ORD)
    for b, inc in ((S_REC, NA * REC_SZ), (S_PART, NA << 19), (S_PF, NA << 8), (S_KF, NA << 4)):
        A(f"s_add_u32 s{b}, s{b}, {inc}"); A(f"s_addc_u32 s{b+1}, s{b+1}, 0")
    A(f"s_add_u32 s{S_SEG}, s{S_SEG}, {NA}")
    A(f"s_cmp_lt_u32 s{S_SEG}, 64"); A(f"s_cbranch_scc1 {LOOP}")
```

```python
from asm import *
from layout import *
from team import S_WS, S_DBG, S_RANK, S_WAVE, S_T, S_SPIN, LDS_MISC

def gen_entry(A, nwg, exit_label):
    A(f"s_cmp_ge_u32 s2, {nwg}"); A(f"s_cbranch_scc1 {exit_label}")
    A(f"s_load_dwordx2 s[{S_WS}:{S_WS+1}], s[0:1], {KA['ws']}")
    A(f"s_load_dwordx2 s[{S_DBG}:{S_DBG+1}], s[0:1], {KA['dbg']}")
    A("v_lshrrev_b32 v1, 6, v0")
    A("s_nop 0")
    A(f"v_readfirstlane_b32 s{S_WAVE}, v1")
    A("s_waitcnt lgkmcnt(0)")

def gen_formation(A, fail_label, team_label, worker_label):
    T = S_T
    A("s_getreg_b32 s3, hwreg(HW_REG_XCC_ID)")
    A("s_and_b32 s3, s3, 15")
    L1 = A.newlabel("Lf"); L2 = A.newlabel("Lf"); L3 = A.newlabel("Lf")
    A(f"s_cmp_lg_u32 s{S_WAVE}, 0"); A(f"s_cbranch_scc1 {L1}")
    A("s_lshl_b32 s%d, s3, 2" % T)
    A(f"v_mov_b32 v2, s{T}"); A("v_mov_b32 v3, 1")
    A("s_mov_b64 exec, 1")
    A(f"global_atomic_add v4, v2, v3, s[{S_DBG}:{S_DBG+1}] sc0")
    A("s_waitcnt vmcnt(0)")
    A(f"v_readfirstlane_b32 s{S_RANK}, v4")
    A("s_nop 3")
    A(f"s_cmp_lg_u32 s{S_RANK}, 31"); A(f"s_cbranch_scc1 {L2}")
    A(f"s_add_u32 s{T}, s3, 1")
    A(f"v_mov_b32 v6, s{T}"); A("v_mov_b32 v7, 0"); A(f"v_mov_b32 v2, {DBG_TEAM*4}")
    A(f"global_atomic_cmpswap v2, v[6:7], s[{S_DBG}:{S_DBG+1}]")
    A.label(L2)
    A(f"s_mov_b32 s{S_SPIN}, 0")
    A(f"v_mov_b32 v2, {DBG_TEAM*4}")
    A.label(L3)
    A(f"global_load_dword v5, v2, s[{S_DBG}:{S_DBG+1}] sc1")
    A(f"s_add_u32 s{S_SPIN}, s{S_SPIN}, 1"); A(f"s_cmp_gt_u32 s{S_SPIN}, 400000"); A(f"s_cbranch_scc1 {fail_label}")
    A("s_waitcnt vmcnt(0)")
    A("v_cmp_eq_u32 vcc, 0, v5")
    A(f"s_cbranch_vccnz {L3}")
    A(f"v_mov_b32 v2, {LDS_MISC}")
    A("ds_write_b64 v2, v[4:5]")
    A("s_mov_b64 exec, -1")
    A("s_waitcnt lgkmcnt(0)")
    A.label(L1)
    A("s_barrier")
    A(f"v_mov_b32 v2, {LDS_MISC}")
    A("ds_read_b64 v[4:5], v2")
    A("s_waitcnt lgkmcnt(0)")
    A(f"v_readfirstlane_b32 s{S_RANK}, v4")
    A(f"v_readfirstlane_b32 s{T}, v5")
    A("s_nop 3")
    A(f"s_sub_u32 s{T}, s{T}, 1")
    A(f"s_cmp_lg_u32 s{T}, s3"); A(f"s_cbranch_scc1 {worker_label}")
    A(f"s_cmp_ge_u32 s{S_RANK}, 32"); A(f"s_cbranch_scc1 {worker_label}")
    A(f"s_branch {team_label}")

def gen_fail(A, fail_label, code=1):
    A.label(fail_label)
    A("s_mov_b64 exec, 1")
    A(f"v_mov_b32 v2, {DBG_FAIL*4}"); A(f"v_mov_b32 v3, {code}")
    A(f"global_store_dword v2, v3, s[{S_DBG}:{S_DBG+1}]")
    A("s_waitcnt vmcnt(0)")
    A("s_endpgm")
```

```python
from asm import *
from layout import *
from team import S_WS, S_DBG, S_RANK, S_WAVE, S_T, S_SPIN, np_f32_bits
from pre import unpack
from attn import wait_flags, set_flag
from rz import mkbase, adv, load_w16, S_A, S_B, S_C2, S_D, S_E, S_F, S_SEG
S_G, S_H = 78, 80

def gen_g(A, s_tb, s_fg, fail, check=True):
    T = S_T
    L16, FA, WA0, WA1, STA, UW, PW, PR = 1, 2, 3, 4, 5, 6, 7, 8
    t = 10
    UL, STL, RS, WS, UB, UN = 16, 28, 40, 56, 72, 120
    AC = 128
    Z1 = 16
    LDS_U, LDS_P = 0, 0x6000
    A(f"s_load_dwordx4 s[{T}:{T+3}], s[0:1], {KA['w_sp']}")
    ln, n_, g_, t0, t1 = 16, 17, 18, 19, 20
    A(f"v_and_b32 v{ln}, 63, v0"); A(f"v_and_b32 v{n_}, 15, v{ln}"); A(f"v_lshrrev_b32 v{g_}, 4, v{ln}")
    A(f"v_lshlrev_b32 v{L16}, 4, v{ln}"); A(f"v_lshlrev_b32 v{FA}, 2, v{ln}")
    A(f"v_lshrrev_b32 v{t0}, 2, v{n_}"); A(f"v_lshlrev_b32 v{t0}, 3, v{t0}"); A(f"v_and_b32 v{t1}, 3, v{n_}"); A(f"v_add_u32 v{t0}, v{t0}, v{t1}")
    A(f"v_lshlrev_b32 v{t+4}, 1, v{t0}")
    A(f"v_lshlrev_b32 v{WA0}, 12, v{t0}"); A(f"v_lshl_add_u32 v{WA0}, v{g_}, 4, v{WA0}"); A(f"v_add_u32 v{WA1}, {4*4096}, v{WA0}")
    A(f"v_and_b32 v{t0}, 31, v{ln}"); A(f"v_lshlrev_b32 v{t0}, 3, v{t0}")
    A(f"v_lshrrev_b32 v{t1}, 5, v{ln}"); A(f"v_mul_u32_u24 v{t1}, {6*256}, v{t1}"); A(f"v_add_u32 v{STA}, v{t0}, v{t1}")
    A(f"s_mul_i32 s{T+4}, s{S_WAVE}, 3072"); A(f"v_add_u32 v{UW}, s{T+4}, v{L16}")
    A(f"s_lshl_b32 s{T+5}, s{S_WAVE}, 8"); A(f"s_add_u32 s{T+5}, s{T+5}, {LDS_P}")
    A(f"v_add_u32 v{PW}, s{T+5}, v{t0}")
    A(f"v_lshlrev_b32 v{t1}, 6, v{g_}"); A(f"v_add_u32 v{PR}, s{T+5}, v{t1}")
    A(f"s_lshl_b32 s{T+6}, s{s_tb}, 2"); A(f"s_add_u32 s{T+6}, s{T+6}, s{S_WAVE}")
    A(f"s_mul_i32 s{T+7}, s{s_fg}, 12"); A(f"s_cmp_eq_u32 s{s_fg}, 3"); A(f"s_cselect_b32 s{T+7}, 34, s{T+7}")
    A("s_waitcnt lgkmcnt(0)")
    mkbase(A, S_A, 0, [(T + 6, 17)], src=T)
    mkbase(A, S_B, UF_OFF, [(T + 7, 10)])
    mkbase(A, S_C2, STAT_OFF, [])
    mkbase(A, S_E, ZFLAG + 40, [])
    mkbase(A, S_G, 0, [(T + 6, 6)], src=T + 2)
    A(f"global_load_ushort v{t+2}, v{t+4}, s[{S_G}:{S_G+1}]")
    A(f"global_load_ushort v{t+3}, v{t+4}, s[{S_G}:{S_G+1}] offset:8")
    for i in range(0, 96, 2): A(f"v_mov_b64 v[{AC+i}:{AC+i+1}], 0")
    A(f"global_load_dwordx4 v[{WS}:{WS+3}], v{WA0}, s[{S_A}:{S_A+1}]")
    A(f"global_load_dwordx4 v[{WS+4}:{WS+7}], v{WA1}, s[{S_A}:{S_A+1}]")
    A(f"s_mov_b32 s{S_SEG}, 0")
    A("s_barrier")
    LOOP = A.newlabel("Lg")
    A.label(LOOP)
    for par in range(2):
        wc, wn = WS + 8 * par, WS + 8 * (par ^ 1)
        if check: wait_flags(A, S_E, FA, 12, fail, t)
        for k in range(3): A(f"global_load_dwordx4 v[{UL+4*k}:{UL+4*k+3}], v{UW}, s[{S_B}:{S_B+1}] offset:{k*1024} sc1")
        for k in range(6): A(f"global_load_dwordx2 v[{STL+2*k}:{STL+2*k+1}], v{STA}, s[{S_C2}:{S_C2+1}] offset:{k*256} sc1")
        A(f"s_add_u32 s{T}, s{S_SEG}, {par+1}"); A(f"s_and_b32 s{T}, s{T}, 63"); A(f"s_lshl_b32 s{T}, s{T}, 6")
        A(f"v_add_u32 v{t}, s{T}, v{WA0}"); A(f"v_add_u32 v{t+1}, s{T}, v{WA1}")
        A(f"global_load_dwordx4 v[{wn}:{wn+3}], v{t}, s[{S_A}:{S_A+1}]")
        A(f"global_load_dwordx4 v[{wn+4}:{wn+7}], v{t+1}, s[{S_A}:{S_A+1}]")
        A("s_waitcnt vmcnt(2)")
        for k in range(1, 6): A(f"v_add_f32 v{STL}, v{STL}, v{STL+2*k}"); A(f"v_add_f32 v{STL+1}, v{STL+1}, v{STL+2*k+1}")
        A(f"v_mov_b32 v{STL+2}, v{STL}"); A(f"v_mov_b32 v{STL+3}, v{STL+1}")
        A(f"v_permlane32_swap_b32 v{STL}, v{STL+2}"); A(f"v_permlane32_swap_b32 v{STL+1}, v{STL+3}")
        A(f"v_add_f32 v{STL}, v{STL}, v{STL+2}"); A(f"v_add_f32 v{STL+1}, v{STL+1}, v{STL+3}")
        A(f"v_mul_f32 v{STL}, {np_f32_bits(1.0/688):#x}, v{STL}")
        A(f"v_mul_f32 v{STL+1}, {np_f32_bits(1.0/688):#x}, v{STL+1}")
        A(f"v_fma_f32 v{STL+1}, -v{STL}, v{STL}, v{STL+1}")
        A(f"v_max_f32 v{STL+1}, 0, v{STL+1}")
        A(f"v_add_f32 v{STL+1}, {np_f32_bits(1e-5):#x}, v{STL+1}")
        A(f"v_rsq_f32 v{STL+2}, v{STL+1}")
        A(f"v_mul_f32 v{STL+3}, -v{STL}, v{STL+2}".replace("v_mul_f32", "v_mul_f32_e64"))
        A(f"ds_write_b64 v{PW}, v[{STL+2}:{STL+3}]")
        A("s_waitcnt lgkmcnt(0)")
        for k in range(4): A(f"ds_read_b128 v[{RS+4*k}:{RS+4*k+3}], v{PR} offset:{16*k}")
        for k in range(3):
            unpack(A, UN, UL + 4 * k, 4)
            if k == 0: A("s_waitcnt lgkmcnt(0)")
            for e in range(8): A(f"v_fma_f32 v{UN+e}, v{UN+e}, v{RS+2*e}, v{RS+2*e+1}")
            for e in range(4): A(f"v_cvt_pk_bf16_f32 v{UL+4*k+e}, v{UN+2*e}, v{UN+2*e+1}")
            A(f"ds_write_b128 v{UW}, v[{UL+4*k}:{UL+4*k+3}] offset:{LDS_U + par*12288 + k*1024}")
        A("s_waitcnt lgkmcnt(0)"); A("s_barrier")
        for j in range(12): A(f"ds_read_b128 v[{UB+4*j}:{UB+4*j+3}], v{L16} offset:{LDS_U + par*12288 + j*1024}")
        for j in range(12):
            A(f"s_waitcnt lgkmcnt({11-j})")
            for mt in range(2):
                ac = AC + 8 * j + 4 * mt
                A(f"v_mfma_f32_16x16x32_bf16 v[{ac}:{ac+3}], v[{UB+4*j}:{UB+4*j+3}], v[{wc+4*mt}:{wc+4*mt+3}], v[{ac}:{ac+3}]")
        adv(A, [(S_B, 44 * 1024), (S_C2, 4096), (S_E, 128)])
    A(f"s_add_u32 s{S_SEG}, s{S_SEG}, 2")
    A(f"s_cmp_lt_u32 s{S_SEG}, 64"); A(f"s_cbranch_scc1 {LOOP}")
    A(f"s_mul_i32 s{T}, s{T+6}, {44*1024}")
    mkbase(A, S_D, Z1F_OFF, [(T + 7, 10), (T, 0)])
    if check:
        mkbase(A, S_F, ZFLAG, [(T + 6, 7)])
        wait_flags(A, S_F, FA, 11, fail, t)
    A(f"v_add_u32 v{t}, 4096, v{L16}"); A(f"v_add_u32 v{t+1}, 8192, v{L16}")
    for j in range(12): A(f"global_load_dwordx4 v[{Z1+4*j}:{Z1+4*j+3}], v{(L16, t, t+1)[j>>2]}, s[{S_D}:{S_D+1}] offset:{(j&3)*1024} sc1")
    A(f"s_lshr_b32 s{T+1}, s{T+7}, 1")
    mkbase(A, S_H, YF_OFF, [(T, 0), (T + 1, 10)])
    mkbase(A, S_F, YFLAG, [(T + 6, 4), (s_fg, 2)])
    A(f"v_lshlrev_b32 v{t+2}, 16, v{t+2}"); A(f"v_lshlrev_b32 v{t+3}, 16, v{t+3}")
    A(f"v_add_u32 v{WA0}, {22*1024}, v{L16}"); A(f"v_add_u32 v{WA1}, {22*1024+4096}, v{L16}")
    YP = 72
    LSK = A.newlabel("Lgs")
    for jj in range(6):
        if jj == 5: A(f"s_cmp_ge_u32 s{s_fg}, 2"); A(f"s_cbranch_scc1 {LSK}")
        A(f"s_waitcnt vmcnt({max(0, 10-2*jj) + 2*jj})")
        yp = YP + 8 * (jj & 1)
        for h in range(2):
            j = 2 * jj + h
            unpack(A, UN, Z1 + 4 * j, 4)
            for mt in range(2):
                ac = AC + 8 * j + 4 * mt
                for r in range(4):
                    A(f"v_add_f32 v{ac+r}, v{ac+r}, v{t+2+mt}")
                    A(f"v_mul_f32 v{ac+r}, v{ac+r}, v{UN+4*mt+r}")
                A(f"v_cvt_pk_bf16_f32 v{yp+4*mt+2*h}, v{ac}, v{ac+1}"); A(f"v_cvt_pk_bf16_f32 v{yp+4*mt+2*h+1}, v{ac+2}, v{ac+3}")
        if jj == 4:
            LZ = A.newlabel("Lgz")
            A(f"s_cmp_lg_u32 s{s_fg}, 3"); A(f"s_cbranch_scc1 {LZ}")
            A(f"v_mov_b64 v[{yp+2}:{yp+3}], 0"); A(f"v_mov_b64 v[{yp+6}:{yp+7}], 0")
            A.label(LZ)
        A(f"global_store_dwordx4 v{L16 if jj < 4 else t}, v[{yp}:{yp+3}], s[{S_H}:{S_H+1}] offset:{(jj&3)*1024} sc1")
        A(f"global_store_dwordx4 v{WA0 if jj < 4 else WA1}, v[{yp+4}:{yp+7}], s[{S_H}:{S_H+1}] offset:{(jj&3)*1024} sc1")
    A.label(LSK)
    set_flag(A, S_F, 0, L16, PW)

def gen_o(A, s_tile, fail, check=True):
    T = S_T
    L16, FA, YW, XA = 1, 2, 3, 4
    t = 8
    YL, YB, AC, XV, GB = 16, 64, 96, 112, 128
    A(f"s_load_dwordx2 s[{T}:{T+1}], s[0:1], {KA['w_out']}")
    A(f"s_load_dwordx2 s[{T+2}:{T+3}], s[0:1], {KA['out']}")
    A(f"s_lshr_b32 s{T+4}, s{s_tile}, 2"); A(f"s_and_b32 s{T+5}, s{s_tile}, 3")
    A(f"s_lshl_b32 s{T+6}, s{T+5}, 8"); A(f"s_lshl_b32 s{T+7}, s{S_WAVE}, 6"); A(f"s_add_u32 s{T+6}, s{T+6}, s{T+7}")
    A(f"s_lshl_b32 s{T+8}, s{S_WAVE}, 15")
    A("s_waitcnt lgkmcnt(0)")
    A(f"s_add_u32 s{T}, s{T}, s{T+6}"); A(f"s_addc_u32 s{T+1}, s{T+1}, 0")
    A("s_barrier")
    load_w16(A, T, 1024, 22, lambda g, e: 4 * g + (e % 4) + 16 * (e // 4), 2, lambda nt, ks: ("a", (ks * 2 + nt) * 4), T + 8, 16, rowmax=687, inter=True)
    A("s_barrier")
    ln, n_, g_, t0, t1 = 16, 17, 18, 19, 20
    A(f"v_and_b32 v{ln}, 63, v0"); A(f"v_and_b32 v{n_}, 15, v{ln}"); A(f"v_lshrrev_b32 v{g_}, 4, v{ln}")
    A(f"v_lshlrev_b32 v{L16}, 4, v{ln}"); A(f"v_lshlrev_b32 v{FA}, 2, v{ln}")
    A(f"s_mul_i32 s{T+9}, s{S_WAVE}, {11*1024}"); A(f"v_add_u32 v{YW}, s{T+9}, v{L16}")
    A(f"v_lshrrev_b32 v{t0}, 2, v{n_}"); A(f"v_lshlrev_b32 v{t0}, 3, v{t0}"); A(f"v_and_b32 v{t1}, 3, v{n_}"); A(f"v_add_u32 v{t0}, v{t0}, v{t1}")
    A(f"v_lshlrev_b32 v{XA}, 10, v{t0}"); A(f"v_lshl_add_u32 v{XA}, v{g_}, 4, v{XA}"); A(f"v_add_u32 v{XA}, s{T+6}, v{XA}")
    A(f"v_add_u32 v{XA+1}, 4096, v{XA}")
    A(f"v_lshlrev_b32 v{t0}, 4, v{g_}"); A(f"v_add_u32 v{t0}, s{T+6}, v{t0}"); A(f"v_add_u32 v{t0}, {MOD_OFF + 5*1024}, v{t0}")
    A(f"global_load_dwordx4 v[{GB+8}:{GB+11}], v{t0}, s[{S_WS}:{S_WS+1}] sc1")
    A(f"s_mul_i32 s{T+9}, s{T+4}, {44*1024}")
    mkbase(A, S_A, YF_OFF, [(T + 9, 0)])
    mkbase(A, S_B, X1_OFF, [(T + 4, 15)])
    mkbase(A, S_C2, 0, [(T + 4, 15)], src=T + 2)
    mkbase(A, S_E, YFLAG, [(T + 4, 4)])
    if check: wait_flags(A, S_E, FA, 4, fail, t)
    A(f"v_add_u32 v{t}, 4096, v{YW}"); A(f"v_add_u32 v{t+1}, 8192, v{YW}")
    for i in range(11): A(f"global_load_dwordx4 v[{YL+4*i}:{YL+4*i+3}], v{(YW, t, t+1)[i>>2]}, s[{S_A}:{S_A+1}] offset:{(i&3)*1024} sc1")
    for mt in range(2): A(f"global_load_dwordx4 v[{XV+8+4*mt}:{XV+11+4*mt}], v{XA+mt}, s[{S_B}:{S_B+1}] sc1")
    for i in range(11):
        A(f"s_waitcnt vmcnt({12-i})")
        A(f"ds_write_b128 v{YW}, v[{YL+4*i}:{YL+4*i+3}] offset:{i*1024}")
    A("s_waitcnt lgkmcnt(0)"); A("s_barrier")
    fr = [(mt, j) for j in range(22) for mt in range(2)]
    def rd(i): mt, j = fr[i]; return f"ds_read_b128 v[{YB+4*(i&7)}:{YB+4*(i&7)+3}], v{L16} offset:{(mt*22+j)*1024}"
    for i in range(7): A(rd(i))
    unpack(A, GB, GB + 8, 4)
    for i, (mt, j) in enumerate(fr):
        A(f"s_waitcnt lgkmcnt({min(6, 43-i)})")
        for nt in range(2):
            ac = AC + 8 * mt + 4 * nt
            A(f"v_mfma_f32_16x16x32_bf16 v[{ac}:{ac+3}], {a((j*2+nt)*4, 4)}, v[{YB+4*(i&7)}:{YB+4*(i&7)+3}], " + ("0" if j == 0 else f"v[{ac}:{ac+3}]"))
            if nt == 0 and i + 7 < 44: A(rd(i + 7))
    A("s_waitcnt vmcnt(0)")
    for mt in range(2):
        unpack(A, XV, XV + 8 + 4 * mt, 4)
        for e in range(8): A(f"v_fmac_f32 v{XV+e}, v{AC+8*mt+e}, v{GB+e}")
        for e in range(4): A(f"v_cvt_pk_bf16_f32 v{YL+4*mt+e}, v{XV+2*e}, v{XV+2*e+1}")
        A(f"global_store_dwordx4 v{XA+mt}, v[{YL+4*mt}:{YL+4*mt+3}], s[{S_C2}:{S_C2+1}]")
```

```python
P_OFF   = 0x0000000
Q_OFF   = 0x0040000
FLAG_OFF= 0x0050000
KMFLAG  = FLAG_OFF + 0x0000

MOD_OFF = 0x0070000
H1F_OFF = 0x0100000
REC_OFF = 0x0400000
REC_SZ  = 0x8000
R_KX, R_VX, R_QX, R_KM, R_VM = 0x0, 0x2000, 0x4000, 0x6000, 0x7000
TST_OFF = 0x00E0000
KA = dict(x=0, mem0=8, Wq=16, Wk=24, Wv=32, Wo=40, seglen=48, Bx=56, w_in=64, w_sp=72, b_sp=80, w_out=88, c=96, w_mod=104, out=112, dbg=120, ws=128)
DBG_XCNT = 0
DBG_TEAM = 16
DBG_TINIT= 17
DBG_WCNT = 18
DBG_FAIL = 20
DBG_TIME = 24
MODFLAG = FLAG_OFF + 0x11000
H1FLAG  = FLAG_OFF + 0x11200
QKVFLAG = FLAG_OFF + 0x10000
PARTFLAG= FLAG_OFF + 0x12000
H2FLAG  = FLAG_OFF + 0x16000
ZFLAG   = FLAG_OFF + 0x17000
YFLAG   = FLAG_OFF + 0x19000
FLAG_END= FLAG_OFF + 0x1A000
def KVF(blk, mat, head): return QKVFLAG + (head * 32 + blk * 4 + mat) * 4
PART_OFF= 0x4800000
X1_OFF  = 0x6800000
H2F_OFF = 0x6A00000
Z1F_OFF = 0x6C00000
UF_OFF  = 0x7000000
STAT_OFF= 0x7400000
YF_OFF  = 0x7500000
```

```python
from asm import *
from layout import *
from team import S_WS, S_DBG, S_RANK, S_WAVE, S_T, S_SPIN, np_f32_bits
LOG2E = 1.4426950408889634

def unpack(A, dst, src, n):
    for i in range(n):
        A(f"v_lshlrev_b32 v{dst+2*i}, 16, v{src+i}")
        A(f"v_and_b32 v{dst+2*i+1}, 0xffff0000, v{src+i}")

def gen_mod(A, s_idx, coh="sc1"):
    T = S_T
    A(f"s_load_dwordx2 s[{T}:{T+1}], s[0:1], {KA['c']}")
    A(f"s_load_dwordx2 s[{T+2}:{T+3}], s[0:1], {KA['w_mod']}")
    A("v_lshrrev_b32 v1, 2, v0")
    A("v_and_b32 v2, 3, v0")
    A("v_lshlrev_b32 v3, 4, v1")
    A(f"s_mov_b32 s{T+4}, {8*6144}")
    A(f"v_mul_lo_u32 v4, v1, s{T+4}")
    A("v_lshl_add_u32 v4, v2, 4, v4")
    A(f"s_lshl_b32 s{T+5}, s{s_idx}, 6")
    A(f"v_add_u32 v4, s{T+5}, v4")
    A("s_waitcnt lgkmcnt(0)")
    A(f"global_load_dwordx4 v[8:11], v3, s[{T}:{T+1}]")
    for r in range(8):
        A(f"global_load_dwordx4 v[{16+4*r}:{19+4*r}], v4, s[{T+2}:{T+3}]")
        if r < 7: A("v_add_u32 v4, 6144, v4")
    A("s_waitcnt vmcnt(8)")
    unpack(A, 48, 8, 4)
    for i in range(8):
        A(f"v_mul_f32 v{56+i}, {np_f32_bits(-LOG2E):#x}, v{48+i}")
        A(f"v_exp_f32 v{56+i}, v{56+i}")
        A(f"v_add_f32 v{56+i}, 1.0, v{56+i}")
        A(f"v_rcp_f32 v{56+i}, v{56+i}")
        A(f"v_mul_f32 v{48+i}, v{48+i}, v{56+i}")
    for i in range(4): A(f"v_cvt_pk_bf16_f32 v{8+i}, v{48+2*i}, v{49+2*i}")
    unpack(A, 48, 8, 4)
    for i in range(8): A(f"v_mov_b32 v{64+i}, 0")
    for r in range(8):
        A(f"s_waitcnt vmcnt({7-r})")
        unpack(A, 56, 16 + 4 * r, 4)
        for i in range(8): A(f"v_fmac_f32 v{64+i}, v{48+r}, v{56+i}")
    A("v_lshlrev_b32 v5, 5, v0")
    A("ds_write_b128 v5, v[64:67]"); A("ds_write_b128 v5, v[68:71] offset:16")
    A("s_waitcnt lgkmcnt(0)"); A("s_barrier")
    A("v_and_b32 v6, 31, v0"); A("v_lshrrev_b32 v7, 5, v0")
    A("v_lshlrev_b32 v5, 10, v7"); A("v_lshl_add_u32 v5, v6, 2, v5")
    for r in range(8): A(f"ds_read_b32 v{16+r}, v5 offset:{r*128}")
    A("s_waitcnt lgkmcnt(0)")
    for r in range(1, 8): A(f"v_add_f32 v16, v16, v{16+r}")
    A("v_lshlrev_b32 v5, 2, v0")
    A("ds_write_b32 v5, v16 offset:8192")
    A("s_waitcnt lgkmcnt(0)"); A("s_barrier")
    L = A.newlabel("Lmod")
    A(f"s_cmp_lg_u32 s{S_WAVE}, 0"); A(f"s_cbranch_scc1 {L}")
    A("v_lshlrev_b32 v5, 2, v6")
    for r in range(8): A(f"ds_read_b32 v{16+r}, v5 offset:{8192 + r*128}")
    A("s_waitcnt lgkmcnt(0)")
    for r in range(1, 8): A(f"v_add_f32 v16, v16, v{16+r}")
    A("v_cvt_pk_bf16_f32 v16, v16, v16")
    A(f"s_lshr_b32 s{T+6}, s{s_idx}, 4")
    A(f"s_cmp_eq_u32 s{T+6}, 1"); A(f"s_cselect_b32 s{T+7}, 1.0, 0")
    A(f"s_cmp_eq_u32 s{T+6}, 4"); A(f"s_cselect_b32 s{T+7}, 1.0, s{T+7}")
    A("v_and_b32 v16, 0xffff0000, v16")
    A(f"v_add_f32 v16, s{T+7}, v16")
    A("v_cvt_pk_bf16_f32 v16, v16, v16")
    A("v_lshlrev_b32 v5, 1, v6")
    A(f"s_add_u32 s{T+5}, s{T+5}, {MOD_OFF}")
    A(f"v_add_u32 v5, s{T+5}, v5")
    A("s_mov_b64 exec, 0xffffffff")
    A(f"global_store_short v5, v16, s[{S_WS}:{S_WS+1}] {coh}")
    A("s_mov_b64 exec, -1")
    A.label(L)

def xreduce8(A, x, t, op="v_add_f32"):
    A(f"{op}_dpp v{x}, v{x}, v{x} row_ror:8 row_mask:0xf bank_mask:0xf")
    A(f"v_mov_b32 v{t}, v{x}")
    A(f"v_permlane16_swap_b32 v{x}, v{t}")
    A(f"{op} v{x}, v{x}, v{t}")
    A(f"v_mov_b32 v{t}, v{x}")
    A(f"v_permlane32_swap_b32 v{x}, v{t}")
    A(f"{op} v{x}, v{x}, v{t}")

def gen_ln_core(A, X, t, n=64):
    A(f"v_add_f32 v{t}, v{X}, v{X+1}")
    A(f"v_add_f32 v{t+1}, v{X+2}, v{X+3}")
    for i in range(4, n, 2):
        A(f"v_add_f32 v{t}, v{t}, v{X+i}"); A(f"v_add_f32 v{t+1}, v{t+1}, v{X+i+1}")
    A(f"v_add_f32 v{t}, v{t}, v{t+1}")
    xreduce8(A, t, t + 1)
    A(f"v_mul_f32 v{t}, {np_f32_bits(1.0/512):#x}, v{t}")
    for i in range(n): A(f"v_sub_f32 v{X+i}, v{X+i}, v{t}")
    A(f"v_mul_f32 v{t}, v{X}, v{X}"); A(f"v_mul_f32 v{t+1}, v{X+1}, v{X+1}")
    for i in range(2, n, 2):
        A(f"v_fmac_f32 v{t}, v{X+i}, v{X+i}"); A(f"v_fmac_f32 v{t+1}, v{X+i+1}, v{X+i+1}")
    A(f"v_add_f32 v{t}, v{t}, v{t+1}")
    xreduce8(A, t, t + 1)
    A(f"v_mov_b32 v{t+1}, {np_f32_bits(1e-5):#x}")
    A(f"v_fmac_f32 v{t+1}, {np_f32_bits(1.0/512):#x}, v{t}")
    A(f"v_rsq_f32 v{t}, v{t+1}")

def gen_ln1(A, s_grp, wait_mod=None, coh="sc1"):
    T = S_T
    X, RAW, MS, MA, t = 64, 16, 128, 160, 8
    A(f"s_load_dwordx2 s[{T}:{T+1}], s[0:1], {KA['x']}")
    A("v_and_b32 v1, 63, v0"); A("v_and_b32 v2, 7, v1"); A("v_lshrrev_b32 v3, 3, v1")
    A("v_lshlrev_b32 v4, 10, v2"); A("v_lshl_add_u32 v4, v3, 4, v4")
    A(f"s_lshl_b32 s{T+2}, s{s_grp}, 13")
    A(f"v_add_u32 v4, s{T+2}, v4")
    A("s_waitcnt lgkmcnt(0)")
    for i in range(8): A(f"global_load_dwordx4 v[{RAW+4*i}:{RAW+4*i+3}], v4, s[{T}:{T+1}] offset:{i*128}")
    A("v_lshrrev_b32 v5, 1, v3"); A("v_lshlrev_b32 v5, 10, v5")
    A("v_and_b32 v6, 1, v3"); A("v_lshl_add_u32 v5, v6, 9, v5")
    A("v_lshl_add_u32 v5, v2, 4, v5")
    A(f"s_lshr_b32 s{T+3}, s{s_grp}, 2"); A(f"s_lshl_b32 s{T+3}, s{T+3}, 15")
    A(f"s_and_b32 s{T+4}, s{s_grp}, 3"); A(f"s_lshl_b32 s{T+4}, s{T+4}, 7")
    A(f"s_add_u32 s{T+3}, s{T+3}, s{T+4}"); A(f"s_add_u32 s{T+3}, s{T+3}, {H1F_OFF}")
    A(f"v_add_u32 v5, s{T+3}, v5")
    A("v_lshlrev_b32 v6, 4, v3"); A(f"v_add_u32 v6, {MOD_OFF}, v6")
    for i in range(8):
        A(f"s_waitcnt vmcnt({7-i})")
        unpack(A, X + 8 * i, RAW + 4 * i, 4)
    gen_ln_core(A, X, t)
    if wait_mod: wait_mod()
    for i in range(8):
        A(f"global_load_dwordx4 v[{MA+4*i}:{MA+4*i+3}], v6, s[{S_WS}:{S_WS+1}] offset:{i*128} {coh}")
        A(f"global_load_dwordx4 v[{MS+4*i}:{MS+4*i+3}], v6, s[{S_WS}:{S_WS+1}] offset:{1024 + i*128} {coh}")
    for i in range(64): A(f"v_mul_f32 v{X+i}, v{X+i}, v{t}")
    for i in range(8):
        A(f"s_waitcnt vmcnt({14-2*i + i})") if False else A(f"s_waitcnt vmcnt({14 - 2*i + i})")
        unpack(A, RAW, MA + 4 * i, 4); unpack(A, RAW + 8, MS + 4 * i, 4)
        for e in range(8): A(f"v_fma_f32 v{X+8*i+e}, v{X+8*i+e}, v{RAW+8+e}, v{RAW+e}")
        for e in range(4): A(f"v_cvt_pk_bf16_f32 v{MA+4*i+e}, v{X+8*i+2*e}, v{X+8*i+2*e+1}")
        A(f"global_store_dwordx4 v5, v[{MA+4*i}:{MA+4*i+3}], s[{S_WS}:{S_WS+1}] {coh}")
        if i < 7: A("v_add_u32 v5, 4096, v5")
```

```python
from asm import *
from layout import *
from team import S_WS, S_DBG, S_RANK, S_WAVE, S_T, S_SPIN

ACC, WF = 128, 64
V_TR, V_DS, V_HL, V_SK, V_SQ, V_PK = 8, 12, 13, 14, 15, 32
S_W, S_H, S_REC, S_M0B, S_SLOT, S_NW = 64, 66, 68, 70, 71, 72
NSLOT = 5

def gen_qkv_setup(A):
    T = S_T
    A("v_and_b32 v1, 63, v0")
    A("v_lshrrev_b32 v2, 5, v1"); A("v_lshlrev_b32 v2, 11, v2")
    A("v_bfe_u32 v3, v1, 2, 2"); A("v_lshl_add_u32 v2, v3, 8, v2")
    A("v_bfe_u32 v4, v1, 4, 1"); A("v_lshl_add_u32 v2, v4, 5, v2")
    A("v_and_b32 v4, 3, v1"); A("v_lshl_add_u32 v2, v4, 3, v2")
    for nt in range(4):
        A(f"v_xor_b32 v4, {nt}, v3"); A(f"v_lshl_add_u32 v{V_TR+nt}, v4, 6, v2")
    A("v_lshrrev_b32 v2, 4, v1"); A("v_xor_b32 v4, v3, v2")
    A("v_lshlrev_b32 v2, 13, v2"); A("v_lshl_add_u32 v2, v4, 6, v2")
    A("v_and_b32 v4, 3, v1"); A("v_lshl_add_u32 v2, v4, 4, v2")
    A(f"s_lshl_b32 s{T}, s{S_WAVE}, 15")
    A(f"v_add_u32 v{V_DS}, s{T}, v2")
    A(f"s_lshl_b32 s{S_M0B}, s{S_WAVE}, 10")
    A(f"v_lshlrev_b32 v2, 4, v1"); A(f"s_lshl_b32 s{T}, s{S_WAVE}, 16"); A(f"v_add_u32 v{V_HL}, s{T}, v2")
    A("v_bfe_u32 v2, v1, 3, 1"); A("v_lshlrev_b32 v2, 12, v2")
    A("v_lshrrev_b32 v3, 5, v1"); A("v_lshl_add_u32 v2, v3, 8, v2")
    A("v_bfe_u32 v4, v1, 4, 1"); A("v_lshl_add_u32 v2, v4, 7, v2")
    A("v_and_b32 v4, 7, v1"); A(f"v_lshl_add_u32 v{V_SK}, v4, 4, v2")
    A("v_and_b32 v4, 15, v1"); A("v_lshlrev_b32 v4, 4, v4"); A(f"v_lshl_add_u32 v{V_SQ}, v3, 8, v4")
    A("v_bfe_u32 v16, v1, 4, 1")

def dma_group(A, sw, g, slot_sreg_or_const):
    T = S_T
    for i in range(8):
        A(f"s_add_u32 m0, s{S_SLOT}, {i*4096}")
        A(f"v_add_u32 v{2+(i&1)}, {(128*g + 16*i)*8192}, v{V_DS}")
        A(f"global_load_lds_dwordx4 v{2+(i&1)}, s[{sw}:{sw+1}]")

def gen_chunk(A, mat, first, has_next, coh="sc1", hcoh="sc1"):
    T = S_T
    for i in range(0, 128, 2): A(f"v_mov_b64 v[{ACC+i}:{ACC+i+1}], 0")
    for g in range(4):
        slot = (A.ring + g) % NSLOT
        A(f"s_waitcnt vmcnt({A.pend[g]})")
        A("s_barrier")
        if has_next and (g > 0 or True):
            ng = g if True else None
        base = slot * 32768
        for nt in range(4): A(f"v_add_u32 v{24+nt}, {base}, v{V_TR+nt}")
        def rd(ks, buf):
            L = []
            for nt in range(4):
                L.append(f"ds_read_b64_tr_b16 v[{WF+16*buf+4*nt}:{WF+16*buf+4*nt+1}], v{24+nt} offset:{ks*4096}")
                L.append(f"ds_read_b64_tr_b16 v[{WF+16*buf+4*nt+2}:{WF+16*buf+4*nt+3}], v{24+nt} offset:{ks*4096+1024}")
            return L
        for x in rd(0, 0): A(x)
        extra = []
        if has_next:
            ns = (A.ring + 4 + g) % NSLOT
            for i in range(8):
                extra.append(f"s_add_u32 m0, s{S_M0B}, {ns*32768 + i*4096}\nv_add_u32 v{2+(i&1)}, {(128*g + 16*i)*8192}, v{V_DS}\nglobal_load_lds_dwordx4 v{2+(i&1)}, s[{S_NW}:{S_NW+1}]")
        for ks in range(8):
            buf = ks & 1
            nxt = rd(ks + 1, buf ^ 1) if ks < 7 else []
            A(f"s_waitcnt lgkmcnt(0)")
            kk = 8 * g + ks
            for j in range(8):
                tt, nt = j >> 2, j & 3
                acc = ACC + 16 * (4 * tt + nt)
                h = a((kk * 2 + tt) * 4, 4); w = v(WF + 16 * buf + 4 * nt, 4)
                ops = (h, w) if mat == "v" else (w, h)
                A(f"v_mfma_f32_32x32x16_bf16 v[{acc}:{acc+15}], {ops[0]}, {ops[1]}, v[{acc}:{acc+15}]")
                if nxt and j < 4: A(nxt[2 * j]); A(nxt[2 * j + 1])
                if j == 5 and extra: A(extra.pop(0))
    A.ring = (A.ring + 4) % NSLOT
    off = {"k": R_KX, "v": R_VX, "q": R_QX}[mat]
    if mat == "k": A(f"v_mov_b32 v28, v{V_SK}")
    else: A(f"v_lshl_add_u32 v28, v16, {12 if mat == 'q' else 10}, v{V_SQ}")
    A(f"v_add_u32 v28, {off}, v28")
    A(f"v_add_u32 v29, {REC_SZ}, v28")
    if mat == "v": A("v_add_u32 v30, 4096, v28"); A("v_add_u32 v31, 4096, v29")
    n = 0
    for tt in range(2):
        for nt in range(4):
            acc = ACC + 16 * (4 * tt + nt)
            pk = V_PK + 8 * (n & 1); n += 1
            for e in range(8): A(f"v_cvt_pk_bf16_f32 v{pk+e}, v{acc+2*e}, v{acc+2*e+1}")
            if mat == "v": ar, o = 28 + tt + 2 * (nt >> 1), (nt & 1) * 2048
            else: ar, o = 28 + tt, nt * 1024
            A(f"global_store_dwordx4 v{ar}, v[{pk}:{pk+3}], s[{S_REC}:{S_REC+1}] offset:{o} {coh}")
            A(f"global_store_dwordx4 v{ar}, v[{pk+4}:{pk+7}], s[{S_REC}:{S_REC+1}] offset:{o+512} {coh}")

def gen_unit(A, s_blk, s_head, mats=("k", "v", "q"), coh="sc1", after=None):
    T = S_T
    A(f"s_load_dwordx4 s[{T}:{T+3}], s[0:1], {KA['Wq']}")
    A(f"s_load_dwordx2 s[{T+4}:{T+5}], s[0:1], {KA['Wv']}")
    A(f"s_lshl_b32 s{T+6}, s{s_blk}, 18")
    A(f"s_add_u32 s{S_H}, s{S_WS}, {H1F_OFF}"); A(f"s_addc_u32 s{S_H+1}, s{S_WS+1}, 0")
    A(f"s_add_u32 s{S_H}, s{S_H}, s{T+6}"); A(f"s_addc_u32 s{S_H+1}, s{S_H+1}, 0")
    A(f"s_lshl_b32 s{T+7}, s{s_head}, 21"); A(f"s_add_u32 s{T+7}, s{T+7}, s{T+6}")
    A(f"s_lshl_b32 s{T+8}, s{S_WAVE}, 16"); A(f"s_add_u32 s{T+7}, s{T+7}, s{T+8}")
    A(f"s_add_u32 s{T+7}, s{T+7}, {REC_OFF}")
    A(f"s_add_u32 s{S_REC}, s{S_WS}, s{T+7}"); A(f"s_addc_u32 s{S_REC+1}, s{S_WS+1}, 0")
    A(f"s_lshl_b32 s{T+8}, s{s_head}, 8")
    A("s_waitcnt lgkmcnt(0)")
    for m in range(3):
        A(f"s_add_u32 s{T+2*m}, s{T+2*m}, s{T+8}"); A(f"s_addc_u32 s{T+2*m+1}, s{T+2*m+1}, 0")
    wp = {"q": T, "k": T + 2, "v": T + 4}
    A.ring = 0
    A("s_barrier")
    for g in range(4):
        A(f"s_add_u32 s{S_SLOT}, s{S_M0B}, {g*32768}")
        dma_group(A, wp[mats[0]], g, None)
        for ks in range(8 * g, 8 * g + 8):
            if ks % 4 == 0: A(f"v_add_u32 v4, {ks*1024}, v{V_HL}"); A(f"v_add_u32 v5, {ks*1024 + 32768}, v{V_HL}")
            for tt in range(2):
                A(f"global_load_dwordx4 {a((ks*2+tt)*4, 4)}, v{4+tt}, s[{S_H}:{S_H+1}] offset:{(ks%4)*1024} {coh}")
        if g == 1: A("s_waitcnt vmcnt(24)")
        if g == 2: A("s_waitcnt vmcnt(24)")
    for ci, mat in enumerate(mats):
        has_next = ci + 1 < len(mats)
        if has_next: A(f"s_mov_b64 s[{S_NW}:{S_NW+1}], s[{wp[mats[ci+1]]}:{wp[mats[ci+1]]+1}]")
        nx = 8 if has_next else 0
        if ci == 0: A.pend = [48, 48 + nx, 24 + 2 * nx, 3 * nx]
        else: A.pend = [24 + 16, 16 + 16 + nx, 8 + 16 + 2 * nx, 16 + 3 * nx]
        A.pend = [min(p, 63) for p in A.pend]
        gen_chunk(A, mat, ci == 0, has_next, coh)
        if after: after(mat)
```

```python
from asm import *
from layout import *
from team import S_WS, S_DBG, S_RANK, S_WAVE, S_T, S_SPIN, np_f32_bits
from pre import unpack, xreduce8, LOG2E
from attn import wait_flags, set_flag
S_A, S_B, S_C2, S_D, S_E, S_F, S_SEG = 64, 66, 68, 70, 72, 74, 76

def mkbase(A, dst, const, parts, src=S_WS):
    T = S_T
    A(f"s_add_u32 s{dst}, s{src}, {const}"); A(f"s_addc_u32 s{dst+1}, s{src+1}, 0")
    for sr, sh in parts:
        A(f"s_lshl_b32 s{T+11}, s{sr}, {sh}"); A(f"s_add_u32 s{dst}, s{dst}, s{T+11}"); A(f"s_addc_u32 s{dst+1}, s{dst+1}, 0")
def adv(A, lst):
    for b, inc in lst: A(f"s_add_u32 s{b}, s{b}, {inc}"); A(f"s_addc_u32 s{b+1}, s{b+1}, 0")

def gen_red(A, s_gam, s_phase, NR, fail, check=True):
    T = S_T
    PA, XA, HA, FA, LW, LR = 1, 2, 3, 4, 5, 6
    GA, SB, CB, XV, AC, RAW, t = 16, 32, 48, 64, 80, 96, 8
    XR = 224
    C10, C01 = 12, 13
    A(f"s_load_dwordx2 s[{T}:{T+1}], s[0:1], {KA['x']}")
    ln, r8, c, t0, t1 = 96, 97, 98, 99, 100
    A(f"v_and_b32 v{ln}, 63, v0"); A(f"v_and_b32 v{r8}, 7, v{ln}"); A(f"v_lshrrev_b32 v{c}, 3, v{ln}")
    A(f"v_lshlrev_b32 v{PA}, 9, v{c}"); A(f"v_lshl_add_u32 v{PA}, v{r8}, 4, v{PA}")
    A(f"v_lshrrev_b32 v{t0}, 2, v{c}"); A(f"v_lshlrev_b32 v{t0}, 6, v{t0}")
    A(f"v_bfe_u32 v{t1}, v{c}, 1, 1"); A(f"v_lshl_add_u32 v{t0}, v{t1}, 5, v{t0}")
    A(f"v_and_b32 v{t1}, 1, v{c}"); A(f"v_lshl_add_u32 v{t0}, v{t1}, 3, v{t0}")
    A(f"s_lshl_b32 s{T+2}, s{S_WAVE}, 8"); A(f"v_add_u32 v{t0}, s{T+2}, v{t0}")
    A(f"v_lshl_add_u32 v{XA}, v{r8}, 10, v{t0}")
    A(f"v_add_u32 v{t0}, {MOD_OFF + 2048}, v{t0}")
    for k, (dst, row) in enumerate(((GA, 2), (SB, 3), (CB, 4))):
        for i in range(2):
            for hf in range(2):
                A(f"global_load_dwordx2 v[{RAW+8+8*k+4*i+2*hf}:{RAW+9+8*k+4*i+2*hf}], v{t0}, s[{S_WS}:{S_WS+1}] offset:{(row-2)*1024 + i*128 + hf*16} sc1")
    A(f"v_lshrrev_b32 v{t1}, 2, v{r8}"); A(f"v_lshlrev_b32 v{HA}, 14, v{t1}")
    A(f"v_lshrrev_b32 v{t1}, 2, v{c}"); A(f"v_lshl_add_u32 v{HA}, v{t1}, 10, v{HA}")
    A(f"v_and_b32 v{t1}, 3, v{c}"); A(f"v_lshl_add_u32 v{HA}, v{t1}, 8, v{HA}")
    A(f"v_and_b32 v{t1}, 3, v{r8}"); A(f"v_lshl_add_u32 v{HA}, v{t1}, 4, v{HA}")
    A(f"v_lshlrev_b32 v{FA}, 2, v{ln}")
    A(f"v_lshlrev_b32 v{LR}, 4, v{r8}")
    A(f"s_lshl_b32 s{T+3}, s{S_WAVE}, 2"); A(f"v_lshl_add_u32 v{LW}, v{r8}, 4, s{T+3}")
    A(f"v_mov_b32 v{C10}, 0x3f80"); A(f"v_mov_b32 v{C01}, 0x3f800000")
    A("s_waitcnt lgkmcnt(0)")
    mkbase(A, S_A, PART_OFF, [(s_phase, 19), (S_WAVE, 13), (s_gam, 7)])
    mkbase(A, S_B, 0, [(s_phase, 15), (s_gam, 13)], src=T)
    mkbase(A, S_C2, X1_OFF, [(s_phase, 15), (s_gam, 13)])
    mkbase(A, S_D, H2F_OFF, [(s_phase, 15), (S_WAVE, 12), (s_gam, 6)])
    mkbase(A, S_E, PARTFLAG, [(s_phase, 8)])
    mkbase(A, S_F, H2FLAG, [(s_phase, 6), (s_gam, 4), (S_WAVE, 2)])
    A("s_waitcnt vmcnt(0)")
    for k, dst in enumerate((GA, SB, CB)): unpack(A, dst, RAW + 8 + 8 * k, 8)
    A(f"s_mov_b32 s{S_SEG}, s{s_phase}")
    LOOP = A.newlabel("Lr")
    A.label(LOOP)
    for i in range(2):
        for hf in range(2): A(f"global_load_dwordx2 v[{XR+4*i+2*hf}:{XR+4*i+2*hf+1}], v{XA}, s[{S_B}:{S_B+1}] offset:{i*128+hf*16}")
    if check: wait_flags(A, S_E, FA, 64, fail, t)
    A(f"v_mov_b32 v{t}, v{PA}")
    for p in range(16):
        A(f"global_load_dwordx4 v[{RAW+8*p}:{RAW+8*p+3}], v{t}, s[{S_A}:{S_A+1}] sc1")
        A(f"v_add_u32 v{t+1}, 4096, v{t}")
        A(f"global_load_dwordx4 v[{RAW+8*p+4}:{RAW+8*p+7}], v{t+1}, s[{S_A}:{S_A+1}] sc1")
        if p < 15: A(f"v_add_u32 v{t}, 0x8000, v{t}")
    for i in range(16): A(f"v_mov_b32 v{AC+i}, 0")
    A("s_waitcnt vmcnt(32)")
    unpack(A, XV, XR, 8)
    for p in range(16):
        A(f"s_waitcnt vmcnt({30-2*p})")
        for e in range(8):
            A(f"v_dot2c_f32_bf16 v{AC+2*e}, v{RAW+8*p+e}, v{C10}")
            A(f"v_dot2c_f32_bf16 v{AC+2*e+1}, v{RAW+8*p+e}, v{C01}")
    for i in range(16): A(f"v_fmac_f32 v{XV+i}, v{AC+i}, v{GA+i}")
    for i in range(8): A(f"v_cvt_pk_bf16_f32 v{XR+i}, v{XV+2*i}, v{XV+2*i+1}")
    unpack(A, XV, XR, 8)
    for i in range(2):
        for hf in range(2): A(f"global_store_dwordx2 v{XA}, v[{XR+4*i+2*hf}:{XR+4*i+2*hf+1}], s[{S_C2}:{S_C2+1}] offset:{i*128+hf*16} sc1")
    def wgsum(off):
        xreduce8(A, t, t + 1)
        A(f"ds_write_b32 v{LW}, v{t} offset:{off}")
        A("s_waitcnt lgkmcnt(0)"); A("s_barrier")
        A(f"ds_read_b128 v[{AC}:{AC+3}], v{LR} offset:{off}")
        A("s_waitcnt lgkmcnt(0)")
        A(f"v_add_f32 v{t}, v{AC}, v{AC+1}"); A(f"v_add_f32 v{t+1}, v{AC+2}, v{AC+3}"); A(f"v_add_f32 v{t}, v{t}, v{t+1}")
    A(f"v_add_f32 v{t}, v{XV}, v{XV+1}"); A(f"v_add_f32 v{t+1}, v{XV+2}, v{XV+3}")
    for i in range(4, 16, 2): A(f"v_add_f32 v{t}, v{t}, v{XV+i}"); A(f"v_add_f32 v{t+1}, v{t+1}, v{XV+i+1}")
    A(f"v_add_f32 v{t}, v{t}, v{t+1}")
    wgsum(0)
    A(f"v_mul_f32 v{t}, {np_f32_bits(1.0/512):#x}, v{t}")
    for i in range(16): A(f"v_sub_f32 v{XV+i}, v{XV+i}, v{t}")
    A(f"v_mul_f32 v{t}, v{XV}, v{XV}"); A(f"v_mul_f32 v{t+1}, v{XV+1}, v{XV+1}")
    for i in range(2, 16, 2): A(f"v_fmac_f32 v{t}, v{XV+i}, v{XV+i}"); A(f"v_fmac_f32 v{t+1}, v{XV+i+1}, v{XV+i+1}")
    A(f"v_add_f32 v{t}, v{t}, v{t+1}")
    wgsum(128)
    A(f"v_mov_b32 v{t+1}, {np_f32_bits(1e-5):#x}")
    A(f"v_fmac_f32 v{t+1}, {np_f32_bits(1.0/512):#x}, v{t}")
    A(f"v_rsq_f32 v{t}, v{t+1}")
    for i in range(16): A(f"v_mul_f32 v{XV+i}, v{XV+i}, v{t}")
    for i in range(16): A(f"v_fma_f32 v{XV+i}, v{XV+i}, v{CB+i}, v{SB+i}")
    for i in range(8): A(f"v_cvt_pk_bf16_f32 v{AC+i}, v{XV+2*i}, v{XV+2*i+1}")
    A(f"global_store_dwordx4 v{HA}, v[{AC}:{AC+3}], s[{S_D}:{S_D+1}] sc1")
    A(f"global_store_dwordx4 v{HA}, v[{AC+4}:{AC+7}], s[{S_D}:{S_D+1}] offset:2048 sc1")
    set_flag(A, S_F, 0, FA, C10)
    adv(A, [(S_A, NR << 19), (S_B, NR << 15), (S_C2, NR << 15), (S_D, NR << 15), (S_E, NR << 8), (S_F, NR << 6)])
    A(f"s_add_u32 s{S_SEG}, s{S_SEG}, {NR}")
    A(f"s_cmp_lt_u32 s{S_SEG}, 64"); A(f"s_cbranch_scc1 {LOOP}")

def load_w16(A, sw, pitch, nks, rows_fn, ntile, dst_fn, lds_base_sreg, tmp, rowmax=None, inter=False):
    ln, a0, a1, src, TR0 = tmp, tmp + 1, tmp + 2, tmp + 3, tmp + 4
    rb = 32 * ntile
    upr = rb // 16
    rpi = 64 // upr
    A(f"v_and_b32 v{ln}, 63, v0")
    d1 = rows_fn(1, 0) - rows_fn(0, 0); d2 = rows_fn(2, 0) - rows_fn(0, 0); sec = rows_fn(0, 4) - rows_fn(0, 0)
    assert rows_fn(3, 0) == d1 + d2
    A(f"v_bfe_u32 v{a0}, v{ln}, 4, 1"); A(f"v_mul_u32_u24 v{a0}, {d1}, v{a0}")
    A(f"v_bfe_u32 v{a1}, v{ln}, 5, 1"); A(f"v_mul_u32_u24 v{a1}, {d2}, v{a1}"); A(f"v_add_u32 v{a0}, v{a0}, v{a1}")
    A(f"v_bfe_u32 v{a1}, v{ln}, 2, 2"); A(f"v_add_u32 v{a0}, v{a0}, v{a1}")
    A(f"v_mul_u32_u24 v{a0}, {rb}, v{a0}")
    A(f"v_and_b32 v{a1}, 3, v{ln}"); A(f"v_lshl_add_u32 v{a0}, v{a1}, {4 if inter else 3}, v{a0}")
    A(f"v_add_u32 v{TR0}, s{lds_base_sreg}, v{a0}")
    A(f"v_lshrrev_b32 v{a0}, {upr.bit_length()-1}, v{ln}")
    A(f"v_and_b32 v{a1}, {upr-1}, v{ln}"); A(f"v_lshlrev_b32 v{src}, 4, v{a1}")
    A(f"s_mov_b32 s{S_T+12}, {pitch}")
    ninstr = 32 * nks // rpi
    CH = 32
    done = 0
    while done < ninstr:
        n = min(CH, ninstr - done)
        for i in range(n):
            A(f"s_add_u32 m0, s{lds_base_sreg}, {i*1024}")
            A(f"v_add_u32 v{a1}, {(done+i)*rpi}, v{a0}")
            if rowmax is not None: A(f"v_min_u32 v{a1}, {rowmax}, v{a1}")
            A(f"v_mad_u32_u24 v{a1}, v{a1}, s{S_T+12}, v{src}")
            A(f"global_load_lds_dwordx4 v{a1}, s[{sw}:{sw+1}]")
        A("s_waitcnt vmcnt(0)")
        ks0 = done * rpi // 32
        for ks in range(n * rpi // 32):
            for nt in range(ntile):
                pre, b = dst_fn(nt, ks0 + ks)
                o = ks * 32 * rb + nt * (8 if inter else 32)
                A(f"ds_read_b64_tr_b16 {rng(pre, b, 2)}, v{TR0} offset:{o}")
                A(f"ds_read_b64_tr_b16 {rng(pre, b+2, 2)}, v{TR0} offset:{o + sec*rb}")
        A("s_waitcnt lgkmcnt(0)")
        done += n

def sigma(g, e): return 16 * (g // 2) + 4 * (g % 2) + (e % 4) + 8 * (e // 4)

def gelu(A, x, t, n):
    k0 = 2 * 0.7978845608028654 * LOG2E; k1 = k0 * 0.044715
    for i in range(n): A(f"v_mul_f32 v{t+i}, v{x+i}, v{x+i}")
    for i in range(n): A(f"v_fma_f32 v{t+i}, v{t+i}, s{S_T+14}, v{t+n}")
    for i in range(n): A(f"v_mul_f32 v{t+i}, v{t+i}, v{x+i}")
    for i in range(n): A(f"v_exp_f32 v{t+i}, -v{t+i}")
    for i in range(n): A(f"v_add_f32 v{t+i}, 1.0, v{t+i}")
    for i in range(n): A(f"v_rcp_f32 v{t+i}, v{t+i}")
    for i in range(n): A(f"v_mul_f32 v{x+i}, v{x+i}, v{t+i}")
    return k0, k1

def gen_z(A, s_zi, s_phase, NZ, fail, check=True):
    T = S_T
    L16, FA, HW, SW, SR = 1, 2, 3, 4, 5
    WF, HB, AC, t, ST, HL = 64, 128, 16, 24, 40, 160
    LDS_H, LDS_S = 0, 0x8000
    A(f"s_load_dwordx2 s[{T}:{T+1}], s[0:1], {KA['w_in']}")
    A(f"s_lshl_b32 s{T+2}, s{s_zi}, 2"); A(f"s_add_u32 s{T+2}, s{T+2}, s{S_WAVE}")
    A(f"s_min_u32 s{T+3}, s{T+2}, 85"); A(f"s_lshl_b32 s{T+3}, s{T+3}, 5")
    A(f"s_lshl_b32 s{T+4}, s{S_WAVE}, 15")
    A("s_waitcnt lgkmcnt(0)")
    A(f"s_add_u32 s{T}, s{T}, s{T+3}"); A(f"s_addc_u32 s{T+1}, s{T+1}, 0")
    A("s_barrier")
    load_w16(A, T, 2752, 16, sigma, 1, lambda nt, ks: ("v", WF + 4 * ks), T + 4, 16)
    A("s_barrier")
    A("v_and_b32 v16, 63, v0")
    A(f"v_lshlrev_b32 v{L16}, 4, v16"); A(f"v_lshlrev_b32 v{FA}, 2, v16")
    A(f"s_lshl_b32 s{T+5}, s{S_WAVE}, 13"); A(f"v_add_u32 v{HW}, s{T+5}, v{L16}")
    A(f"v_lshrrev_b32 v17, 4, v16"); A(f"v_lshlrev_b32 v17, 6, v17"); A(f"s_lshl_b32 s{T+6}, s{S_WAVE}, 8"); A(f"s_add_u32 s{T+6}, s{T+6}, {LDS_S}")
    A(f"v_add_u32 v{SW}, s{T+6}, v17")
    A(f"v_add_u32 v{SR}, {LDS_S}, v{FA}")
    mkbase(A, S_A, H2F_OFF, [(s_phase, 15)])
    A(f"s_mov_b32 s{T+7}, {UF_OFF - 43*1024}")
    A(f"s_cmp_lt_u32 s{T+2}, 43")
    A(f"s_cselect_b32 s{T+7}, {Z1F_OFF}, s{T+7}")
    A(f"s_cselect_b32 s{T+13}, 1, 0")
    A(f"s_min_u32 s{T+8}, s{T+2}, 86"); A(f"s_lshl_b32 s{T+8}, s{T+8}, 10"); A(f"s_add_u32 s{T+7}, s{T+7}, s{T+8}")
    A(f"s_mul_i32 s{T+8}, s{s_phase}, {44*1024}"); A(f"s_add_u32 s{T+7}, s{T+7}, s{T+8}")
    A(f"s_add_u32 s{S_B}, s{S_WS}, s{T+7}"); A(f"s_addc_u32 s{S_B+1}, s{S_WS+1}, 0")
    mkbase(A, S_C2, STAT_OFF - 10 * 256, [(s_phase, 12), (s_zi, 8)])
    mkbase(A, S_E, H2FLAG, [(s_phase, 6)])
    mkbase(A, S_F, ZFLAG, [(s_phase, 7), (s_zi, 2)])
    k0 = 2 * 0.7978845608028654 * LOG2E; k1 = k0 * 0.044715
    A(f"s_mov_b32 s{T+14}, {np_f32_bits(k1):#x}")
    A(f"v_mov_b32 v{t+8}, {np_f32_bits(k0):#x}")
    A(f"s_cmp_lt_u32 s{T+2}, 86"); A(f"s_cselect_b32 s{T+15}, 0, 1"); A(f"s_or_b32 s{T+15}, s{T+15}, s{T+13}")
    A(f"s_mov_b32 s{S_SEG}, s{s_phase}")
    LOOP = A.newlabel("Lz")
    A.label(LOOP)
    if check: wait_flags(A, S_E, FA, 16, fail, t)
    A(f"v_add_u32 v{t}, 4096, v{HW}")
    for i in range(8): A(f"global_load_dwordx4 v[{HL+4*i}:{HL+4*i+3}], v{HW if i < 4 else t}, s[{S_A}:{S_A+1}] offset:{(i&3)*1024} sc1")
    for i in range(8):
        A(f"s_waitcnt vmcnt({7-i})")
        A(f"ds_write_b128 v{HW}, v[{HL+4*i}:{HL+4*i+3}] offset:{i*1024}")
    A("s_waitcnt lgkmcnt(0)"); A("s_barrier")
    LZ2 = A.newlabel("Lz2"); LG = A.newlabel("Lzg")
    def mm(z1):
        fr = [(mt, ks) for ks in range(16) for mt in range(2)]
        def rd(i): mt, ks = fr[i]; return f"ds_read_b128 v[{HB+4*(i&7)}:{HB+4*(i&7)+3}], v{L16} offset:{mt*16384 + ks*1024}"
        for i in range(7): A(rd(i))
        for i, (mt, ks) in enumerate(fr):
            A(f"s_waitcnt lgkmcnt({min(6, 31-i)})")
            h = v(HB + 4 * (i & 7), 4); w = v(WF + 4 * ks, 4)
            ops = (w, h) if z1 else (h, w)
            A(f"v_mfma_f32_16x16x32_bf16 v[{AC+4*mt}:{AC+4*mt+3}], {ops[0]}, {ops[1]}, " + ("0" if ks == 0 else f"v[{AC+4*mt}:{AC+4*mt+3}]"))
            if i + 7 < 32: A(rd(i + 7))
    A(f"s_cmp_eq_u32 s{T+13}, 0"); A(f"s_cbranch_scc1 {LZ2}")
    mm(True); A(f"s_branch {LG}")
    A.label(LZ2); mm(False)
    A.label(LG)
    A("s_nop 7")
    for i in range(4): A(f"v_cvt_pk_bf16_f32 v{ST+i}, v{AC+2*i}, v{AC+2*i+1}")
    unpack(A, AC, ST, 4)
    gelu(A, AC, t, 8)
    for i in range(4): A(f"v_cvt_pk_bf16_f32 v{HL+i}, v{AC+2*i}, v{AC+2*i+1}")
    A(f"global_store_dwordx4 v{L16}, v[{HL}:{HL+3}], s[{S_B}:{S_B+1}] sc1")
    for i in range(8): A(f"v_mov_b32 v{ST+2*i}, v{AC+i}"); A(f"v_mul_f32 v{ST+2*i+1}, v{AC+i}, v{AC+i}")
    for sh in (8, 4, 2, 1):
        for i in range(16): A(f"v_add_f32_dpp v{ST+i}, v{ST+i}, v{ST+i} row_ror:{sh} row_mask:0xf bank_mask:0xf")
    LN = A.newlabel("Lzn")
    A(f"s_cmp_eq_u32 s{T+15}, 0"); A(f"s_cbranch_scc1 {LN}")
    A.skip_begin()
    for i in range(0, 16, 2): A(f"v_mov_b64 v[{ST+i}:{ST+i+1}], 0")
    A.skip_end()
    A.label(LN)
    for i in range(4): A(f"ds_write_b128 v{SW}, v[{ST+4*i}:{ST+4*i+3}] offset:{16*i}")
    A("s_waitcnt vmcnt(0) lgkmcnt(0)"); A("s_barrier")
    LE = A.newlabel("Lze")
    A(f"s_cmp_lg_u32 s{S_WAVE}, 0"); A(f"s_cbranch_scc1 {LE}")
    LF = A.newlabel("Lzf")
    A(f"s_cmp_lt_u32 s{s_zi}, 10"); A(f"s_cbranch_scc1 {LF}")
    for i in range(4): A(f"ds_read_b32 v{ST+i}, v{SR} offset:{256*i}")
    A("s_waitcnt lgkmcnt(0)")
    A(f"v_add_f32 v{ST}, v{ST}, v{ST+1}"); A(f"v_add_f32 v{ST+2}, v{ST+2}, v{ST+3}"); A(f"v_add_f32 v{ST}, v{ST}, v{ST+2}")
    A(f"global_store_dword v{FA}, v{ST}, s[{S_C2}:{S_C2+1}] sc1")
    A.label(LF)
    set_flag(A, S_F, 0, FA, SR)
    A.label(LE)
    adv(A, [(S_A, NZ << 15), (S_B, NZ * 44 * 1024), (S_C2, NZ << 12), (S_E, NZ << 6), (S_F, NZ << 7)])
    A(f"s_add_u32 s{S_SEG}, s{S_SEG}, {NZ}")
    A(f"s_cmp_lt_u32 s{S_SEG}, 64"); A(f"s_cbranch_scc1 {LOOP}")
```

```python
from asm import *
from layout import *
import math

IDX, L16, MEMW, MR1, MR2, MR3, XW, XR0, XR1, OW, OR_, WL, SPARE, PST, QST, QLD = range(16)
JUNK2 = 20
JUNK = 103
WL0, WL1 = 30, 31
RA, RB, RC, RD, RE, RF = 16, 48, 80, 96, 104, 120
LDS_MEM, LDS_KX, LDS_X, LDS_O, LDS_MISC, LDS_W = 0x0, 0x2000, 0x6000, 0x7000, 0x7A00, 0x8000
LDS_SEL = 0x7C00
OS = 288
S_WS, S_DBG, S_RANK, S_WAVE, S_STEP, S_TAG = 4, 6, 8, 9, 10, 11
S_P0, S_P1, S_PL0, S_PL1, S_Q0, S_Q1 = 12, 14, 16, 18, 20, 22
S_KX, S_VX, S_KM, S_VM, S_C, S_QMASK = 24, 26, 28, 30, 32, 34
S_KMF, S_KVF = 36, 38
S_T = 40
S_SPIN = 60
S_CKM = 58
S_VMI = 59
S_KXB = 61
S_T0 = 62

def piece_list():
    L = []
    for i in range(8):
        L.append(("q", i)); L.append(("k", i))
    for i in range(8): L.append(("v", i))
    for u in range(2):
        for j in range(2):
            for pp in range(2): L.append(("o", u, j, pp))
    return L
LDS_PIECES = [("q", 1), ("k", 1), ("q", 2), ("k", 2), ("q", 3), ("o", 1, 0, 0), ("o", 1, 0, 1), ("o", 1, 1, 0)]
REG_PIECES = [p for p in piece_list() if p not in LDS_PIECES]
assert len(REG_PIECES) == 24
def octet_reg(k):
    return ("v", 128 + 8 * k) if k < 16 else ("a", 8 * (k - 16))
OCT = {}
for i, p in enumerate(REG_PIECES):
    OCT[(p, 0)] = octet_reg(2 * i); OCT[(p, 1)] = octet_reg(2 * i + 1)
LSLOT = {p: i for i, p in enumerate(LDS_PIECES)}

def tr_octet(A, dst, slot, t):
    pre, b = dst
    for r in range(4):
        A(f"ds_read_b64_tr_b16 {rng(pre, b + 2 * r, 2)}, v{WL0 + (r & 1)} offset:{slot * 4096 + t * 512 + (r >> 1) * 2048}")

def gen_team(A, fail_label, done_label, standalone=True, nsteps=64, d1=0, d2=0, timing=False, nopub=0, nokv=False, tslot=0, vsplit=(2,2,8,4), qdepth=1, qgap=0, pdepth=1, d3=0, qmask=True, wov=1):
    T = S_T
    NST = 8
    def stamp(k):
        if timing == 2: A(f"s_memtime s[{64+2*k}:{65+2*k}]")
    def accum():
        if timing == 2:
            for k in range(1, NST):
                A(f"s_sub_u32 s{96}, s{64+2*k}, s{64+2*(k-1)}")
                A(f"s_add_u32 s{80+k}, s{80+k}, s{96}")
            A(f"s_sub_u32 s96, s90, s{64+2*(NST-1)}"); A("s_add_u32 s88, s88, s96")
            LS = A.newlabel("Lsnap")
            A(f"s_cmp_lg_u32 s{S_STEP}, 31"); A(f"s_cbranch_scc1 {LS}")
            for k in range(NST): A(f"v_writelane_b32 v{JUNK2}, s{64+2*k}, {k}")
            A(f"v_writelane_b32 v{JUNK2}, s90, 8")
            A(f"s_lshl_b32 s96, s{S_RANK}, 2"); A(f"s_add_u32 s96, s96, s{S_WAVE}"); A("s_lshl_b32 s96, s96, 6"); A(f"s_add_u32 s96, s96, {TST_OFF + 0x1000 + tslot * 0x2000}")
            A(f"v_lshrrev_b32 v{JUNK2+1}, 2, v{L16}"); A(f"v_add_u32 v{JUNK2+1}, s96, v{JUNK2+1}")
            A("s_mov_b64 exec, 0xffff")
            A(f"global_store_dword v{JUNK2+1}, v{JUNK2}, s[{S_WS}:{S_WS+1}]")
            A("s_mov_b64 exec, -1")
            A.label(LS)
            A("s_mov_b64 s[64:65], s[90:91]")
    ln, n_, g_, t0, t1, t2, t3 = RA, RA + 1, RA + 2, RA + 3, RA + 4, RA + 5, RA + 6
    DSRC, DSRO = RA + 8, RA + 9
    A(f"v_and_b32 v{ln}, 63, v0")
    A(f"v_and_b32 v{n_}, 15, v{ln}")
    A(f"v_lshrrev_b32 v{g_}, 4, v{ln}")
    A(f"s_load_dwordx4 s[{T}:{T+3}], s[0:1], {KA['Wq']}")
    A(f"s_load_dwordx4 s[{T+4}:{T+7}], s[0:1], {KA['Wv']}")
    A(f"s_load_dwordx2 s[{T+8}:{T+9}], s[0:1], {KA['mem0']}")
    A(f"v_bfe_u32 v{t0}, v{ln}, 4, 1")
    A(f"v_bfe_u32 v{t1}, v{ln}, 3, 1")
    A(f"v_xor_b32 v{t1}, v{t1}, v{t0}")
    A(f"v_bfe_u32 v{t2}, v{ln}, 2, 1")
    A(f"v_bfe_u32 v{t3}, v{ln}, 1, 1")
    A(f"v_lshl_add_u32 v{t3}, v{t1}, 1, v{t3}")
    A(f"v_lshl_add_u32 v{t3}, v{t2}, 2, v{t3}")
    A(f"v_lshl_add_u32 v{t3}, v{t0}, 3, v{t3}")
    A(f"v_lshrrev_b32 v{t0}, 5, v{ln}")
    A(f"v_and_b32 v{t1}, 1, v{ln}")
    A(f"v_lshlrev_b32 v{t0}, 5, v{t0}")
    A(f"v_lshl_add_u32 v{t0}, v{t1}, 4, v{t0}")
    A(f"v_lshl_add_u32 v{DSRC}, v{t3}, 13, v{t0}")
    A(f"v_lshl_add_u32 v{DSRO}, v{t3}, 10, v{t0}")
    A(f"v_bfe_u32 v{t0}, v{ln}, 5, 1")
    A(f"v_lshlrev_b32 v{t0}, 10, v{t0}")
    A(f"v_bfe_u32 v{t1}, v{ln}, 3, 1")
    A(f"v_lshl_add_u32 v{t0}, v{t1}, 8, v{t0}")
    A(f"v_lshl_add_u32 v{t0}, v{t1}, 7, v{t0}")
    A(f"v_bfe_u32 v{t1}, v{ln}, 4, 1")
    A(f"v_lshl_add_u32 v{t0}, v{t1}, 6, v{t0}")
    A(f"v_bfe_u32 v{t1}, v{ln}, 2, 1")
    A(f"v_lshl_add_u32 v{t0}, v{t1}, 5, v{t0}")
    A(f"v_and_b32 v{t1}, 3, v{ln}")
    A(f"v_lshl_add_u32 v{t0}, v{t1}, 3, v{t0}")
    A(f"s_lshl_b32 s{T+10}, s{S_WAVE}, 15")
    A(f"s_add_u32 s{T+10}, s{T+10}, {LDS_W}")
    A(f"v_add_u32 v{WL0}, s{T+10}, v{t0}")
    A(f"v_xor_b32 v{WL1}, 128, v{WL0}")
    A("s_waitcnt lgkmcnt(0)")
    A(f"s_lshl_b32 s{T+11}, s{S_RANK}, 8")
    A(f"s_lshl_b32 s{T+12}, s{S_WAVE}, 6")
    A(f"s_add_u32 s{T+11}, s{T+11}, s{T+12}")
    for m in range(3):
        A(f"s_add_u32 s{T+2*m}, s{T+2*m}, s{T+11}")
        A(f"s_addc_u32 s{T+2*m+1}, s{T+2*m+1}, 0")
    A(f"s_lshl_b32 s{T+11}, s{S_RANK}, 17")
    A(f"s_lshl_b32 s{T+12}, s{S_WAVE}, 7")
    A(f"s_add_u32 s{T+11}, s{T+11}, s{T+12}")
    A(f"s_add_u32 s{T+6}, s{T+6}, s{T+11}")
    A(f"s_addc_u32 s{T+7}, s{T+7}, 0")
    for i in range(4):
        A(f"s_add_u32 s{T+12+i}, s{S_WAVE}, {i}")
        A(f"s_and_b32 s{T+12+i}, s{T+12+i}, 3")
        A(f"s_lshl_b32 s{T+12+i}, s{T+12+i}, 19")
    VT = RA + 10
    def dma_piece(p, slot):
        for i in range(4):
            A(f"s_add_u32 m0, s{T+10}, {slot * 4096 + i * 1024}")
            if p[0] in "qkv":
                mi = "qkv".index(p[0]); sl = p[1]
                A(f"s_add_u32 s{T+16}, s{T+12+(sl & 3)}, {(sl >> 2) * (4 << 19) + i * 16 * 8192}")
                A(f"v_add_u32 v{VT + (i & 1)}, s{T+16}, v{DSRC}")
                A(f"global_load_lds_dwordx4 v{VT + (i & 1)}, s[{T+2*mi}:{T+2*mi+1}]")
            else:
                _, u, j, pp = p
                A(f"v_add_u32 v{VT + (i & 1)}, {(64 * j + 16 * i) * 1024 + u * 512 + pp * 64}, v{DSRO}")
                A(f"global_load_lds_dwordx4 v{VT + (i & 1)}, s[{T+6}:{T+7}]")
    order = REG_PIECES + LDS_PIECES
    for i in range(8): dma_piece(order[i], i)
    A(f"v_lshlrev_b32 v{L16}, 4, v{ln}")
    A(f"s_lshl_b32 s{T+16}, s{S_WAVE}, 10")
    A(f"v_add_u32 v{MEMW}, s{T+16}, v{L16}")
    for i in (1, 2, 3):
        A(f"s_lshr_b32 s{T+17}, s{T+12+i}, 9")
        A(f"v_add_u32 v{MR1+i-1}, s{T+17}, v{L16}")
    A(f"v_bfe_u32 v{t0}, v{ln}, 1, 1")
    A(f"v_mul_u32_u24 v{t0}, 0xAAAA, v{t0}")
    A(f"v_add_u32 v{IDX}, 0x4444, v{t0}")
    A(f"v_lshrrev_b32 v{t0}, 2, v{n_}")
    A(f"v_xor_b32 v{t0}, v{t0}, v{g_}")
    A(f"v_lshlrev_b32 v{t0}, 3, v{t0}")
    A(f"v_lshl_add_u32 v{t0}, v{n_}, 5, v{t0}")
    A(f"s_add_u32 s{T+17}, s{T+16}, {LDS_X}")
    A(f"v_add_u32 v{XW}, s{T+17}, v{t0}")
    A(f"v_bfe_u32 v{t0}, v{ln}, 5, 1")
    A(f"v_lshlrev_b32 v{t0}, 4, v{t0}")
    A(f"v_bfe_u32 v{t1}, v{ln}, 4, 1")
    A(f"v_lshl_add_u32 v{t0}, v{t1}, 2, v{t0}")
    A(f"v_lshrrev_b32 v{t2}, 2, v{n_}")
    A(f"v_add_u32 v{t0}, v{t0}, v{t2}")
    A(f"v_and_b32 v{t2}, 3, v{ln}")
    A(f"v_xor_b32 v{t2}, v{t2}, v{t1}")
    A(f"v_lshlrev_b32 v{t2}, 3, v{t2}")
    A(f"v_lshl_add_u32 v{t0}, v{t0}, 5, v{t2}")
    A(f"v_add_u32 v{XR0}, {LDS_X}, v{t0}")
    A(f"v_xor_b32 v{t0}, 16, v{t0}")
    A(f"v_add_u32 v{XR1}, {LDS_X + 256}, v{t0}")
    A(f"v_lshrrev_b32 v{t0}, 2, v{n_}")
    A(f"v_and_b32 v{t1}, 1, v{n_}")
    A(f"v_lshl_add_u32 v{t0}, v{t0}, 1, v{t1}")
    A(f"v_mul_u32_u24 v{t1}, {OS}, v{t0}")
    A(f"v_lshl_add_u32 v{t2}, v{g_}, 3, v{t1}")
    A(f"s_lshl_b32 s{T+17}, s{S_WAVE}, 6")
    A(f"s_add_u32 s{T+17}, s{T+17}, {LDS_O}")
    A(f"v_add_u32 v{OW}, s{T+17}, v{t2}")
    A(f"v_bfe_u32 v{t3}, v{ln}, 1, 1")
    A(f"v_cmp_eq_u32 vcc, 0, v{t3}")
    A(f"v_lshlrev_b32 v{t3}, 2, v{ln}")
    A(f"v_add_u32 v{t3}, {LDS_MISC + 64}, v{t3}")
    A(f"v_and_b32 v{t3}, -8, v{t3}")
    A(f"v_cndmask_b32 v{OW}, v{OW}, v{t3}, vcc")
    A(f"v_lshl_add_u32 v{t2}, v{g_}, 5, v{t1}")
    A(f"v_bfe_u32 v{t3}, v{ln}, 1, 1")
    A(f"v_lshl_add_u32 v{t2}, v{t3}, 4, v{t2}")
    A(f"v_add_u32 v{OR_}, {LDS_O}, v{t2}")
    M0A = RA + 12
    A(f"v_lshlrev_b32 v{t0}, 10, v{t0}")
    A(f"v_lshl_add_u32 v{t0}, v{g_}, 5, v{t0}")
    A(f"v_lshl_add_u32 v{t0}, v{t3}, 4, v{t0}")
    A(f"s_lshl_b32 s{T+17}, s{S_WAVE}, 7")
    A(f"v_add_u32 v{M0A}, s{T+17}, v{t0}")
    A(f"v_lshlrev_b32 v{t0}, 13, v{g_}")
    A(f"v_lshl_add_u32 v{t0}, v{n_}, 4, v{t0}")
    A(f"s_lshl_b32 s{T+17}, s{S_WAVE}, 15")
    A(f"s_lshl_b32 s{T+18}, s{S_RANK}, 8")
    A(f"s_add_u32 s{T+17}, s{T+17}, s{T+18}")
    A(f"v_add_u32 v{PST}, s{T+17}, v{t0}")
    A(f"v_and_b32 v{t0}, 7, v{ln}")
    A(f"v_lshlrev_b32 v{t0}, 5, v{t0}")
    A(f"v_lshl_add_u32 v{t0}, v{g_}, 3, v{t0}")
    A(f"s_lshl_b32 s{T+17}, s{S_RANK}, 8")
    A(f"v_add_u32 v{QST}, s{T+17}, v{t0}")
    A(f"v_lshrrev_b32 v{t0}, 2, v{n_}")
    A(f"v_lshlrev_b32 v{t0}, 8, v{t0}")
    A(f"v_lshl_add_u32 v{t0}, v{g_}, 6, v{t0}")
    A(f"v_and_b32 v{t1}, 1, v{ln}")
    A(f"v_lshl_add_u32 v{t0}, v{t1}, 5, v{t0}")
    A(f"v_bfe_u32 v{t1}, v{ln}, 1, 1")
    A(f"v_lshl_add_u32 v{t0}, v{t1}, 4, v{t0}")
    A(f"v_add_u32 v{QLD}, s{T+16}, v{t0}")
    def base(dst, off_const, sreg=None, shift=0):
        A(f"s_add_u32 s{dst}, s{S_WS}, {off_const}")
        A(f"s_addc_u32 s{dst+1}, s{S_WS+1}, 0")
        if sreg is not None:
            A(f"s_lshl_b32 s{T+17}, s{sreg}, {shift}")
            A(f"s_add_u32 s{dst}, s{dst}, s{T+17}")
            A(f"s_addc_u32 s{dst+1}, s{dst+1}, 0")
    base(S_P0, P_OFF); base(S_P1, P_OFF + 0x20000)
    base(S_PL0, P_OFF, S_RANK, 13); base(S_PL1, P_OFF + 4096, S_RANK, 13)
    base(S_Q0, Q_OFF); base(S_Q1, Q_OFF + 4096)
    base(S_KX, REC_OFF + R_KX, S_RANK, 21); base(S_VX, REC_OFF + R_VX, S_RANK, 21)
    base(S_KM, REC_OFF + R_KM, S_RANK, 21); base(S_VM, REC_OFF + R_VM, S_RANK, 21)
    A(f"s_lshl_b32 s{T+18}, s{S_RANK}, 9")
    A(f"s_add_u32 s{T+18}, s{T+18}, s{S_WAVE}")
    base(S_KMF, KMFLAG, T + 18, 2)
    base(S_KVF, QKVFLAG, S_RANK, 7)
    A(f"s_lshl_b32 s{T+17}, s{S_WAVE}, 11")
    for b in (S_KX, S_VX):
        A(f"s_add_u32 s{b}, s{b}, s{T+17}"); A(f"s_addc_u32 s{b+1}, s{b+1}, 0")
    A(f"s_lshl_b32 s{T+17}, s{S_WAVE}, 10")
    A(f"s_add_u32 s{S_KM}, s{S_KM}, s{T+17}"); A(f"s_addc_u32 s{S_KM+1}, s{S_KM+1}, 0")
    A(f"v_add_u32 v{WL}, s{T+10}, v{L16}")
    A(f"v_lshlrev_b32 v{SPARE}, 1, v{L16}")
    A(f"v_add_u32 v{SPARE}, {2*REC_SZ}, v{SPARE}")
    A(f"v_and_b32 v{t0}, 7, v{ln}")
    for i in range(4):
        A(f"v_cmp_eq_u32 vcc, {2*i}, v{t0}")
        A(f"v_mov_b32 v{t1}, 0x3f80")
        A(f"v_cndmask_b32 v{RB+4+i}, 0, v{t1}, vcc")
        A(f"v_cmp_eq_u32 vcc, {2*i+1}, v{t0}")
        A(f"v_mov_b32 v{t1}, 0x3f800000")
        A(f"v_cndmask_b32 v{RB+4+i}, v{RB+4+i}, v{t1}, vcc")
    A(f"ds_write_b128 v{L16}, v[{RB+4}:{RB+7}] offset:{LDS_SEL}")
    A(f"s_lshl_b32 s{T+17}, s{S_WAVE}, 10")
    A(f"s_add_u32 s{S_VM}, s{S_VM}, s{T+17}"); A(f"s_addc_u32 s{S_VM+1}, s{S_VM+1}, 0")
    cval = np_f32_bits(128 ** -0.5 * math.log2(math.e))
    A(f"s_mov_b32 s{S_C}, {cval:#x}"); A(f"s_mov_b32 s{S_C+1}, {cval:#x}")
    A(f"s_mov_b32 s{S_QMASK}, 0x00ff00ff"); A(f"s_mov_b32 s{S_QMASK+1}, 0x00ff00ff")
    Z = RB
    for i in range(4): A(f"v_mov_b32 v{Z+i}, 0")
    A(f"global_store_dwordx4 v{MEMW}, v[{Z}:{Z+3}], s[{S_PL0}:{S_PL0+1}]")
    A(f"global_store_dwordx4 v{MEMW}, v[{Z}:{Z+3}], s[{S_PL1}:{S_PL1+1}]")
    A(f"global_store_dwordx2 v{QST}, v[{Z}:{Z+1}], s[{S_Q0}:{S_Q0+1}]")
    NX = 3
    for i in range(24):
        newer = 4 * 7 + (NX if i < 8 else 0)
        A(f"s_waitcnt vmcnt({newer})")
        p = order[i]
        tr_octet(A, OCT[(p, 0)], i % 8, 0)
        tr_octet(A, OCT[(p, 1)], i % 8, 1)
        A("s_waitcnt lgkmcnt(0)")
        dma_piece(order[i + 8], i % 8)
        if i == 8:
            A(f"v_mov_b32 v{t0}, 1"); A(f"v_mov_b32 v{t1}, {DBG_TINIT * 4}")
            A("s_mov_b64 exec, 1")
            A(f"global_atomic_add v{t1}, v{t0}, s[{S_DBG}:{S_DBG+1}]")
            A("s_mov_b64 exec, -1")
            NXA = 1
    if not standalone:
        gen_wait_flag(A, S_KVF, 0, 1, fail_label, t0, t1)
    A(f"s_lshl_b32 s{T+17}, s{S_WAVE}, 11")
    A(f"s_add_u32 s{S_KXB}, s{T+17}, {LDS_KX}")
    A(f"s_mov_b32 m0, s{S_KXB}")
    A("s_nop 0")
    A(f"global_load_lds_dwordx4 v{L16}, s[{S_KX}:{S_KX+1}] sc1")
    A(f"global_load_lds_dwordx4 v{L16}, s[{S_KX}:{S_KX+1}] offset:1024 sc1")
    A(f"global_load_dwordx4 v[{RF}:{RF+3}], v{L16}, s[{S_VX}:{S_VX+1}] sc1")
    A(f"global_load_dwordx4 v[{RF+4}:{RF+7}], v{L16}, s[{S_VX}:{S_VX+1}] offset:1024 sc1")
    A(f"global_load_dwordx4 v[{RC}:{RC+3}], v{M0A}, s[{T+8}:{T+9}]")
    A(f"global_load_dwordx4 v[{RC+4}:{RC+7}], v{M0A}, s[{T+8}:{T+9}] offset:512")
    for i in range(8):
        A(f"s_waitcnt vmcnt({4*(7-i)+6})")
        tr_octet(A, ("v", RB), i, 0); tr_octet(A, ("v", RB + 8), i, 1)
        A("s_waitcnt lgkmcnt(0)")
        for r in range(4): A(f"ds_write_b128 v{WL}, v[{RB+4*r}:{RB+4*r+3}] offset:{i*4096 + r*1024}")
    gen_wait_flag(A, S_DBG, DBG_TINIT * 4, 128, fail_label, t0, t1)
    A("s_waitcnt vmcnt(0) lgkmcnt(0)")
    for i in range(4):
        A(f"v_mov_b32 v{RA+i}, v{RC+i}"); A(f"v_mov_b32 v{RA+16+i}, v{RC+4+i}")
    A(f"s_mov_b32 s{S_STEP}, 0")
    A(f"s_mov_b32 s{S_SPIN}, 0")
    A(f"s_mov_b32 s{S_TAG}, 0")
    A(f"s_mov_b32 s{S_CKM}, 0")
    A(f"s_mov_b32 s{S_VMI}, 0")
    def wl(dst, p, t, r):
        return f"ds_read_b128 v[{dst+4*r}:{dst+4*r+3}], v{WL} offset:{LSLOT[p]*4096 + t*2048 + r*1024}"
    def wl2(dst, p, t): return [wl(dst, p, t, 0), wl(dst, p, t, 1)]
    def prefetch_qk():
        for d, p, t in ((RB, ("q", 1), 0), (RB + 8, ("k", 1), 0), (RB + 16, ("q", 2), 0), (RB + 24, ("k", 2), 0), (RE, ("q", 3), 0), (RE + 8, ("q", 1), 1)):
            for x in wl2(d, p, t): A(x)
    def zero_acc():
        for i in range(0, 16, 2): A(f"v_mov_b64 v[{RC+i}:{RC+i+1}], 0")
        for i in range(0, 8, 2): A(f"v_mov_b64 v[{RD+i}:{RD+i+1}], 0")
    prefetch_qk(); zero_acc()
    if timing:
        A(f"s_memtime s[{S_T0}:{S_T0+1}]"); A("s_waitcnt lgkmcnt(0)")
        for k in range(NST): A(f"s_mov_b32 s{80+k}, 0"); A(f"s_mov_b64 s[{64+2*k}:{65+2*k}], s[{S_T0}:{S_T0+1}]")
        A("s_mov_b32 s88, 0")
    A("s_barrier")
    LOOP = A.newlabel("Lteam"); FIN = A.newlabel("Lfin")
    ENTER = A.newlabel("Lent"); RETRY = A.newlabel("Lretry")
    CK, CK2 = RA + 12, RA + 13
    VP = RF
    A(f"s_branch {ENTER}")
    A.label(RETRY)
    A("s_nop 5")
    for r in (RC, RC + 2, RC + 4, RC + 6): A(f"v_mov_b64 v[{r}:{r+1}], 0")
    A(f"s_add_u32 s{S_SPIN}, s{S_SPIN}, 1"); A(f"s_cmp_gt_u32 s{S_SPIN}, 200000"); A(f"s_cbranch_scc1 {fail_label}")
    A.raw(".p2align 3")
    A.label(LOOP)
    A(f"global_load_dwordx4 v[{RA}:{RA+3}], v{QLD}, s[{S_Q0}:{S_Q0+1}] sc1")
    A(f"global_load_dwordx4 v[{RA+16}:{RA+19}], v{QLD}, s[{S_Q1}:{S_Q1+1}] sc1")
    A(f"s_waitcnt vmcnt({2*(qdepth-1)})")
    A.label(ENTER)
    QA = {0: RC + 4, 1: RC + 12}; KAa = {0: RC, 1: RC + 8}
    def wsrc(mat, slot, t):
        p = (mat, slot)
        if p in LSLOT:
            m = {(("q", 1), 0): RB, (("k", 1), 0): RB + 8, (("q", 2), 0): RB + 16, (("k", 2), 0): RB + 24, (("q", 3), 0): RE, (("q", 1), 1): RE + 8,
                 (("k", 1), 1): RB, (("q", 2), 1): RB + 8, (("k", 2), 1): RB + 16, (("q", 3), 1): RB + 24}
            return v(m[(p, t)], 8)
        pre, b = OCT[(p, t)]
        return rng(pre, b, 8)
    def smf(acc, slot, src):
        A(f"v_smfmac_f32_16x16x64_bf16 v[{acc}:{acc+3}], v[{RA+4*slot}:{RA+4*slot+3}], {src}, v{IDX}")
    def qk(mat, slot, t, *extra):
        smf((QA if mat == "q" else KAa)[t], slot, wsrc(mat, slot, t))
        for x in extra: A(x)
    vlist = [(sl, t) for sl in range(8) for t in range(2)]
    def vv(n, *extra):
        ex = list(extra)
        for _ in range(n):
            sl, t = vlist.pop(0)
            smf(RD + 4 * t, sl, wsrc("v", sl, t))
            if ex: A(ex.pop(0))
        for x in ex: A(x)
    def mr(i): return f"ds_read_b128 v[{RA+4*i}:{RA+4*i+3}], v{MR1+(i&3)-1} offset:{LDS_MEM + (i>>2)*4096}"
    def add(d, x, y): return f"v_add_f32 v{d}, v{x}, v{y}"
    def cvt(d, x): return f"v_cvt_pk_bf16_f32 v{d}, v{x}, v{x+1}"
    A(f"v_bitop3_b32 v{CK}, v{RA}, v{RA+2}, s{S_TAG} bitop3:0x7e")
    A(f"ds_write_b128 v{MEMW}, v[{RA}:{RA+3}] offset:{LDS_MEM}")
    qk("q", 0, 0, f"v_bitop3_b32 v{CK2}, v{RA+16}, v{RA+18}, s{S_TAG} bitop3:0x7e", f"ds_write_b128 v{MEMW}, v[{RA+16}:{RA+19}] offset:{LDS_MEM + 4096}",
       f"v_or_b32 v{CK}, v{CK}, v{CK2}", f"v_and_b32 v{CK}, s{S_CKM}, v{CK}")
    qk("k", 0, 0, f"v_cmp_ne_u32 vcc, 0, v{CK}", f"s_cbranch_vccnz {RETRY}")
    if timing == 2: A('s_memtime s[90:91]')
    if timing: A(f"s_lshl_b32 s96, s{S_SPIN}, 16"); A("s_add_u32 s80, s80, s96")
    A("s_waitcnt lgkmcnt(0)")
    accum()
    A("s_barrier")
    A(mr(1))
    qk("q", 0, 1, mr(2))
    qk("k", 0, 1, mr(3))
    qk("q", 4, 0, mr(5), f"s_xor_b32 s{S_TAG}, s{S_TAG}, 1", f"s_mov_b32 s{S_CKM}, 1"); qk("k", 4, 0, mr(6)); qk("q", 4, 1, mr(7))
    qk("k", 4, 1, f"s_add_u32 s{S_KX}, s{S_KX}, {REC_SZ}", f"s_addc_u32 s{S_KX+1}, s{S_KX+1}, 0", "s_waitcnt lgkmcnt(5)")
    qk("q", 1, 0, wl(RB, ("k", 1), 1, 0))
    qk("k", 1, 0, wl(RB, ("k", 1), 1, 1), "s_waitcnt lgkmcnt(6)")
    qk("q", 2, 0, wl(RB + 8, ("q", 2), 1, 0), f"s_xor_b32 m0, s{S_KXB}, 0x6000")
    qk("k", 2, 0, wl(RB + 8, ("q", 2), 1, 1), "s_waitcnt lgkmcnt(7)")
    qk("q", 3, 0, wl(RB + 16, ("k", 2), 1, 0))
    qk("k", 3, 0, wl(RB + 16, ("k", 2), 1, 1), "s_waitcnt lgkmcnt(6)")
    qk("q", 5, 0, wl(RB + 24, ("q", 3), 1, 0))
    qk("k", 5, 0, wl(RB + 24, ("q", 3), 1, 1))
    kvops = [] if nokv else [f"global_load_lds_dwordx4 v{L16}, s[{S_KX}:{S_KX+1}] sc1", f"global_load_lds_dwordx4 v{L16}, s[{S_KX}:{S_KX+1}] offset:1024 sc1",
             f"s_mov_b32 m0, {LDS_MISC + 64}\ns_nop 0\nglobal_load_lds_dword v{SPARE}, s[{S_VX}:{S_VX+1}] sc1"]
    kvops += [None] * 3
    qk("q", 6, 0, *[x for x in kvops[0:1] if x]); qk("k", 6, 0, *[x for x in kvops[1:2] if x]); qk("q", 7, 0, *[x for x in kvops[2:3] if x])
    qk("k", 7, 0, f"s_and_b32 s{T}, s{S_KXB}, 0x6000")
    PK = RE
    KXA = RE + 6
    def kx(i): return f"ds_read_b128 v[{RB+4*i}:{RB+4*i+3}], v{KXA} offset:{i*1024}"
    qk("q", 1, 1, f"v_add_u32 v{KXA}, s{T}, v{L16}", "s_waitcnt lgkmcnt(0)")
    qk("k", 1, 1, f"s_add_u32 s{S_VX}, s{S_VX}, {REC_SZ}", f"s_addc_u32 s{S_VX+1}, s{S_VX+1}, 0")
    qk("q", 2, 1, kx(0), add(KAa[0], KAa[0], KAa[0] + 2))
    qk("k", 2, 1, kx(1), add(KAa[0] + 1, KAa[0] + 1, KAa[0] + 3))
    qk("q", 3, 1, kx(2), add(QA[0], QA[0], QA[0] + 2))
    qk("k", 3, 1, kx(3), add(QA[0] + 1, QA[0] + 1, QA[0] + 3))
    qk("q", 5, 1, kx(4), cvt(PK, KAa[0]))
    qk("k", 5, 1, kx(5), cvt(PK + 1, QA[0]))
    qk("q", 6, 1, f"ds_write_b64 v{XW}, v[{PK}:{PK+1}]")
    qk("k", 6, 1, kx(6))
    qk("q", 7, 1, kx(7))
    qk("k", 7, 1)
    vv(vsplit[0])
    A(add(QA[1], QA[1], QA[1] + 2)); A(add(QA[1] + 1, QA[1] + 1, QA[1] + 3))
    A(add(KAa[1], KAa[1], KAa[1] + 2)); A(add(KAa[1] + 1, KAa[1] + 1, KAa[1] + 3))
    A(cvt(PK + 3, QA[1])); A(cvt(PK + 2, KAa[1]))
    A(f"ds_write_b64 v{XW}, v[{PK+2}:{PK+3}] offset:512")
    ex = []
    if not (nopub & 4): ex.append(f"global_store_dwordx4 v{L16}, v[{PK}:{PK+3}], s[{S_KM}:{S_KM+1}] sc1")
    vv(vsplit[1], *ex)
    stamp(1)
    A("s_waitcnt lgkmcnt(0)")
    A("s_barrier")
    xr = []
    for kb in range(4):
        xr.append(f"ds_read_b64_tr_b16 v[{RE+4*kb}:{RE+4*kb+1}], v{XR0} offset:{kb*1024}")
        xr.append(f"ds_read_b64_tr_b16 v[{RE+4*kb+2}:{RE+4*kb+3}], v{XR1} offset:{kb*1024}")
    for x in xr: A(x)
    ex = []
    if not (nopub & 2): ex.append(f"s_mov_b64 exec, 1\nglobal_store_dword v{L16}, v{IDX}, s[{S_KMF}:{S_KMF+1}] sc1\ns_mov_b64 exec, -1")
    vv(vsplit[2], *ex)
    A(f"s_cmp_eq_u32 s{S_STEP}, {nsteps-1}"); A(f"s_cbranch_scc1 {FIN}")
    vrest = list(vlist)
    S0, S1, S2 = RC, RC + 4, RC + 8
    def mf(d, a_, b_, first, *extra):
        A(f"v_mfma_f32_16x16x32_bf16 v[{d}:{d+3}], v[{a_}:{a_+3}], v[{b_}:{b_+3}], " + ("0" if first else f"v[{d}:{d+3}]"))
        for x in extra: A(x)
    for kb in range(4):
        A(f"s_waitcnt lgkmcnt({6-2*kb})")
        mf(S0, RE + 4 * kb, RE + 4 * kb, kb == 0)
    for kb in range(4): mf(S1, RB + 4 * kb, RE + 4 * kb, kb == 0)
    M_, T_, R_ = RC + 12, RC + 13, RC + 14
    ONES, SUM = RB, RB + 4
    def z2(r): return f"v_mov_b64 v[{r}:{r+1}], 0"
    g2 = [[f"v_mov_b32 v{ONES}, 0x3f803f80", f"v_mov_b32 v{ONES+1}, 0x3f803f80"], [f"v_mov_b32 v{ONES+2}, 0x3f803f80", f"v_mov_b32 v{ONES+3}, 0x3f803f80"],
          [z2(RB + 8), z2(RB + 10)], [z2(RB + 12), f"v_max3_f32 v{M_}, v{S0}, v{S0+1}, v{S1}"]]
    for kb in range(4): mf(S2, RB + 16 + 4 * kb, RE + 4 * kb, kb == 0, *g2[kb])
    stamp(2)
    vv(vsplit[3], f"v_max3_f32 v{M_}, v{M_}, v{S1+1}, v{S1+2}", z2(RB + 14), z2(RB + 16), z2(RB + 18))
    assert not vlist
    A(f"v_max3_f32 v{M_}, v{M_}, v{S1+3}, v{S2}")
    A(f"v_max3_f32 v{M_}, v{M_}, v{S2+1}, v{S2+2}")
    A(f"v_max_f32 v{T_}, v{M_}, v{S2+3}")
    A(f"v_max_f32 v{M_}, v{M_}, v{S2+3}")
    A(wl(RA, ("o", 1, 0, 0), 0, 0)); A(wl(RA, ("o", 1, 0, 0), 0, 1))
    A(f"v_permlane32_swap_b32 v{M_}, v{T_}")
    A(f"v_max_f32 v{R_}, v{M_}, v{T_}")
    A(f"v_max_f32 v{M_}, v{M_}, v{T_}")
    A(cvt(RD, RD)); A(cvt(RD + 1, RD + 2))
    A(f"v_permlane16_swap_b32 v{M_}, v{R_}")
    A(f"v_max_f32 v{M_}, v{M_}, v{R_}")
    A(f"v_mul_f32 v{M_}, s{S_C}, v{M_}")
    for r in (S1, S1 + 2, S2, S2 + 2, S0):
        A(f"v_pk_fma_f32 v[{r}:{r+1}], v[{r}:{r+1}], s[{S_C}:{S_C+1}], v[{M_}:{M_+1}] op_sel_hi:[1,0,0] neg_lo:[0,0,1] neg_hi:[0,0,1]")
    PX, PM = RE, RE + 4
    for r in (S1, S1 + 1, S1 + 2, S1 + 3, S2, S2 + 1, S2 + 2, S2 + 3): A(f"v_exp_f32 v{r}, v{r}")
    A(cvt(PX, S1)); A(cvt(PX + 1, S1 + 2)); A(cvt(PX + 2, S2)); A(cvt(PX + 3, S2 + 2))
    OA = RE + 8
    A(f"v_exp_f32 v{S0}, v{S0}")
    A(f"v_exp_f32 v{S0+1}, v{S0+1}")
    mf(SUM, ONES, PX, True, cvt(RD + 2, RD + 4), cvt(PM, S0))
    mf(OA, RF, PX, True, cvt(PM + 1, S0), f"v_mov_b32 v{ONES+1}, 0")
    mf(OA + 4, RF + 4, PX, True, cvt(RD + 3, RD + 6), wl(RA + 8, ("o", 1, 0, 0), 1, 0))
    def mf16(d, a_, *extra):
        A(f"v_mfma_f32_16x16x16_bf16 v[{d}:{d+3}], v[{a_}:{a_+1}], v[{PM}:{PM+1}], v[{d}:{d+3}]")
        for x in extra: A(x)
    mf16(SUM, ONES, wl(RA + 8, ("o", 1, 0, 0), 1, 1), z2(RB + 20))
    mf16(OA, RD, wl(RA + 16, ("o", 1, 0, 1), 0, 0), z2(RB + 22))
    mf16(OA + 4, RD + 2, wl(RA + 16, ("o", 1, 0, 1), 0, 1))
    if not (nopub & 1): A(f"global_store_dwordx4 v{L16}, v[{RD}:{RD+3}], s[{S_VM}:{S_VM+1}] sc1")
    A(wl(RA + 24, ("o", 1, 0, 1), 1, 0)); A(wl(RA + 24, ("o", 1, 0, 1), 1, 1))
    A(f"v_rcp_f32 v{M_}, v{SUM}")
    if not nokv:
        A(f"global_load_dwordx4 v[{RF}:{RF+3}], v{L16}, s[{S_VX}:{S_VX+1}] sc1")
        A(f"global_load_dwordx4 v[{RF+4}:{RF+7}], v{L16}, s[{S_VX}:{S_VX+1}] offset:1024 sc1")
    for i in range(0, 4, 2):
        A(f"v_pk_mul_f32 v[{OA+i}:{OA+i+1}], v[{OA+i}:{OA+i+1}], v[{M_}:{M_+1}] op_sel_hi:[1,0]")
    A(cvt(OA, OA)); A(cvt(OA + 1, OA + 2))
    A(f"ds_write_b64 v{OW}, v[{OA}:{OA+1}]")
    for i in range(4, 8, 2):
        A(f"v_pk_mul_f32 v[{OA+i}:{OA+i+1}], v[{OA+i}:{OA+i+1}], v[{M_}:{M_+1}] op_sel_hi:[1,0]")
    A(cvt(OA + 2, OA + 4)); A(cvt(OA + 3, OA + 6))
    A(f"ds_write_b64 v{OW}, v[{OA+2}:{OA+3}] offset:32")
    stamp(3)
    for r in (RB, RB + 2, RB + 4, RB + 6): A(z2(r))
    A("s_waitcnt lgkmcnt(0)")
    A("s_barrier")
    OP = RE
    A(f"ds_read_b128 v[{OP}:{OP+3}], v{OR_}")
    A(f"ds_read_b128 v[{OP+4}:{OP+7}], v{OR_} offset:128")
    for x in wl2(RC, ("o", 1, 1, 0), 0) + wl2(RC + 8, ("o", 1, 1, 0), 1): A(x)
    for i in range(24, 32, 2): A(f"v_mov_b64 v[{RB+i}:{RB+i+1}], 0")
    def osrc(u, j, i):
        p = ("o", u, j, i >> 1); t = i & 1
        if p in LSLOT:
            m = {(("o", 1, 0, 0), 0): RA, (("o", 1, 0, 0), 1): RA + 8, (("o", 1, 0, 1), 0): RA + 16, (("o", 1, 0, 1), 1): RA + 24,
                 (("o", 1, 1, 0), 0): RC, (("o", 1, 1, 0), 1): RC + 8}
            return v(m[(p, t)], 8)
        pre, b = OCT[(p, t)]
        return rng(pre, b, 8)
    def wo(u, j, i, *extra):
        acc = RB + 16 * u + 4 * i
        A(f"v_smfmac_f32_16x16x64_bf16 v[{acc}:{acc+3}], v[{OP+4*j}:{OP+4*j+3}], {osrc(u, j, i)}, v{IDX}")
        for x in extra: A(x)
    PS = RE + 8
    def f0(u, i): acc = RB + 16 * u + 4 * i; return add(acc, acc, acc + 2)
    def f1(u, i): acc = RB + 16 * u + 4 * i; return add(acc + 1, acc + 1, acc + 3)
    def pack(u, i): return cvt(PS + 4 * u + i, RB + 16 * u + 4 * i)
    tag0 = f"v_and_or_b32 v{PS}, v{PS}, -2, s{S_TAG}"; tag1 = f"v_and_or_b32 v{PS+4}, v{PS+4}, -2, s{S_TAG}"
    st0 = f"global_store_dwordx4 v{PST}, v[{PS}:{PS+3}], s[{S_P0}:{S_P0+1}]"; st1 = f"global_store_dwordx4 v{PST}, v[{PS+4}:{PS+7}], s[{S_P1}:{S_P1+1}]"
    if wov == 0:
        A("s_waitcnt lgkmcnt(5)")
        for i in range(4): wo(0, 0, i)
        A("s_waitcnt lgkmcnt(4)")
        for i in range(4): wo(0, 1, i)
        wo(1, 0, 0, f0(0, 0)); wo(1, 0, 1, f1(0, 0), f0(0, 1)); wo(1, 0, 2, f1(0, 1), f0(0, 2)); wo(1, 0, 3, f1(0, 2), f0(0, 3), "s_waitcnt lgkmcnt(0)")
        wo(1, 1, 0, f1(0, 3), pack(0, 0)); wo(1, 1, 1, pack(0, 1), pack(0, 2))
        wo(1, 1, 2, pack(0, 3), tag0)
        wo(1, 1, 3, st0)
        for x in (f0(1, 0), f1(1, 0), pack(1, 0), f0(1, 1), f1(1, 1), tag1, pack(1, 1), f0(1, 2), f1(1, 2), pack(1, 2), f0(1, 3), f1(1, 3), pack(1, 3)): A(x)
        A(st1)
    else:
        A("s_waitcnt lgkmcnt(4)")
        wo(0, 0, 0); wo(0, 1, 0); wo(0, 0, 1); wo(0, 1, 1); wo(0, 0, 2); wo(0, 1, 2)
        wo(0, 0, 3, f0(0, 0), f1(0, 0)); wo(0, 1, 3, pack(0, 0), f0(0, 1))
        wo(1, 0, 2, f1(0, 1), pack(0, 1), tag0); wo(1, 1, 2, f0(0, 2), f1(0, 2))
        wo(1, 0, 3, pack(0, 2), f0(0, 3)); wo(1, 1, 3, f1(0, 3), pack(0, 3), st0, "s_waitcnt lgkmcnt(0)")
        wo(1, 0, 0, f0(1, 2)); wo(1, 1, 0, f1(1, 2), pack(1, 2))
        wo(1, 0, 1, f0(1, 3), f1(1, 3)); wo(1, 1, 1, pack(1, 3))
        for x in (f0(1, 0), f1(1, 0), pack(1, 0), tag1, f0(1, 1), f1(1, 1), pack(1, 1)): A(x)
        A(st1)
    stamp(4)
    NOTRED = A.newlabel("Lnr")
    A(f"s_cmp_lg_u32 s{S_WAVE}, 0"); A(f"s_cbranch_scc1 {NOTRED}")
    SEL, DR = RA + 4, RA + 8
    A(f"ds_read_b128 v[{SEL}:{SEL+3}], v{L16} offset:{LDS_SEL}")
    for i in range(d1): A("s_nop 7")
    A(f"s_mov_b32 s{S_SPIN}, 0")
    def ploads():
        for u in range(8):
            b = S_PL0 if u < 4 else S_PL1
            A(f"global_load_dwordx4 v[{RB+4*u}:{RB+4*u+3}], v{L16}, s[{b}:{b+1}] offset:{(u%4)*1024} sc1")
    for _ in range(pdepth - 1): ploads()
    PP = A.newlabel("Lp")
    A.label(PP)
    stamp(5)
    ploads()
    A(f"s_add_u32 s{S_SPIN}, s{S_SPIN}, 1"); A(f"s_cmp_gt_u32 s{S_SPIN}, 200000"); A(f"s_cbranch_scc1 {fail_label}")
    A("s_waitcnt lgkmcnt(0)")
    for u in range(0, 8, 2):
        A(f"s_waitcnt vmcnt({8*pdepth-2-u})")
        A(f"v_bitop3_b32 v{CK2 if u > 1 else CK}, v{RB+4*u}, v{RB+4*u+4}, s{S_TAG} bitop3:0x7e")
        mf(DR, RB + 4 * u, SEL, u == 0)
        if u > 1: A(f"v_or_b32 v{CK}, v{CK}, v{CK2}")
        mf(DR, RB + 4 * u + 4, SEL, False)
    A(f"v_and_b32 v{CK}, 1, v{CK}")
    A(f"v_cmp_ne_u32 vcc, 0, v{CK}")
    A(f"s_cbranch_vccnz {PP}")
    if timing: A(f"s_add_u32 s80, s80, s{S_SPIN}")
    A(cvt(DR, DR)); A(cvt(DR + 1, DR + 2))
    A(f"v_and_or_b32 v{DR}, v{DR}, -2, s{S_TAG}")
    if qmask: A(f"s_mov_b64 exec, s[{S_QMASK}:{S_QMASK+1}]")
    A(f"global_store_dwordx2 v{QST}, v[{DR}:{DR+1}], s[{S_Q0}:{S_Q0+1}]")
    if qmask: A("s_mov_b64 exec, -1")
    stamp(6)
    A("s_barrier")
    def tailwork():
        prefetch_qk()
        zero_acc()
        A(f"s_xor_b32 s{S_KXB}, s{S_KXB}, 0x6000")
        A(f"s_add_u32 s{S_STEP}, s{S_STEP}, 1")
        A(f"s_add_u32 s{S_KM}, s{S_KM}, {REC_SZ}"); A(f"s_addc_u32 s{S_KM+1}, s{S_KM+1}, 0")
        A(f"s_add_u32 s{S_KMF}, s{S_KMF}, 16"); A(f"s_addc_u32 s{S_KMF+1}, s{S_KMF+1}, 0")
        A(f"s_add_u32 s{S_VM}, s{S_VM}, {REC_SZ}"); A(f"s_addc_u32 s{S_VM+1}, s{S_VM+1}, 0")
        A(f"s_mov_b32 s{S_SPIN}, 0")
    def qpre():
        for _ in range(qdepth - 1):
            A(f"global_load_dwordx4 v[{RA}:{RA+3}], v{QLD}, s[{S_Q0}:{S_Q0+1}] sc1")
            A(f"global_load_dwordx4 v[{RA+16}:{RA+19}], v{QLD}, s[{S_Q1}:{S_Q1+1}] sc1")
            for _ in range(qgap): A("s_nop 7")
    if pdepth > 1: A("s_waitcnt vmcnt(1)")
    tailwork()
    for i in range(d3): A("s_nop 7")
    stamp(7)
    qpre()
    A(f"s_branch {LOOP}")
    A.label(NOTRED)
    stamp(5)
    tailwork()
    A("s_barrier")
    stamp(6)
    for i in range(d2): A("s_nop 7")
    stamp(7)
    qpre()
    A(f"s_branch {LOOP}")
    A.label(FIN)
    vlist.extend(vrest); vv(len(vrest))
    A("s_nop 7")
    for x in (cvt(RD, RD), cvt(RD + 1, RD + 2), cvt(RD + 2, RD + 4), cvt(RD + 3, RD + 6)): A(x)
    A(f"global_store_dwordx4 v{L16}, v[{RD}:{RD+3}], s[{S_VM}:{S_VM+1}] sc1")
    A("s_waitcnt vmcnt(0)")
    A("s_mov_b64 exec, 1")
    A(f"global_store_dword v{L16}, v{IDX}, s[{S_KMF}:{S_KMF+1}] offset:16 sc1")
    A("s_mov_b64 exec, -1")
    if timing:
        A(f"s_memtime s[{T}:{T+1}]"); A("s_waitcnt lgkmcnt(0)")
        A(f"s_sub_u32 s{T}, s{T}, s{S_T0}")
        A(f"v_mov_b32 v{RD}, s{T}")
        A(f"s_lshl_b32 s{T+2}, s{S_RANK}, 2")
        A(f"s_add_u32 s{T+2}, s{T+2}, {DBG_TIME*4}")
        A(f"v_mov_b32 v{RD+1}, s{T+2}")
        A("s_mov_b64 exec, 1")
        A(f"global_store_dword v{RD+1}, v{RD}, s[{S_DBG}:{S_DBG+1}]")
        LT = A.newlabel("Lt")
        A(f"s_cmp_lg_u32 s{S_RANK}, 5"); A(f"s_cbranch_scc1 {LT}")
        for k in range(12): A(f"v_mov_b32 v{RB+k}, s{80+k}")
        A(f"s_lshl_b32 s{T+2}, s{S_WAVE}, 6")
        A(f"s_add_u32 s{T+2}, s{T+2}, {TST_OFF + tslot*256}")
        A(f"v_mov_b32 v{RD+1}, s{T+2}")
        A(f"global_store_dwordx4 v{RD+1}, v[{RB}:{RB+3}], s[{S_WS}:{S_WS+1}]")
        A(f"global_store_dwordx4 v{RD+1}, v[{RB+4}:{RB+7}], s[{S_WS}:{S_WS+1}] offset:16")
        A(f"global_store_dwordx4 v{RD+1}, v[{RB+8}:{RB+11}], s[{S_WS}:{S_WS+1}] offset:32")
        A.label(LT)
    A("s_waitcnt vmcnt(0)")
    A(f"s_branch {done_label}")

def np_f32_bits(x):
    import struct
    return struct.unpack("<I", struct.pack("<f", x))[0]

def gen_wait_flag(A, sbase, off, expect, fail_label, t0, t1):
    L = A.newlabel("Lw")
    A(f"s_mov_b32 s{S_SPIN}, 0")
    A(f"v_mov_b32 v{t1}, {off}")
    A.label(L)
    A(f"global_load_dword v{t0}, v{t1}, s[{sbase}:{sbase+1}] sc1")
    A(f"s_add_u32 s{S_SPIN}, s{S_SPIN}, 1"); A(f"s_cmp_gt_u32 s{S_SPIN}, 400000"); A(f"s_cbranch_scc1 {fail_label}")
    A("s_waitcnt vmcnt(0)")
    A(f"v_cmp_gt_u32 vcc, {expect}, v{t0}") if expect <= 64 else (A(f"v_cmp_gt_u32 vcc, {expect:#x}, v{t0}"))
    A(f"s_cbranch_vccnz {L}")
```

```python
import sys
from asm import *
from layout import *
from team import *
from common import *
from pre import *
from qkv import *
from attn import gen_attn
from rz import gen_red, gen_z
from go import gen_g, gen_o
K=[]
def mk(name, nwg, lds, body):
    A=Asm(); A.uid=1000*len(K)
    gen_entry(A,nwg,f"Ld_{name}")
    body(A, f"Lf_{name}", f"Ld_{name}")
    A(f"s_branch Ld_{name}")
    gen_fail(A,f"Lf_{name}")
    A.label(f"Ld_{name}"); A("s_waitcnt vmcnt(0)"); A("s_endpgm"); A.fix_hazards()
    K.append((name+"_kernel",nwg,lds,A))
mk("mod",96,16384,lambda A,f,d: gen_mod(A,2))
def b(A,f,d): A(f"s_lshl_b32 s3, s2, 2"); A(f"s_add_u32 s3, s3, s{S_WAVE}"); gen_ln1(A,3)
mk("ln1",64,0,b)
def b(A,f,d): A("s_lshr_b32 s3, s2, 5"); A(f"s_and_b32 s{S_RANK}, s2, 31"); gen_qkv_setup(A); gen_unit(A,3,S_RANK)
mk("qkv",256,163840,b)
def b(A,f,d):
    gen_formation(A,f,"Lteamgo",d); A.label("Lteamgo"); gen_team(A,f,d,standalone=True,d1=11,d2=5,d3=1,qdepth=3,qgap=2)
mk("team",256,163840,b)
def b(A,f,d): A("s_lshr_b32 s3, s2, 4"); A(f"s_and_b32 s{S_RANK}, s2, 15"); gen_attn(A,S_RANK,3,16,f,check=False)
mk("attn",256,163840,b)
def b(A,f,d): A("s_lshr_b32 s3, s2, 2"); A(f"s_and_b32 s{S_RANK}, s2, 3"); gen_red(A,S_RANK,3,64,f,check=False)
mk("red",256,1024,b)
def b(A,f,d): A("s_mul_hi_u32 s3, s2, 195225787"); A(f"s_mul_i32 s{S_RANK}, s3, 22"); A(f"s_sub_u32 s{S_RANK}, s2, s{S_RANK}"); gen_z(A,S_RANK,3,11,f,check=False)
mk("zz",242,163840,b)
def b(A,f,d): A("s_lshr_b32 s3, s2, 2"); A(f"s_and_b32 s{S_RANK}, s2, 3"); gen_g(A,3,S_RANK,f,check=False)
mk("gg",64,32768,b)
mk("oo",256,163840,lambda A,f,d: gen_o(A,2,f,check=False))
hdr="".join(f"; @launch kernel={n} grid=({g},1,1) block=(256,1,1) lds={l}\n" for n,g,l,_ in K)
txt=hdr+'.amdgcn_target "amdgcn-amd-amdhsa--gfx950"\n.text\n'+"".join(kernel_header(n)+A.text() for n,_,_,A in K)+'.section .rodata,"a"\n'+"".join(kernel_desc(n) for n,_,_,_ in K)
open(sys.argv[1] if len(sys.argv)>1 else "../dev/sep.s","w").write(txt)
```

```python
from asm import *
from layout import *
from team import S_WS, S_DBG, S_RANK, S_WAVE, S_T, S_SPIN, np_f32_bits
from pre import unpack
import math
L16, XW, XR0, XR1, OW, ORD, FA = 1, 2, 3, 4, 5, 6, 7
MK = 8
QF, KF, VF, KM, VM, XO = 16, 32, 64, 96, 112, 128
S0, S1, S2 = 144, 148, 152
M_, T_, R_ = 156, 157, 158
PX, PM = 160, 164
OA = 168
OB = 200
ACC = 64
PK = 216
LDS_X, LDS_O = 0x0, 0x4000
OSTR = 528
S_REC, S_PART, S_SEG, S_C, S_PF, S_KF, S_QF = 64, 66, 68, 70, 72, 74, 76

from flags import wait_flags, set_flag

def load_w32(A, sw, pitch_log2, nrows, dst_fn, lds_base_sreg, tmp):
    ln, a0, a1, src = tmp, tmp + 1, tmp + 2, tmp + 3
    TR = tmp + 4
    A(f"v_and_b32 v{ln}, 63, v0")
    A(f"v_lshrrev_b32 v{a0}, 5, v{ln}"); A(f"v_lshlrev_b32 v{a0}, 11, v{a0}")
    A(f"v_bfe_u32 v{a1}, v{ln}, 2, 2"); A(f"v_lshl_add_u32 v{a0}, v{a1}, 8, v{a0}")
    A(f"v_bfe_u32 v{src}, v{ln}, 4, 1"); A(f"v_lshl_add_u32 v{a0}, v{src}, 5, v{a0}")
    A(f"v_and_b32 v{src}, 3, v{ln}"); A(f"v_lshl_add_u32 v{a0}, v{src}, 3, v{a0}")
    A(f"v_add_u32 v{a0}, s{lds_base_sreg}, v{a0}")
    for nt in range(4):
        A(f"v_xor_b32 v{src}, {nt}, v{a1}"); A(f"v_lshl_add_u32 v{TR+nt}, v{src}, 6, v{a0}")
    A(f"v_lshrrev_b32 v{a0}, 4, v{ln}"); A(f"v_xor_b32 v{a1}, v{a1}, v{a0}")
    A(f"v_lshlrev_b32 v{a0}, {pitch_log2}, v{a0}"); A(f"v_lshl_add_u32 v{a0}, v{a1}, 6, v{a0}")
    A(f"v_and_b32 v{a1}, 3, v{ln}"); A(f"v_lshl_add_u32 v{src}, v{a1}, 4, v{a0}")
    for rnd in range(nrows // 128):
        for i in range(32):
            A(f"s_add_u32 m0, s{lds_base_sreg}, {i*1024}")
            A(f"v_add_u32 v{a0+(i&1)}, {(rnd*128 + 4*i) << pitch_log2}, v{src}")
            A(f"global_load_lds_dwordx4 v{a0+(i&1)}, s[{sw}:{sw+1}]")
        for ks in range(8):
            A(f"s_waitcnt vmcnt({28-4*ks})")
            for nt in range(4):
                pre, b = dst_fn(nt, rnd * 8 + ks)
                A(f"ds_read_b64_tr_b16 {rng(pre, b, 2)}, v{TR+nt} offset:{ks*4096}")
                A(f"ds_read_b64_tr_b16 {rng(pre, b+2, 2)}, v{TR+nt} offset:{ks*4096+1024}")
        A("s_waitcnt lgkmcnt(0)")

def gen_attn(A, s_pair, s_phase, NA, fail, check=True):
    T = S_T
    A(f"s_load_dwordx2 s[{T}:{T+1}], s[0:1], {KA['Wo']}")
    A(f"s_lshl_b32 s{T+2}, s{s_pair}, 18"); A(f"s_lshl_b32 s{T+3}, s{S_WAVE}, 8"); A(f"s_add_u32 s{T+2}, s{T+2}, s{T+3}")
    A(f"s_lshl_b32 s{T+4}, s{S_WAVE}, 15")
    A("s_waitcnt lgkmcnt(0)")
    A(f"s_add_u32 s{T}, s{T}, s{T+2}"); A(f"s_addc_u32 s{T+1}, s{T+1}, 0")
    A("s_barrier")
    load_w32(A, T, 10, 256, lambda nt, ks: ("a", (ks * 4 + nt) * 4), T + 4, 16)
    A("s_barrier")
    ln, n_, g_, t0, t1, t2 = 16, 17, 18, 19, 20, 21
    A(f"v_and_b32 v{ln}, 63, v0"); A(f"v_and_b32 v{n_}, 15, v{ln}"); A(f"v_lshrrev_b32 v{g_}, 4, v{ln}")
    A(f"v_lshlrev_b32 v{L16}, 4, v{ln}")
    A(f"s_lshl_b32 s{T+5}, s{S_WAVE}, 12")
    A(f"v_lshrrev_b32 v{t0}, 2, v{n_}"); A(f"v_xor_b32 v{t0}, v{t0}, v{g_}"); A(f"v_lshlrev_b32 v{t0}, 3, v{t0}")
    A(f"v_lshl_add_u32 v{t0}, v{n_}, 5, v{t0}"); A(f"v_add_u32 v{XW}, s{T+5}, v{t0}")
    A(f"v_bfe_u32 v{t0}, v{ln}, 5, 1"); A(f"v_lshlrev_b32 v{t0}, 4, v{t0}")
    A(f"v_bfe_u32 v{t1}, v{ln}, 4, 1"); A(f"v_lshl_add_u32 v{t0}, v{t1}, 2, v{t0}")
    A(f"v_mov_b32 v{FA}, v{t0}")
    A(f"v_lshrrev_b32 v{t2}, 2, v{n_}"); A(f"v_add_u32 v{t0}, v{t0}, v{t2}")
    A(f"v_and_b32 v{t2}, 3, v{ln}"); A(f"v_xor_b32 v{t2}, v{t2}, v{t1}"); A(f"v_lshlrev_b32 v{t2}, 3, v{t2}")
    A(f"v_lshl_add_u32 v{t0}, v{t0}, 5, v{t2}")
    A(f"v_add_u32 v{XR0}, s{T+5}, v{t0}"); A(f"v_xor_b32 v{t0}, 16, v{t0}"); A(f"v_add_u32 v{t0}, 256, v{t0}"); A(f"v_add_u32 v{XR1}, s{T+5}, v{t0}")
    A(f"s_and_b32 s{T+6}, s{S_WAVE}, 1"); A(f"s_lshl_b32 s{T+7}, s{T+6}, 4")
    A(f"v_add_u32 v{t0}, s{T+7}, v{n_}")
    A(f"v_sub_u32 v{t0}, v{t0}, v{FA}")
    A(f"v_mov_b32 v{t1}, {np_f32_bits(-1e30):#x}")
    for kt in range(2):
        for r in range(4):
            A(f"v_cmp_gt_i32 vcc, {r + 8*kt}, v{t0}")
            A(f"v_cndmask_b32 v{MK+4*kt+r}, 0, v{t1}, vcc")
    A(f"v_add_u32 v{t0}, s{T+7}, v{n_}"); A(f"v_mul_u32_u24 v{t0}, {OSTR}, v{t0}"); A(f"v_lshl_add_u32 v{t0}, v{g_}, 3, v{t0}")
    A(f"s_lshr_b32 s{T+8}, s{S_WAVE}, 1"); A(f"s_lshl_b32 s{T+9}, s{T+8}, 8"); A(f"s_add_u32 s{T+9}, s{T+9}, {LDS_O}")
    A(f"v_add_u32 v{OW}, s{T+9}, v{t0}")
    A(f"v_and_b32 v{t0}, 31, v{ln}"); A(f"v_mul_u32_u24 v{t0}, {OSTR}, v{t0}"); A(f"v_lshrrev_b32 v{t1}, 5, v{ln}"); A(f"v_lshl_add_u32 v{t0}, v{t1}, 4, v{t0}")
    A(f"v_add_u32 v{ORD}, {LDS_O}, v{t0}")
    A(f"v_lshlrev_b32 v{FA}, 2, v{ln}")
    A(f"s_lshl_b32 s{T+10}, s{s_pair}, 1"); A(f"s_add_u32 s{T+10}, s{T+10}, s{T+8}")
    def base(dst, const, parts):
        A(f"s_add_u32 s{dst}, s{S_WS}, {const}"); A(f"s_addc_u32 s{dst+1}, s{S_WS+1}, 0")
        for sr, sh in parts:
            A(f"s_lshl_b32 s{T+11}, s{sr}, {sh}"); A(f"s_add_u32 s{dst}, s{dst}, s{T+11}"); A(f"s_addc_u32 s{dst+1}, s{dst+1}, 0")
    base(S_REC, REC_OFF, [(T + 10, 21), (s_phase, 15)])
    base(S_PART, PART_OFF, [(s_pair, 15), (S_WAVE, 13), (s_phase, 19)])
    base(S_PF, PARTFLAG, [(s_pair, 4), (S_WAVE, 2), (s_phase, 8)])
    base(S_KF, KMFLAG + 16, [(T + 10, 11), (s_phase, 4)])
    base(S_QF, QKVFLAG, [(T + 10, 9)])
    A(f"s_lshl_b32 s{T+12}, s{T+6}, 12")
    cval = np_f32_bits(128 ** -0.5 * math.log2(math.e))
    A(f"s_mov_b32 s{S_C}, {cval:#x}"); A(f"s_mov_b32 s{S_C+1}, {cval:#x}")
    A(f"s_mov_b32 s{S_SEG}, s{s_phase}")
    LOOP = A.newlabel("Lat"); END = A.newlabel("Late")
    A.label(LOOP)
    ad = [22, 23, 24, 25, 26, 27, 28]
    if check:
        A(f"s_lshr_b32 s{T}, s{S_SEG}, 3"); A(f"s_lshl_b32 s{T}, s{T}, 6")
        A(f"s_and_b32 s{T+1}, s{S_SEG}, 6"); A(f"s_lshl_b32 s{T+1}, s{T+1}, 1"); A(f"s_add_u32 s{T}, s{T}, s{T+1}")
        A(f"v_add_u32 v{ad[0]}, s{T}, v{L16}")
        wait_flags(A, S_QF, ad[0], 3, fail, ad[1])
    AD = OA
    for i in range(7): A(f"v_add_u32 v{AD+i}, {i*4096}, v{L16}")
    A(f"v_add_u32 v{AD+4}, s{T+12}, v{AD+4}")
    def ld(dst, areg, off): A(f"global_load_dwordx4 v[{dst}:{dst+3}], v{areg}, s[{S_REC}:{S_REC+1}] offset:{off} sc1")
    for i in range(4): ld(QF + 4 * i, AD + 4, i * 1024)
    for i in range(8): ld(KF + 4 * i, AD + (i >> 2), (i & 3) * 1024)
    for i in range(8): ld(VF + 4 * i, AD + 2 + (i >> 2), (i & 3) * 1024)
    A(f"v_add_u32 v{AD+5}, {7*4096}, v{L16}")
    if check: wait_flags(A, S_KF, FA, 4, fail, AD + 7)
    for i in range(4): ld(KM + 4 * i, AD + 6, i * 1024)
    for i in range(4): ld(VM + 4 * i, AD + 5, i * 1024)
    def mf(d, a_, b_, c, *extra):
        A(f"v_mfma_f32_16x16x32_bf16 v[{d}:{d+3}], v[{a_}:{a_+3}], v[{b_}:{b_+3}], {c}")
        for x in extra: A(x)
    A("s_waitcnt vmcnt(16)")
    for kb in range(4): mf(S1, KF + 4 * kb, QF + 4 * kb, f"v[{MK}:{MK+3}]" if kb == 0 else f"v[{S1}:{S1+3}]")
    for kb in range(4): mf(S2, KF + 16 + 4 * kb, QF + 4 * kb, f"v[{MK+4}:{MK+7}]" if kb == 0 else f"v[{S2}:{S2+3}]")
    for i in range(4):
        A(f"s_waitcnt vmcnt({7-i})")
        A(f"ds_write_b64 v{XW}, v[{KM+4*i}:{KM+4*i+1}] offset:{i*1024}")
        A(f"ds_write_b64 v{XW}, v[{KM+4*i+2}:{KM+4*i+3}] offset:{i*1024+512}")
    A("s_waitcnt lgkmcnt(0)")
    for kb in range(4):
        A(f"ds_read_b64_tr_b16 v[{XO+4*kb}:{XO+4*kb+1}], v{XR0} offset:{kb*1024}")
        A(f"ds_read_b64_tr_b16 v[{XO+4*kb+2}:{XO+4*kb+3}], v{XR1} offset:{kb*1024}")
    A(f"v_max3_f32 v{M_}, v{S1}, v{S1+1}, v{S1+2}")
    A(f"v_max3_f32 v{M_}, v{M_}, v{S1+3}, v{S2}")
    A(f"v_max3_f32 v{M_}, v{M_}, v{S2+1}, v{S2+2}")
    A(f"v_max_f32 v{M_}, v{M_}, v{S2+3}")
    for kb in range(4):
        A(f"s_waitcnt lgkmcnt({6-2*kb})")
        mf(S0, XO + 4 * kb, QF + 4 * kb, "0" if kb == 0 else f"v[{S0}:{S0+3}]")
    A(f"v_max3_f32 v{T_}, v{M_}, v{S0}, v{S0+1}")
    A(f"v_max3_f32 v{M_}, v{M_}, v{S0}, v{S0+1}")
    def xred(op):
        A(f"v_permlane32_swap_b32 v{M_}, v{T_}")
        A(f"{op} v{R_}, v{M_}, v{T_}"); A(f"{op} v{M_}, v{M_}, v{T_}")
        A(f"v_permlane16_swap_b32 v{M_}, v{R_}")
        A(f"{op} v{M_}, v{M_}, v{R_}")
    xred("v_max_f32")
    A(f"v_mul_f32 v{M_}, s{S_C}, v{M_}")
    for r in (S1, S1 + 2, S2, S2 + 2, S0):
        A(f"v_pk_fma_f32 v[{r}:{r+1}], v[{r}:{r+1}], s[{S_C}:{S_C+1}], v[{M_}:{M_+1}] op_sel_hi:[1,0,0] neg_lo:[0,0,1] neg_hi:[0,0,1]")
    vals = [S1, S1 + 1, S1 + 2, S1 + 3, S2, S2 + 1, S2 + 2, S2 + 3, S0, S0 + 1]
    for r in vals: A(f"v_exp_f32 v{r}, v{r}")
    A(f"v_pk_add_f32 v[{PX}:{PX+1}], v[{S1}:{S1+1}], v[{S1+2}:{S1+3}]")
    A(f"v_pk_add_f32 v[{PX+2}:{PX+3}], v[{S2}:{S2+1}], v[{S2+2}:{S2+3}]")
    A(f"v_pk_add_f32 v[{PX}:{PX+1}], v[{PX}:{PX+1}], v[{S0}:{S0+1}]")
    A(f"v_pk_add_f32 v[{PX}:{PX+1}], v[{PX}:{PX+1}], v[{PX+2}:{PX+3}]")
    A(f"v_add_f32 v{M_}, v{PX}, v{PX+1}"); A(f"v_add_f32 v{T_}, v{PX}, v{PX+1}")
    xred("v_add_f32")
    A(f"v_rcp_f32 v{M_}, v{M_}")
    for r in (S1, S1 + 2, S2, S2 + 2, S0):
        A(f"v_pk_mul_f32 v[{r}:{r+1}], v[{r}:{r+1}], v[{M_}:{M_+1}] op_sel_hi:[1,0]")
    for i, r in enumerate((S1, S1 + 2, S2, S2 + 2, S0, S0)): A(f"v_cvt_pk_bf16_f32 v{PX+i}, v{r}, v{r+1}")
    A("s_waitcnt vmcnt(0)")
    for dt in range(8): mf(OA + 4 * dt, VF + 4 * dt, PX, "0")
    A("s_barrier")
    for dt in range(8):
        A(f"v_mfma_f32_16x16x16_bf16 v[{OA+4*dt}:{OA+4*dt+3}], v[{VM+2*dt}:{VM+2*dt+1}], v[{PM}:{PM+1}], v[{OA+4*dt}:{OA+4*dt+3}]")
        if dt >= 3:
            d = dt - 3
            A(f"v_cvt_pk_bf16_f32 v{PK+2*(d&1)}, v{OA+4*d}, v{OA+4*d+1}"); A(f"v_cvt_pk_bf16_f32 v{PK+2*(d&1)+1}, v{OA+4*d+2}, v{OA+4*d+3}")
            A(f"ds_write_b64 v{OW}, v[{PK+2*(d&1)}:{PK+2*(d&1)+1}] offset:{d*32}")
    for d in range(5, 8):
        A(f"v_cvt_pk_bf16_f32 v{PK+2*(d&1)}, v{OA+4*d}, v{OA+4*d+1}"); A(f"v_cvt_pk_bf16_f32 v{PK+2*(d&1)+1}, v{OA+4*d+2}, v{OA+4*d+3}")
        A(f"ds_write_b64 v{OW}, v[{PK+2*(d&1)}:{PK+2*(d&1)+1}] offset:{d*32}")
    A("s_waitcnt lgkmcnt(0)")
    A("s_barrier")
    for ks in range(3): A(f"ds_read_b128 v[{OB+4*ks}:{OB+4*ks+3}], v{ORD} offset:{ks*32}")
    for ks in range(16):
        A(f"s_waitcnt lgkmcnt({min(2, 15-ks)})")
        for nt in range(4):
            acc = ACC + 16 * nt
            A(f"v_mfma_f32_32x32x16_bf16 v[{acc}:{acc+15}], {a((ks*4+nt)*4, 4)}, v[{OB+4*(ks&3)}:{OB+4*(ks&3)+3}], " + ("0" if ks == 0 else f"v[{acc}:{acc+15}]"))
            if nt == 0 and ks + 3 < 16: A(f"ds_read_b128 v[{OB+4*((ks+3)&3)}:{OB+4*((ks+3)&3)+3}], v{ORD} offset:{(ks+3)*32}")
    A(f"v_add_u32 v{AD}, 4096, v{L16}")
    for nt in range(4):
        acc = ACC + 16 * nt
        pk = PK + 8 * (nt & 1)
        for e in range(8): A(f"v_cvt_pk_bf16_f32 v{pk+e}, v{acc+2*e}, v{acc+2*e+1}")
        ar = L16 if nt < 2 else AD
        A(f"global_store_dwordx4 v{ar}, v[{pk}:{pk+3}], s[{S_PART}:{S_PART+1}] offset:{(nt&1)*2048} sc1")
        A(f"global_store_dwordx4 v{ar}, v[{pk+4}:{pk+7}], s[{S_PART}:{S_PART+1}] offset:{(nt&1)*2048+1024} sc1")
    set_flag(A, S_PF, 0, L16, AD + 1)
    for b, inc in ((S_REC, NA * REC_SZ), (S_PART, NA << 19), (S_PF, NA << 8), (S_KF, NA << 4)):
        A(f"s_add_u32 s{b}, s{b}, {inc}"); A(f"s_addc_u32 s{b+1}, s{b+1}, 0")
    A(f"s_add_u32 s{S_SEG}, s{S_SEG}, {NA}")
    A(f"s_cmp_lt_u32 s{S_SEG}, 64"); A(f"s_cbranch_scc1 {LOOP}")
```

```python
from asm import *
from layout import *
from team import S_WS, S_DBG, S_RANK, S_WAVE, S_T, S_SPIN
LDS_FORM = 0x7A00

def gen_entry(A, nwg, exit_label):
    A(f"s_cmp_ge_u32 s2, {nwg}"); A(f"s_cbranch_scc1 {exit_label}")
    A(f"s_load_dwordx2 s[{S_WS}:{S_WS+1}], s[0:1], {KA['ws']}")
    A(f"s_load_dwordx2 s[{S_DBG}:{S_DBG+1}], s[0:1], {KA['dbg']}")
    A("v_lshrrev_b32 v1, 6, v0")
    A("s_nop 0")
    A(f"v_readfirstlane_b32 s{S_WAVE}, v1")
    A("s_waitcnt lgkmcnt(0)")

def gen_register(A):
    T = S_T
    A(f"s_getreg_b32 s{S_XCC}, hwreg(HW_REG_XCC_ID)")
    A(f"s_and_b32 s{S_XCC}, s{S_XCC}, 7")
    L = A.newlabel("Lreg")
    A(f"s_cmp_lg_u32 s{S_WAVE}, 0"); A(f"s_cbranch_scc1 {L}")
    A(f"s_memtime s[{T}:{T+1}]"); A(f"s_memrealtime s[{T+2}:{T+3}]"); A("s_waitcnt lgkmcnt(0)")
    A(f"s_lshr_b32 s{T+1}, s{T}, 4"); A(f"s_xor_b32 s{T}, s{T}, s{T+1}"); A(f"s_lshr_b32 s{T+1}, s{T}, 9"); A(f"s_xor_b32 s{T}, s{T}, s{T+1}")
    A(f"s_xor_b32 s{T}, s{T}, s{T+2}"); A(f"s_lshr_b32 s{T+1}, s{T+2}, 5"); A(f"s_xor_b32 s{T}, s{T}, s{T+1}")
    A(f"s_and_b32 s{T}, s{T}, 15"); A(f"s_lshl_b32 s{T}, s{T}, 3"); A(f"s_or_b32 s{T}, s{T}, s{S_XCC}"); A(f"s_or_b32 s{T}, s{T}, 0x80")
    A(f"v_mov_b32 v2, s2"); A(f"v_mov_b32 v3, s{T}")
    A("s_mov_b64 exec, 1")
    A(f"global_store_byte v2, v3, s[{S_DBG}:{S_DBG+1}] sc1")
    A("s_mov_b64 exec, -1")
    A.label(L)
    A(f"s_sub_u32 s{T}, s2, s{S_XCC}"); A(f"s_and_b32 s{T}, s{T}, 7")
    A(f"s_add_u32 s{T+1}, s2, 7"); A(f"s_sub_u32 s{T+1}, s{T+1}, s{T}"); A(f"s_lshr_b32 s{T+1}, s{T+1}, 3")
    A(f"s_sub_u32 s{T+2}, s2, s{T+1}"); A(f"s_add_u32 s{T+2}, s{T+2}, 32")
    A(f"s_cmp_eq_u32 s{S_XCC}, 0"); A(f"s_cselect_b32 s{S_WIDX}, s{T+1}, s{T+2}")
    A(f"s_min_u32 s{S_WIDX}, s{S_WIDX}, 255")
    A(f"s_mov_b32 s{S_CONF}, 0")

def gen_confirm(A, restart_label, fail_label, tv, LDS_FORM=0x27FF0):
    U = 84
    DONE = A.newlabel("Lcf"); L1 = A.newlabel("Lcf"); LP = A.newlabel("Lcf"); LX = A.newlabel("Lcf"); LY = A.newlabel("Lcf")
    A(f"s_cmp_lg_u32 s{S_CONF}, 0"); A(f"s_cbranch_scc1 {DONE}")
    A(f"s_cmp_lg_u32 s{S_WAVE}, 0"); A(f"s_cbranch_scc1 {L1}")
    A(f"v_mbcnt_lo_u32_b32 v{tv}, -1, 0"); A(f"v_mbcnt_hi_u32_b32 v{tv}, -1, v{tv}")
    A(f"v_lshlrev_b32 v{tv}, 2, v{tv}")
    A(f"s_mov_b32 s{S_SPIN}, 0")
    A.label(LP)
    A(f"global_load_dword v{tv+1}, v{tv}, s[{S_DBG}:{S_DBG+1}] sc1")
    A(f"s_add_u32 s{S_SPIN}, s{S_SPIN}, 1"); A(f"s_cmp_gt_u32 s{S_SPIN}, 300000"); A(f"s_cbranch_scc1 {fail_label}")
    A("s_waitcnt vmcnt(0)")
    A(f"v_and_b32 v{tv+2}, 0x80808080, v{tv+1}")
    A(f"v_cmp_ne_u32 vcc, 0x80808080, v{tv+2}")
    A(f"s_cbranch_vccnz {LP}")
    A(f"v_mov_b32 v{tv+3}, 0x9e3779b1"); A(f"v_mul_lo_u32 v{tv+2}, v{tv+1}, v{tv+3}")
    A(f"v_cmp_gt_i32 vcc, 0, v{tv+2}")
    A(f"s_xor_b32 s{U}, vcc_lo, vcc_hi")
    A(f"v_lshlrev_b32 v{tv+2}, 1, v{tv+2}")
    A(f"v_cmp_gt_i32 vcc, 0, v{tv+2}")
    A(f"s_mul_i32 s{U}, s{U}, 0x85ebca6b"); A(f"s_xor_b32 s{U}, s{U}, vcc_lo"); A(f"s_add_u32 s{U}, s{U}, vcc_hi"); A(f"s_or_b32 s{U}, s{U}, 1")
    A(f"s_mov_b32 s{U+1}, 0")
    A(f"s_lshr_b32 s{U+10}, s2, 2"); A(f"s_and_b32 s{U+11}, s2, 3")
    A.label(LX)
    A(f"s_mov_b32 s{U+2}, 0"); A(f"s_mov_b32 s{U+3}, 0")
    for j in range(4):
        A(f"v_bfe_u32 v{tv+2}, v{tv+1}, {8*j}, 3")
        A(f"v_cmp_eq_u32 vcc, s{U+1}, v{tv+2}")
        A(f"s_bcnt1_i32_b64 s{U+4}, vcc"); A(f"s_add_u32 s{U+2}, s{U+2}, s{U+4}")
        A(f"s_cmp_gt_u32 s{U+11}, {j}"); A(f"s_cselect_b32 s{U+4}, 1, 0"); A(f"s_add_u32 s{U+4}, s{U+4}, s{U+10}")
        A(f"s_bfm_b64 s[{U+6}:{U+7}], s{U+4}, 0")
        A(f"s_cmp_eq_u32 s{U+4}, 64"); A(f"s_cselect_b64 s[{U+6}:{U+7}], -1, s[{U+6}:{U+7}]")
        A(f"s_and_b64 s[{U+6}:{U+7}], s[{U+6}:{U+7}], vcc")
        A(f"s_bcnt1_i32_b64 s{U+4}, s[{U+6}:{U+7}]"); A(f"s_add_u32 s{U+3}, s{U+3}, s{U+4}")
    A(f"s_cmp_ge_u32 s{U+2}, 32"); A(f"s_cbranch_scc1 {LY}")
    A(f"s_add_u32 s{U+1}, s{U+1}, 1"); A(f"s_cmp_lt_u32 s{U+1}, 8"); A(f"s_cbranch_scc1 {LX}")
    A(f"s_branch {fail_label}")
    A.label(LY)
    A(f"s_min_u32 s{U+4}, s{U+3}, 32"); A(f"s_sub_u32 s{U+4}, s2, s{U+4}"); A(f"s_add_u32 s{U+4}, s{U+4}, 32")
    A(f"s_cmp_lt_u32 s{U+3}, 32"); A(f"s_cselect_b32 s{U+5}, s{U+3}, s{U+4}")
    A(f"s_cmp_eq_u32 s{U+1}, s{S_XCC}"); A(f"s_cselect_b32 s{U+5}, s{U+5}, s{U+4}")
    A(f"v_mov_b32 v{tv+2}, s{U}"); A(f"v_mov_b32 v{tv+3}, s{U+5}"); A(f"v_mov_b32 v{tv}, {LDS_FORM}")
    A(f"ds_write_b64 v{tv}, v[{tv+2}:{tv+3}]")
    A("s_waitcnt lgkmcnt(0)")
    A.label(L1)
    A("s_barrier")
    A(f"v_mov_b32 v{tv}, {LDS_FORM}")
    A(f"ds_read_b64 v[{tv+2}:{tv+3}], v{tv}")
    A("s_waitcnt lgkmcnt(0)")
    A(f"v_readfirstlane_b32 s{S_NONCE}, v{tv+2}"); A(f"v_readfirstlane_b32 s{U+5}, v{tv+3}")
    A(f"s_mov_b32 s{S_CONF}, 1")
    A("s_nop 3")
    A(f"s_cmp_eq_u32 s{U+5}, s{S_WIDX}"); A(f"s_cbranch_scc1 {DONE}")
    A(f"s_mov_b32 s{S_WIDX}, s{U+5}")
    A("s_waitcnt vmcnt(0)")
    A("s_barrier")
    A(f"s_branch {restart_label}")
    A.label(DONE)

def gen_fail(A, fail_label, code=1):
    A.label(fail_label)
    A("s_mov_b64 exec, 1")
    A(f"v_mov_b32 v2, {FAILW}"); A(f"v_mov_b32 v3, s{S_WIDX}")
    A(f"global_store_dword v2, v3, s[{S_WS}:{S_WS+1}]")
    A("s_waitcnt vmcnt(0)")
    A("s_endpgm")

def restore_tid(A):
    A("v_mbcnt_lo_u32_b32 v0, -1, 0"); A("v_mbcnt_hi_u32_b32 v0, -1, v0")
    A(f"s_lshl_b32 s{S_T}, s{S_WAVE}, 6"); A(f"v_add_u32 v0, s{S_T}, v0")
```

```python
from asm import *
from layout import *
S_SPIN = 60
def wait_flags(A, sbase, voff, nlanes, fail, tmp, sleep=1):
    L = A.newlabel("Lwf")
    A(f"s_mov_b32 s{S_SPIN}, 0")
    A(f"s_mov_b64 exec, {(1 << nlanes) - 1:#x}" if nlanes <= 32 else ("s_mov_b64 exec, -1" if nlanes == 64 else f"s_mov_b32 exec_lo, -1\ns_mov_b32 exec_hi, {(1 << (nlanes - 32)) - 1:#x}"))
    A.label(L)
    A(f"global_load_dword v{tmp}, v{voff}, s[{sbase}:{sbase+1}] sc1")
    A(f"s_add_u32 s{S_SPIN}, s{S_SPIN}, 1"); A(f"s_cmp_gt_u32 s{S_SPIN}, 300000"); A(f"s_cbranch_scc1 {fail}")
    A("s_waitcnt vmcnt(0)")
    A(f"v_cmp_ne_u32 vcc, s{S_NONCE}, v{tmp}")
    L2 = A.newlabel("Lwf")
    A(f"s_cbranch_vccz {L2}")
    if sleep: A(f"s_sleep {sleep}")
    A(f"s_branch {L}")
    A.label(L2)
    A("s_mov_b64 exec, -1")

def set_flag(A, sbase, off, vz, vtmp, wait="s_waitcnt vmcnt(0)"):
    A(f"v_mov_b32 v{vtmp}, s{S_NONCE}")
    A(wait)
    A("s_mov_b64 exec, 1")
    A(f"global_store_dword v{vz}, v{vtmp}, s[{sbase}:{sbase+1}] offset:{off} sc1")
    A("s_mov_b64 exec, -1")
```

```python
from asm import *
from layout import *
from team import S_WS, S_DBG, S_RANK, S_WAVE, S_T, S_SPIN, np_f32_bits
from pre import unpack
from attn import wait_flags, set_flag
from rz import wait_mod, mkbase, adv, load_w16, S_A, S_B, S_C2, S_D, S_E, S_F, S_SEG
S_G, S_H = 78, 80

def gen_g(A, s_tb, s_fg, fail, check=True):
    T = S_T
    L16, FA, WA0, WA1, STA, UW, PW, PR = 1, 2, 3, 4, 5, 6, 7, 8
    t = 10
    UL, STL, RS, WS, UB, UN = 16, 28, 40, 56, 72, 120
    AC = 128
    Z1 = 16
    LDS_U, LDS_P = 0, 0x6000
    A(f"s_load_dwordx4 s[{T}:{T+3}], s[0:1], {KA['w_sp']}")
    ln, n_, g_, t0, t1 = 16, 17, 18, 19, 20
    A(f"v_and_b32 v{ln}, 63, v0"); A(f"v_and_b32 v{n_}, 15, v{ln}"); A(f"v_lshrrev_b32 v{g_}, 4, v{ln}")
    A(f"v_lshlrev_b32 v{L16}, 4, v{ln}"); A(f"v_lshlrev_b32 v{FA}, 2, v{ln}")
    A(f"v_lshrrev_b32 v{t0}, 2, v{n_}"); A(f"v_lshlrev_b32 v{t0}, 3, v{t0}"); A(f"v_and_b32 v{t1}, 3, v{n_}"); A(f"v_add_u32 v{t0}, v{t0}, v{t1}")
    A(f"v_lshlrev_b32 v{t+4}, 1, v{t0}")
    A(f"v_lshlrev_b32 v{WA0}, 12, v{t0}"); A(f"v_lshl_add_u32 v{WA0}, v{g_}, 4, v{WA0}"); A(f"v_add_u32 v{WA1}, {4*4096}, v{WA0}")
    A(f"v_and_b32 v{t0}, 31, v{ln}"); A(f"v_lshlrev_b32 v{t0}, 3, v{t0}")
    A(f"v_lshrrev_b32 v{t1}, 5, v{ln}"); A(f"v_mul_u32_u24 v{t1}, {6*256}, v{t1}"); A(f"v_add_u32 v{STA}, v{t0}, v{t1}")
    A(f"s_mul_i32 s{T+4}, s{S_WAVE}, 3072"); A(f"v_add_u32 v{UW}, s{T+4}, v{L16}")
    A(f"s_lshl_b32 s{T+5}, s{S_WAVE}, 8"); A(f"s_add_u32 s{T+5}, s{T+5}, {LDS_P}")
    A(f"v_add_u32 v{PW}, s{T+5}, v{t0}")
    A(f"v_lshlrev_b32 v{t1}, 6, v{g_}"); A(f"v_add_u32 v{PR}, s{T+5}, v{t1}")
    A(f"s_lshl_b32 s{T+6}, s{s_tb}, 2"); A(f"s_add_u32 s{T+6}, s{T+6}, s{S_WAVE}")
    A(f"s_mul_i32 s{T+7}, s{s_fg}, 12"); A(f"s_cmp_eq_u32 s{s_fg}, 3"); A(f"s_cselect_b32 s{T+7}, 34, s{T+7}")
    A("s_waitcnt lgkmcnt(0)")
    mkbase(A, S_A, 0, [(T + 6, 17)], src=T)
    mkbase(A, S_B, UF_OFF, [(T + 7, 10)])
    mkbase(A, S_C2, STAT_OFF, [])
    mkbase(A, S_E, ZFLAG + 40, [])
    mkbase(A, S_G, 0, [(T + 6, 6)], src=T + 2)
    A(f"global_load_ushort v{t+2}, v{t+4}, s[{S_G}:{S_G+1}]")
    A(f"global_load_ushort v{t+3}, v{t+4}, s[{S_G}:{S_G+1}] offset:8")
    for i in range(0, 96, 2): A(f"v_mov_b64 v[{AC+i}:{AC+i+1}], 0")
    A(f"global_load_dwordx4 v[{WS}:{WS+3}], v{WA0}, s[{S_A}:{S_A+1}]")
    A(f"global_load_dwordx4 v[{WS+4}:{WS+7}], v{WA1}, s[{S_A}:{S_A+1}]")
    A(f"s_mov_b32 s{S_SEG}, 0")
    A("s_barrier")
    LOOP = A.newlabel("Lg")
    A.label(LOOP)
    for par in range(2):
        wc, wn = WS + 8 * par, WS + 8 * (par ^ 1)
        if check: wait_flags(A, S_E, FA, 12, fail, t)
        for k in range(3): A(f"global_load_dwordx4 v[{UL+4*k}:{UL+4*k+3}], v{UW}, s[{S_B}:{S_B+1}] offset:{k*1024} sc1")
        for k in range(6): A(f"global_load_dwordx2 v[{STL+2*k}:{STL+2*k+1}], v{STA}, s[{S_C2}:{S_C2+1}] offset:{k*256} sc1")
        A(f"s_add_u32 s{T}, s{S_SEG}, {par+1}"); A(f"s_and_b32 s{T}, s{T}, 63"); A(f"s_lshl_b32 s{T}, s{T}, 6")
        A(f"v_add_u32 v{t}, s{T}, v{WA0}"); A(f"v_add_u32 v{t+1}, s{T}, v{WA1}")
        A(f"global_load_dwordx4 v[{wn}:{wn+3}], v{t}, s[{S_A}:{S_A+1}]")
        A(f"global_load_dwordx4 v[{wn+4}:{wn+7}], v{t+1}, s[{S_A}:{S_A+1}]")
        A("s_waitcnt vmcnt(2)")
        for k in range(1, 6): A(f"v_add_f32 v{STL}, v{STL}, v{STL+2*k}"); A(f"v_add_f32 v{STL+1}, v{STL+1}, v{STL+2*k+1}")
        A(f"v_mov_b32 v{STL+2}, v{STL}"); A(f"v_mov_b32 v{STL+3}, v{STL+1}")
        A(f"v_permlane32_swap_b32 v{STL}, v{STL+2}"); A(f"v_permlane32_swap_b32 v{STL+1}, v{STL+3}")
        A(f"v_add_f32 v{STL}, v{STL}, v{STL+2}"); A(f"v_add_f32 v{STL+1}, v{STL+1}, v{STL+3}")
        A(f"v_mul_f32 v{STL}, {np_f32_bits(1.0/688):#x}, v{STL}")
        A(f"v_mul_f32 v{STL+1}, {np_f32_bits(1.0/688):#x}, v{STL+1}")
        A(f"v_fma_f32 v{STL+1}, -v{STL}, v{STL}, v{STL+1}")
        A(f"v_max_f32 v{STL+1}, 0, v{STL+1}")
        A(f"v_add_f32 v{STL+1}, {np_f32_bits(1e-5):#x}, v{STL+1}")
        A(f"v_rsq_f32 v{STL+2}, v{STL+1}")
        A(f"v_mul_f32 v{STL+3}, -v{STL}, v{STL+2}".replace("v_mul_f32", "v_mul_f32_e64"))
        A(f"ds_write_b64 v{PW}, v[{STL+2}:{STL+3}]")
        A("s_waitcnt lgkmcnt(0)")
        for k in range(4): A(f"ds_read_b128 v[{RS+4*k}:{RS+4*k+3}], v{PR} offset:{16*k}")
        for k in range(3):
            unpack(A, UN, UL + 4 * k, 4)
            if k == 0: A("s_waitcnt lgkmcnt(0)")
            for e in range(8): A(f"v_fma_f32 v{UN+e}, v{UN+e}, v{RS+2*e}, v{RS+2*e+1}")
            for e in range(4): A(f"v_cvt_pk_bf16_f32 v{UL+4*k+e}, v{UN+2*e}, v{UN+2*e+1}")
            A(f"ds_write_b128 v{UW}, v[{UL+4*k}:{UL+4*k+3}] offset:{LDS_U + par*12288 + k*1024}")
        A("s_waitcnt lgkmcnt(0)"); A("s_barrier")
        for j in range(12): A(f"ds_read_b128 v[{UB+4*j}:{UB+4*j+3}], v{L16} offset:{LDS_U + par*12288 + j*1024}")
        for j in range(12):
            A(f"s_waitcnt lgkmcnt({11-j})")
            for mt in range(2):
                ac = AC + 8 * j + 4 * mt
                A(f"v_mfma_f32_16x16x32_bf16 v[{ac}:{ac+3}], v[{UB+4*j}:{UB+4*j+3}], v[{wc+4*mt}:{wc+4*mt+3}], v[{ac}:{ac+3}]")
        adv(A, [(S_B, 44 * 1024), (S_C2, 4096), (S_E, 128)])
    A(f"s_add_u32 s{S_SEG}, s{S_SEG}, 2")
    A(f"s_cmp_lt_u32 s{S_SEG}, 64"); A(f"s_cbranch_scc1 {LOOP}")
    A(f"s_mul_i32 s{T}, s{T+6}, {44*1024}")
    mkbase(A, S_D, Z1F_OFF, [(T + 7, 10), (T, 0)])
    if check:
        mkbase(A, S_F, ZFLAG, [(T + 6, 7)])
        wait_flags(A, S_F, FA, 11, fail, t)
    A(f"v_add_u32 v{t}, 4096, v{L16}"); A(f"v_add_u32 v{t+1}, 8192, v{L16}")
    for j in range(12): A(f"global_load_dwordx4 v[{Z1+4*j}:{Z1+4*j+3}], v{(L16, t, t+1)[j>>2]}, s[{S_D}:{S_D+1}] offset:{(j&3)*1024} sc1")
    A(f"s_lshr_b32 s{T+1}, s{T+7}, 1")
    mkbase(A, S_H, YF_OFF, [(T, 0), (T + 1, 10)])
    mkbase(A, S_F, YFLAG, [(T + 6, 4), (s_fg, 2)])
    A(f"v_lshlrev_b32 v{t+2}, 16, v{t+2}"); A(f"v_lshlrev_b32 v{t+3}, 16, v{t+3}")
    A(f"v_add_u32 v{WA0}, {22*1024}, v{L16}"); A(f"v_add_u32 v{WA1}, {22*1024+4096}, v{L16}")
    YP = 72
    LSK = A.newlabel("Lgs")
    for jj in range(6):
        if jj == 5: A(f"s_cmp_ge_u32 s{s_fg}, 2"); A(f"s_cbranch_scc1 {LSK}")
        A(f"s_waitcnt vmcnt({max(0, 10-2*jj) + 2*jj})")
        yp = YP + 8 * (jj & 1)
        for h in range(2):
            j = 2 * jj + h
            unpack(A, UN, Z1 + 4 * j, 4)
            for mt in range(2):
                ac = AC + 8 * j + 4 * mt
                for r in range(4):
                    A(f"v_add_f32 v{ac+r}, v{ac+r}, v{t+2+mt}")
                    A(f"v_mul_f32 v{ac+r}, v{ac+r}, v{UN+4*mt+r}")
                A(f"v_cvt_pk_bf16_f32 v{yp+4*mt+2*h}, v{ac}, v{ac+1}"); A(f"v_cvt_pk_bf16_f32 v{yp+4*mt+2*h+1}, v{ac+2}, v{ac+3}")
        if jj == 4:
            LZ = A.newlabel("Lgz")
            A(f"s_cmp_lg_u32 s{s_fg}, 3"); A(f"s_cbranch_scc1 {LZ}")
            A(f"v_mov_b64 v[{yp+2}:{yp+3}], 0"); A(f"v_mov_b64 v[{yp+6}:{yp+7}], 0")
            A.label(LZ)
        A(f"global_store_dwordx4 v{L16 if jj < 4 else t}, v[{yp}:{yp+3}], s[{S_H}:{S_H+1}] offset:{(jj&3)*1024} sc1")
        A(f"global_store_dwordx4 v{WA0 if jj < 4 else WA1}, v[{yp+4}:{yp+7}], s[{S_H}:{S_H+1}] offset:{(jj&3)*1024} sc1")
    A.label(LSK)
    set_flag(A, S_F, 0, L16, t)

def gen_o_weights(A, s_tile):
    T = S_T
    A(f"s_load_dwordx2 s[{T}:{T+1}], s[0:1], {KA['w_out']}")
    A(f"s_and_b32 s{T+5}, s{s_tile}, 3")
    A(f"s_lshl_b32 s{T+6}, s{T+5}, 8"); A(f"s_lshl_b32 s{T+7}, s{S_WAVE}, 6"); A(f"s_add_u32 s{T+6}, s{T+6}, s{T+7}")
    A(f"s_lshl_b32 s{T+8}, s{S_WAVE}, 15")
    A("s_waitcnt lgkmcnt(0)")
    A(f"s_add_u32 s{T}, s{T}, s{T+6}"); A(f"s_addc_u32 s{T+1}, s{T+1}, 0")
    A("s_barrier")
    load_w16(A, T, 1024, 22, lambda g, e: 4 * g + (e % 4) + 16 * (e // 4), 2, lambda nt, ks: ("a", (ks * 2 + nt) * 4), T + 8, 16, rowmax=687, inter=True)
    A("s_barrier")

def gen_o(A, s_tile, fail, check=True):
    T = S_T
    L16, FA, YW, XA = 1, 2, 3, 4
    t = 8
    YL, YB, AC, XV, GB = 16, 64, 96, 112, 128
    A(f"s_load_dwordx2 s[{T+2}:{T+3}], s[0:1], {KA['out']}")
    A(f"s_lshr_b32 s{T+4}, s{s_tile}, 2"); A(f"s_and_b32 s{T+5}, s{s_tile}, 3")
    A(f"s_lshl_b32 s{T+6}, s{T+5}, 8"); A(f"s_lshl_b32 s{T+7}, s{S_WAVE}, 6"); A(f"s_add_u32 s{T+6}, s{T+6}, s{T+7}")
    A("s_waitcnt lgkmcnt(0)")
    A("s_barrier")
    if check: wait_mod(A, fail, 16, 17)
    ln, n_, g_, t0, t1 = 16, 17, 18, 19, 20
    A(f"v_and_b32 v{ln}, 63, v0"); A(f"v_and_b32 v{n_}, 15, v{ln}"); A(f"v_lshrrev_b32 v{g_}, 4, v{ln}")
    A(f"v_lshlrev_b32 v{L16}, 4, v{ln}"); A(f"v_lshlrev_b32 v{FA}, 2, v{ln}")
    A(f"s_mul_i32 s{T+9}, s{S_WAVE}, {11*1024}"); A(f"v_add_u32 v{YW}, s{T+9}, v{L16}")
    A(f"v_lshrrev_b32 v{t0}, 2, v{n_}"); A(f"v_lshlrev_b32 v{t0}, 3, v{t0}"); A(f"v_and_b32 v{t1}, 3, v{n_}"); A(f"v_add_u32 v{t0}, v{t0}, v{t1}")
    A(f"v_lshlrev_b32 v{XA}, 10, v{t0}"); A(f"v_lshl_add_u32 v{XA}, v{g_}, 4, v{XA}"); A(f"v_add_u32 v{XA}, s{T+6}, v{XA}")
    A(f"v_add_u32 v{XA+1}, 4096, v{XA}")
    A(f"v_lshlrev_b32 v{t0}, 4, v{g_}"); A(f"v_add_u32 v{t0}, s{T+6}, v{t0}"); A(f"v_add_u32 v{t0}, {MOD_OFF + 5*1024}, v{t0}")
    A(f"global_load_dwordx4 v[{GB+8}:{GB+11}], v{t0}, s[{S_WS}:{S_WS+1}] sc1")
    A(f"s_mul_i32 s{T+9}, s{T+4}, {44*1024}")
    mkbase(A, S_A, YF_OFF, [(T + 9, 0)])
    mkbase(A, S_B, X1_OFF, [(T + 4, 15)])
    mkbase(A, S_C2, 0, [(T + 4, 15)], src=T + 2)
    mkbase(A, S_E, YFLAG, [(T + 4, 4)])
    if check: wait_flags(A, S_E, FA, 4, fail, t)
    A(f"v_add_u32 v{t}, 4096, v{YW}"); A(f"v_add_u32 v{t+1}, 8192, v{YW}")
    for i in range(11): A(f"global_load_dwordx4 v[{YL+4*i}:{YL+4*i+3}], v{(YW, t, t+1)[i>>2]}, s[{S_A}:{S_A+1}] offset:{(i&3)*1024} sc1")
    for mt in range(2): A(f"global_load_dwordx4 v[{XV+8+4*mt}:{XV+11+4*mt}], v{XA+mt}, s[{S_B}:{S_B+1}] sc1")
    for i in range(11):
        A(f"s_waitcnt vmcnt({12-i})")
        A(f"ds_write_b128 v{YW}, v[{YL+4*i}:{YL+4*i+3}] offset:{i*1024}")
    A("s_waitcnt lgkmcnt(0)"); A("s_barrier")
    fr = [(mt, j) for j in range(22) for mt in range(2)]
    def rd(i): mt, j = fr[i]; return f"ds_read_b128 v[{YB+4*(i&7)}:{YB+4*(i&7)+3}], v{L16} offset:{(mt*22+j)*1024}"
    for i in range(7): A(rd(i))
    unpack(A, GB, GB + 8, 4)
    for i, (mt, j) in enumerate(fr):
        A(f"s_waitcnt lgkmcnt({min(6, 43-i)})")
        for nt in range(2):
            ac = AC + 8 * mt + 4 * nt
            A(f"v_mfma_f32_16x16x32_bf16 v[{ac}:{ac+3}], {a((j*2+nt)*4, 4)}, v[{YB+4*(i&7)}:{YB+4*(i&7)+3}], " + ("0" if j == 0 else f"v[{ac}:{ac+3}]"))
            if nt == 0 and i + 7 < 44: A(rd(i + 7))
    A("s_waitcnt vmcnt(0)")
    for mt in range(2):
        unpack(A, XV, XV + 8 + 4 * mt, 4)
        for e in range(8): A(f"v_fmac_f32 v{XV+e}, v{AC+8*mt+e}, v{GB+e}")
        for e in range(4): A(f"v_cvt_pk_bf16_f32 v{YL+4*mt+e}, v{XV+2*e}, v{XV+2*e+1}")
        A(f"global_store_dwordx4 v{XA+mt}, v[{YL+4*mt}:{YL+4*mt+3}], s[{S_C2}:{S_C2+1}]")
```

```python
P_OFF   = 0x0000000
Q_OFF   = 0x0040000
FLAG_OFF= 0x0050000
KMFLAG  = FLAG_OFF + 0x0000

MOD_OFF = 0x0078000
H1F_OFF = 0x0100000
REC_OFF = 0x0400000
REC_SZ  = 0x8000
R_KX, R_VX, R_QX, R_KM, R_VM = 0x0, 0x2000, 0x4000, 0x6000, 0x7000
TST_OFF = 0x00E0000
KA = dict(x=0, mem0=8, Wq=16, Wk=24, Wv=32, Wo=40, seglen=48, Bx=56, w_in=64, w_sp=72, b_sp=80, w_out=88, c=96, w_mod=104, out=112, dbg=120, ws=128)
DBG_XCNT = 0
DBG_TEAM = 16
DBG_TINIT= 17
DBG_WCNT = 18
DBG_FAIL = 20
DBG_TIME = 24
PARTFLAG= FLAG_OFF + 0x12000
H2FLAG  = FLAG_OFF + 0x16000
ZFLAG   = FLAG_OFF + 0x17000
YFLAG   = FLAG_OFF + 0x19000
MODFLAG = FLAG_OFF + 0x1A000
H1FLAG  = FLAG_OFF + 0x1A400
TINITF  = FLAG_OFF + 0x1A800
FAILW   = FLAG_OFF + 0x1AC00
QKVFLAG = FLAG_OFF + 0x1C000
FLAG_END= FLAG_OFF + 0x20000
PART_OFF= 0x4800000
X1_OFF  = 0x6800000
H2F_OFF = 0x6A00000
Z1F_OFF = 0x6C00000
UF_OFF  = 0x7000000
STAT_OFF= 0x7400000
YF_OFF  = 0x7500000
S_NONCE, S_CONF, S_WIDX, S_XCC = 97, 98, 99, 100
```

```python
from asm import *
from layout import *
from team import S_WS, S_DBG, S_RANK, S_WAVE, S_T, S_SPIN, np_f32_bits
LOG2E = 1.4426950408889634
from flags import wait_flags, set_flag

def unpack(A, dst, src, n):
    for i in range(n):
        A(f"v_lshlrev_b32 v{dst+2*i}, 16, v{src+i}")
        A(f"v_and_b32 v{dst+2*i+1}, 0xffff0000, v{src+i}")

def gen_mod(A, s_idx, coh="sc1", confirm=None, flag=False):
    T = S_T
    A(f"s_load_dwordx2 s[{T}:{T+1}], s[0:1], {KA['c']}")
    A(f"s_load_dwordx2 s[{T+2}:{T+3}], s[0:1], {KA['w_mod']}")
    A("v_lshrrev_b32 v1, 2, v0")
    A("v_and_b32 v2, 3, v0")
    A("v_lshlrev_b32 v3, 4, v1")
    A(f"s_mov_b32 s{T+4}, {8*6144}")
    A(f"v_mul_lo_u32 v4, v1, s{T+4}")
    A("v_lshl_add_u32 v4, v2, 4, v4")
    A(f"s_lshl_b32 s{T+5}, s{s_idx}, 6")
    A(f"v_add_u32 v4, s{T+5}, v4")
    A("s_waitcnt lgkmcnt(0)")
    A(f"global_load_dwordx4 v[8:11], v3, s[{T}:{T+1}]")
    for r in range(8):
        A(f"global_load_dwordx4 v[{16+4*r}:{19+4*r}], v4, s[{T+2}:{T+3}]")
        if r < 7: A("v_add_u32 v4, 6144, v4")
    A("s_waitcnt vmcnt(8)")
    unpack(A, 48, 8, 4)
    for i in range(8):
        A(f"v_mul_f32 v{56+i}, {np_f32_bits(-LOG2E):#x}, v{48+i}")
        A(f"v_exp_f32 v{56+i}, v{56+i}")
        A(f"v_add_f32 v{56+i}, 1.0, v{56+i}")
        A(f"v_rcp_f32 v{56+i}, v{56+i}")
        A(f"v_mul_f32 v{48+i}, v{48+i}, v{56+i}")
    for i in range(4): A(f"v_cvt_pk_bf16_f32 v{8+i}, v{48+2*i}, v{49+2*i}")
    unpack(A, 48, 8, 4)
    for i in range(8): A(f"v_mov_b32 v{64+i}, 0")
    for r in range(8):
        A(f"s_waitcnt vmcnt({7-r})")
        unpack(A, 56, 16 + 4 * r, 4)
        for i in range(8): A(f"v_fmac_f32 v{64+i}, v{48+r}, v{56+i}")
    A("v_lshlrev_b32 v5, 5, v0")
    A("ds_write_b128 v5, v[64:67]"); A("ds_write_b128 v5, v[68:71] offset:16")
    A("s_waitcnt lgkmcnt(0)"); A("s_barrier")
    A("v_and_b32 v6, 31, v0"); A("v_lshrrev_b32 v7, 5, v0")
    A("v_lshlrev_b32 v5, 10, v7"); A("v_lshl_add_u32 v5, v6, 2, v5")
    for r in range(8): A(f"ds_read_b32 v{16+r}, v5 offset:{r*128}")
    A("s_waitcnt lgkmcnt(0)")
    for r in range(1, 8): A(f"v_add_f32 v16, v16, v{16+r}")
    A("v_lshlrev_b32 v5, 2, v0")
    A("ds_write_b32 v5, v16 offset:8192")
    A("s_waitcnt lgkmcnt(0)"); A("s_barrier")
    if confirm: confirm()
    L = A.newlabel("Lmod")
    A(f"s_cmp_lg_u32 s{S_WAVE}, 0"); A(f"s_cbranch_scc1 {L}")
    A("v_lshlrev_b32 v5, 2, v6")
    for r in range(8): A(f"ds_read_b32 v{16+r}, v5 offset:{8192 + r*128}")
    A("s_waitcnt lgkmcnt(0)")
    for r in range(1, 8): A(f"v_add_f32 v16, v16, v{16+r}")
    A("v_cvt_pk_bf16_f32 v16, v16, v16")
    A(f"s_lshr_b32 s{T+6}, s{s_idx}, 4")
    A(f"s_cmp_eq_u32 s{T+6}, 1"); A(f"s_cselect_b32 s{T+7}, 1.0, 0")
    A(f"s_cmp_eq_u32 s{T+6}, 4"); A(f"s_cselect_b32 s{T+7}, 1.0, s{T+7}")
    A("v_and_b32 v16, 0xffff0000, v16")
    A(f"v_add_f32 v16, s{T+7}, v16")
    A("v_cvt_pk_bf16_f32 v16, v16, v16")
    A("v_lshlrev_b32 v5, 1, v6")
    A(f"s_add_u32 s{T+5}, s{T+5}, {MOD_OFF}")
    A(f"v_add_u32 v5, s{T+5}, v5")
    A("s_mov_b64 exec, 0xffffffff")
    A(f"global_store_short v5, v16, s[{S_WS}:{S_WS+1}] {coh}")
    A("s_mov_b64 exec, -1")
    if flag:
        A(f"s_lshl_b32 s{T+5}, s{s_idx}, 2"); A(f"s_add_u32 s{T+5}, s{T+5}, {MODFLAG}")
        A(f"v_mov_b32 v5, s{T+5}")
        set_flag(A, S_WS, 0, 5, 6)
    A.label(L)

def xreduce8(A, x, t, op="v_add_f32"):
    A(f"{op}_dpp v{x}, v{x}, v{x} row_ror:8 row_mask:0xf bank_mask:0xf")
    A(f"v_mov_b32 v{t}, v{x}")
    A(f"v_permlane16_swap_b32 v{x}, v{t}")
    A(f"{op} v{x}, v{x}, v{t}")
    A(f"v_mov_b32 v{t}, v{x}")
    A(f"v_permlane32_swap_b32 v{x}, v{t}")
    A(f"{op} v{x}, v{x}, v{t}")

def gen_ln_core(A, X, t, n=64):
    A(f"v_add_f32 v{t}, v{X}, v{X+1}")
    A(f"v_add_f32 v{t+1}, v{X+2}, v{X+3}")
    for i in range(4, n, 2):
        A(f"v_add_f32 v{t}, v{t}, v{X+i}"); A(f"v_add_f32 v{t+1}, v{t+1}, v{X+i+1}")
    A(f"v_add_f32 v{t}, v{t}, v{t+1}")
    xreduce8(A, t, t + 1)
    A(f"v_mul_f32 v{t}, {np_f32_bits(1.0/512):#x}, v{t}")
    for i in range(n): A(f"v_sub_f32 v{X+i}, v{X+i}, v{t}")
    A(f"v_mul_f32 v{t}, v{X}, v{X}"); A(f"v_mul_f32 v{t+1}, v{X+1}, v{X+1}")
    for i in range(2, n, 2):
        A(f"v_fmac_f32 v{t}, v{X+i}, v{X+i}"); A(f"v_fmac_f32 v{t+1}, v{X+i+1}, v{X+i+1}")
    A(f"v_add_f32 v{t}, v{t}, v{t+1}")
    xreduce8(A, t, t + 1)
    A(f"v_mov_b32 v{t+1}, {np_f32_bits(1e-5):#x}")
    A(f"v_fmac_f32 v{t+1}, {np_f32_bits(1.0/512):#x}, v{t}")
    A(f"v_rsq_f32 v{t}, v{t+1}")

def gen_ln1(A, s_grp, wait_mod=None, coh="sc1", flag=False):
    T = S_T
    X, RAW, MS, MA, t = 64, 16, 128, 160, 8
    A(f"s_load_dwordx2 s[{T}:{T+1}], s[0:1], {KA['x']}")
    A("v_and_b32 v1, 63, v0"); A("v_and_b32 v2, 7, v1"); A("v_lshrrev_b32 v3, 3, v1")
    A("v_lshlrev_b32 v4, 10, v2"); A("v_lshl_add_u32 v4, v3, 4, v4")
    A(f"s_lshl_b32 s{T+2}, s{s_grp}, 13")
    A(f"v_add_u32 v4, s{T+2}, v4")
    A("s_waitcnt lgkmcnt(0)")
    for i in range(8): A(f"global_load_dwordx4 v[{RAW+4*i}:{RAW+4*i+3}], v4, s[{T}:{T+1}] offset:{i*128}")
    A("v_lshrrev_b32 v5, 1, v3"); A("v_lshlrev_b32 v5, 10, v5")
    A("v_and_b32 v6, 1, v3"); A("v_lshl_add_u32 v5, v6, 9, v5")
    A("v_lshl_add_u32 v5, v2, 4, v5")
    A(f"s_lshr_b32 s{T+3}, s{s_grp}, 2"); A(f"s_lshl_b32 s{T+3}, s{T+3}, 15")
    A(f"s_and_b32 s{T+4}, s{s_grp}, 3"); A(f"s_lshl_b32 s{T+4}, s{T+4}, 7")
    A(f"s_add_u32 s{T+3}, s{T+3}, s{T+4}"); A(f"s_add_u32 s{T+3}, s{T+3}, {H1F_OFF}")
    A(f"v_add_u32 v5, s{T+3}, v5")
    A("v_lshlrev_b32 v6, 4, v3"); A(f"v_add_u32 v6, {MOD_OFF}, v6")
    for i in range(8):
        A(f"s_waitcnt vmcnt({7-i})")
        unpack(A, X + 8 * i, RAW + 4 * i, 4)
    gen_ln_core(A, X, t)
    if wait_mod: wait_mod()
    for i in range(8):
        A(f"global_load_dwordx4 v[{MA+4*i}:{MA+4*i+3}], v6, s[{S_WS}:{S_WS+1}] offset:{i*128} {coh}")
        A(f"global_load_dwordx4 v[{MS+4*i}:{MS+4*i+3}], v6, s[{S_WS}:{S_WS+1}] offset:{1024 + i*128} {coh}")
    for i in range(64): A(f"v_mul_f32 v{X+i}, v{X+i}, v{t}")
    for i in range(8):
        A(f"s_waitcnt vmcnt({14-2*i + i})") if False else A(f"s_waitcnt vmcnt({14 - 2*i + i})")
        unpack(A, RAW, MA + 4 * i, 4); unpack(A, RAW + 8, MS + 4 * i, 4)
        for e in range(8): A(f"v_fma_f32 v{X+8*i+e}, v{X+8*i+e}, v{RAW+8+e}, v{RAW+e}")
        for e in range(4): A(f"v_cvt_pk_bf16_f32 v{MA+4*i+e}, v{X+8*i+2*e}, v{X+8*i+2*e+1}")
        A(f"global_store_dwordx4 v5, v[{MA+4*i}:{MA+4*i+3}], s[{S_WS}:{S_WS+1}] {coh}")
        if i < 7: A("v_add_u32 v5, 4096, v5")
    if flag:
        A(f"s_lshl_b32 s{T+5}, s{s_grp}, 2"); A(f"s_add_u32 s{T+5}, s{T+5}, {H1FLAG}")
        A(f"v_mov_b32 v5, s{T+5}")
        set_flag(A, S_WS, 0, 5, 6)
```

```python
from asm import *
from layout import *
from flags import wait_flags, set_flag
from team import S_WS, S_DBG, S_RANK, S_WAVE, S_T, S_SPIN

ACC, WF = 128, 64
V_TR, V_DS, V_HL, V_SK, V_SQ, V_PK = 8, 12, 13, 14, 15, 32
S_QF = 74
S_W, S_H, S_REC, S_M0B, S_SLOT, S_NW = 64, 66, 68, 70, 71, 72
NSLOT = 5

def gen_qkv_setup(A):
    T = S_T
    A("v_and_b32 v1, 63, v0")
    A("v_lshrrev_b32 v2, 5, v1"); A("v_lshlrev_b32 v2, 11, v2")
    A("v_bfe_u32 v3, v1, 2, 2"); A("v_lshl_add_u32 v2, v3, 8, v2")
    A("v_bfe_u32 v4, v1, 4, 1"); A("v_lshl_add_u32 v2, v4, 5, v2")
    A("v_and_b32 v4, 3, v1"); A("v_lshl_add_u32 v2, v4, 3, v2")
    for nt in range(4):
        A(f"v_xor_b32 v4, {nt}, v3"); A(f"v_lshl_add_u32 v{V_TR+nt}, v4, 6, v2")
    A("v_lshrrev_b32 v2, 4, v1"); A("v_xor_b32 v4, v3, v2")
    A("v_lshlrev_b32 v2, 13, v2"); A("v_lshl_add_u32 v2, v4, 6, v2")
    A("v_and_b32 v4, 3, v1"); A("v_lshl_add_u32 v2, v4, 4, v2")
    A(f"s_lshl_b32 s{T}, s{S_WAVE}, 15")
    A(f"v_add_u32 v{V_DS}, s{T}, v2")
    A(f"s_lshl_b32 s{S_M0B}, s{S_WAVE}, 10")
    A(f"v_lshlrev_b32 v2, 4, v1"); A(f"s_lshl_b32 s{T}, s{S_WAVE}, 16"); A(f"v_add_u32 v{V_HL}, s{T}, v2")
    A("v_bfe_u32 v2, v1, 3, 1"); A("v_lshlrev_b32 v2, 12, v2")
    A("v_lshrrev_b32 v3, 5, v1"); A("v_lshl_add_u32 v2, v3, 8, v2")
    A("v_bfe_u32 v4, v1, 4, 1"); A("v_lshl_add_u32 v2, v4, 7, v2")
    A("v_and_b32 v4, 7, v1"); A(f"v_lshl_add_u32 v{V_SK}, v4, 4, v2")
    A("v_and_b32 v4, 15, v1"); A("v_lshlrev_b32 v4, 4, v4"); A(f"v_lshl_add_u32 v{V_SQ}, v3, 8, v4")
    A("v_bfe_u32 v16, v1, 4, 1")

def dma_group(A, sw, g, slot_sreg_or_const):
    T = S_T
    for i in range(8):
        A(f"s_add_u32 m0, s{S_SLOT}, {i*4096}")
        A(f"v_add_u32 v{2+(i&1)}, {(128*g + 16*i)*8192}, v{V_DS}")
        A(f"global_load_lds_dwordx4 v{2+(i&1)}, s[{sw}:{sw+1}]")

def gen_chunk(A, mat, first, has_next, coh="sc1", prev=None):
    T = S_T
    for i in range(0, 128, 2): A(f"v_mov_b64 v[{ACC+i}:{ACC+i+1}], 0")
    for g in range(4):
        slot = (A.ring + g) % NSLOT
        A(f"s_waitcnt vmcnt({A.pend[g]})")
        if g == 1 and prev is not None:
            set_flag(A, S_QF, "kvq".index(prev) * 16, 17, 18, wait=f"s_waitcnt vmcnt({8 if has_next else 0})")
        A("s_barrier")
        if has_next and (g > 0 or True):
            ng = g if True else None
        base = slot * 32768
        for nt in range(4): A(f"v_add_u32 v{24+nt}, {base}, v{V_TR+nt}")
        def rd(ks, buf):
            L = []
            for nt in range(4):
                L.append(f"ds_read_b64_tr_b16 v[{WF+16*buf+4*nt}:{WF+16*buf+4*nt+1}], v{24+nt} offset:{ks*4096}")
                L.append(f"ds_read_b64_tr_b16 v[{WF+16*buf+4*nt+2}:{WF+16*buf+4*nt+3}], v{24+nt} offset:{ks*4096+1024}")
            return L
        for x in rd(0, 0): A(x)
        extra = []
        if has_next:
            ns = (A.ring + 4 + g) % NSLOT
            for i in range(8):
                extra.append(f"s_add_u32 m0, s{S_M0B}, {ns*32768 + i*4096}\nv_add_u32 v{2+(i&1)}, {(128*g + 16*i)*8192}, v{V_DS}\nglobal_load_lds_dwordx4 v{2+(i&1)}, s[{S_NW}:{S_NW+1}]")
        for ks in range(8):
            buf = ks & 1
            nxt = rd(ks + 1, buf ^ 1) if ks < 7 else []
            A(f"s_waitcnt lgkmcnt(0)")
            kk = 8 * g + ks
            for j in range(8):
                tt, nt = j >> 2, j & 3
                acc = ACC + 16 * (4 * tt + nt)
                h = a((kk * 2 + tt) * 4, 4); w = v(WF + 16 * buf + 4 * nt, 4)
                ops = (h, w) if mat == "v" else (w, h)
                A(f"v_mfma_f32_32x32x16_bf16 v[{acc}:{acc+15}], {ops[0]}, {ops[1]}, v[{acc}:{acc+15}]")
                if nxt and j < 4: A(nxt[2 * j]); A(nxt[2 * j + 1])
                if j == 5 and extra: A(extra.pop(0))
    A.ring = (A.ring + 4) % NSLOT
    off = {"k": R_KX, "v": R_VX, "q": R_QX}[mat]
    if mat == "k": A(f"v_mov_b32 v28, v{V_SK}")
    else: A(f"v_lshl_add_u32 v28, v16, {12 if mat == 'q' else 10}, v{V_SQ}")
    A(f"v_add_u32 v28, {off}, v28")
    A(f"v_add_u32 v29, {REC_SZ}, v28")
    if mat == "v": A("v_add_u32 v30, 4096, v28"); A("v_add_u32 v31, 4096, v29")
    n = 0
    for tt in range(2):
        for nt in range(4):
            acc = ACC + 16 * (4 * tt + nt)
            pk = V_PK + 8 * (n & 1); n += 1
            for e in range(8): A(f"v_cvt_pk_bf16_f32 v{pk+e}, v{acc+2*e}, v{acc+2*e+1}")
            if mat == "v": ar, o = 28 + tt + 2 * (nt >> 1), (nt & 1) * 2048
            else: ar, o = 28 + tt, nt * 1024
            A(f"global_store_dwordx4 v{ar}, v[{pk}:{pk+3}], s[{S_REC}:{S_REC+1}] offset:{o} {coh}")
            A(f"global_store_dwordx4 v{ar}, v[{pk+4}:{pk+7}], s[{S_REC}:{S_REC+1}] offset:{o+512} {coh}")

def gen_unit(A, s_blk, s_head, mats=("k", "v", "q"), coh="sc1", flags=False, fail=None, confirm=None):
    T = S_T
    A(f"s_load_dwordx4 s[{T}:{T+3}], s[0:1], {KA['Wq']}")
    A(f"s_load_dwordx2 s[{T+4}:{T+5}], s[0:1], {KA['Wv']}")
    A(f"s_lshl_b32 s{T+6}, s{s_blk}, 18")
    A(f"s_add_u32 s{S_H}, s{S_WS}, {H1F_OFF}"); A(f"s_addc_u32 s{S_H+1}, s{S_WS+1}, 0")
    A(f"s_add_u32 s{S_H}, s{S_H}, s{T+6}"); A(f"s_addc_u32 s{S_H+1}, s{S_H+1}, 0")
    A(f"s_lshl_b32 s{T+7}, s{s_head}, 21"); A(f"s_add_u32 s{T+7}, s{T+7}, s{T+6}")
    A(f"s_lshl_b32 s{T+8}, s{S_WAVE}, 16"); A(f"s_add_u32 s{T+7}, s{T+7}, s{T+8}")
    A(f"s_add_u32 s{T+7}, s{T+7}, {REC_OFF}")
    A(f"s_add_u32 s{S_REC}, s{S_WS}, s{T+7}"); A(f"s_addc_u32 s{S_REC+1}, s{S_WS+1}, 0")
    A(f"s_lshl_b32 s{T+8}, s{s_head}, 8")
    A("s_waitcnt lgkmcnt(0)")
    for m in range(3):
        A(f"s_add_u32 s{T+2*m}, s{T+2*m}, s{T+8}"); A(f"s_addc_u32 s{T+2*m+1}, s{T+2*m+1}, 0")
    wp = {"q": T, "k": T + 2, "v": T + 4}
    A.ring = 0
    A("s_barrier")
    if flags:
        for g in range(4):
            A(f"s_add_u32 s{S_SLOT}, s{S_M0B}, {g*32768}")
            dma_group(A, wp[mats[0]], g, None)
        if confirm: confirm()
        A(f"s_lshl_b32 s{T+9}, s{s_head}, 9"); A(f"s_lshl_b32 s{T+10}, s{s_blk}, 6"); A(f"s_add_u32 s{T+9}, s{T+9}, s{T+10}")
        A(f"s_lshl_b32 s{T+10}, s{S_WAVE}, 2"); A(f"s_add_u32 s{T+9}, s{T+9}, s{T+10}"); A(f"s_add_u32 s{T+9}, s{T+9}, {QKVFLAG}")
        A(f"s_add_u32 s{S_QF}, s{S_WS}, s{T+9}"); A(f"s_addc_u32 s{S_QF+1}, s{S_WS+1}, 0")
        A("v_mov_b32 v17, 0")
        A(f"s_lshl_b32 s{T+9}, s{s_blk}, 7"); A(f"s_lshl_b32 s{T+10}, s{S_WAVE}, 5"); A(f"s_add_u32 s{T+9}, s{T+9}, s{T+10}"); A(f"s_add_u32 s{T+9}, s{T+9}, {H1FLAG}")
        A("v_and_b32 v2, 63, v0"); A("v_lshlrev_b32 v2, 2, v2"); A(f"v_add_u32 v2, s{T+9}, v2")
        wait_flags(A, S_WS, 2, 8, fail, 3)
    for g in range(4):
        if not flags:
            A(f"s_add_u32 s{S_SLOT}, s{S_M0B}, {g*32768}")
            dma_group(A, wp[mats[0]], g, None)
        for ks in range(8 * g, 8 * g + 8):
            if ks % 4 == 0: A(f"v_add_u32 v4, {ks*1024}, v{V_HL}"); A(f"v_add_u32 v5, {ks*1024 + 32768}, v{V_HL}")
            for tt in range(2):
                A(f"global_load_dwordx4 {a((ks*2+tt)*4, 4)}, v{4+tt}, s[{S_H}:{S_H+1}] offset:{(ks%4)*1024} {coh}")
        if not flags:
            if g == 1: A("s_waitcnt vmcnt(24)")
            if g == 2: A("s_waitcnt vmcnt(24)")
        elif g == 2: A("s_waitcnt vmcnt(32)")
    for ci, mat in enumerate(mats):
        has_next = ci + 1 < len(mats)
        if has_next: A(f"s_mov_b64 s[{S_NW}:{S_NW+1}], s[{wp[mats[ci+1]]}:{wp[mats[ci+1]]+1}]")
        nx = 8 if has_next else 0
        if ci == 0: A.pend = [48, 32 + nx, 16 + 2 * nx, 3 * nx] if flags else [48, 48 + nx, 24 + 2 * nx, 3 * nx]
        else: A.pend = [24 + 16, 16 + 16 + nx, 8 + 16 + 2 * nx, 16 + 3 * nx]
        A.pend = [min(p, 63) for p in A.pend]
        gen_chunk(A, mat, ci == 0, has_next, coh, prev=(mats[ci - 1] if flags and ci > 0 else None))
    if flags: set_flag(A, S_QF, "kvq".index(mats[-1]) * 16, 17, 18)
```

```python
from asm import *
from layout import *
from team import S_WS, S_DBG, S_RANK, S_WAVE, S_T, S_SPIN, np_f32_bits
from pre import unpack, xreduce8, LOG2E
from attn import wait_flags, set_flag
S_A, S_B, S_C2, S_D, S_E, S_F, S_SEG = 64, 66, 68, 70, 72, 74, 76

def mkbase(A, dst, const, parts, src=S_WS):
    T = S_T
    A(f"s_add_u32 s{dst}, s{src}, {const}"); A(f"s_addc_u32 s{dst+1}, s{src+1}, 0")
    for sr, sh in parts:
        A(f"s_lshl_b32 s{T+11}, s{sr}, {sh}"); A(f"s_add_u32 s{dst}, s{dst}, s{T+11}"); A(f"s_addc_u32 s{dst+1}, s{dst+1}, 0")
def adv(A, lst):
    for b, inc in lst: A(f"s_add_u32 s{b}, s{b}, {inc}"); A(f"s_addc_u32 s{b+1}, s{b+1}, 0")

def wait_mod(A, fail, t0, t1):
    A(f"v_and_b32 v{t0}, 63, v0"); A(f"v_lshlrev_b32 v{t0}, 2, v{t0}"); A(f"v_add_u32 v{t0}, {MODFLAG}, v{t0}")
    wait_flags(A, S_WS, t0, 64, fail, t1)
    A(f"v_add_u32 v{t0}, 256, v{t0}")
    wait_flags(A, S_WS, t0, 32, fail, t1)

def gen_red(A, s_gam, s_phase, NR, fail, check=True):
    T = S_T
    PA, XA, HA, FA, LW, LR = 1, 2, 3, 4, 5, 6
    GA, SB, CB, XV, AC, RAW, t = 16, 32, 48, 64, 80, 96, 8
    XR = 224
    C10, C01 = 12, 13
    A(f"s_load_dwordx2 s[{T}:{T+1}], s[0:1], {KA['x']}")
    ln, r8, c, t0, t1 = 96, 97, 98, 99, 100
    A(f"v_and_b32 v{ln}, 63, v0"); A(f"v_and_b32 v{r8}, 7, v{ln}"); A(f"v_lshrrev_b32 v{c}, 3, v{ln}")
    A(f"v_lshlrev_b32 v{PA}, 9, v{c}"); A(f"v_lshl_add_u32 v{PA}, v{r8}, 4, v{PA}")
    A(f"v_lshrrev_b32 v{t0}, 2, v{c}"); A(f"v_lshlrev_b32 v{t0}, 6, v{t0}")
    A(f"v_bfe_u32 v{t1}, v{c}, 1, 1"); A(f"v_lshl_add_u32 v{t0}, v{t1}, 5, v{t0}")
    A(f"v_and_b32 v{t1}, 1, v{c}"); A(f"v_lshl_add_u32 v{t0}, v{t1}, 3, v{t0}")
    A(f"s_lshl_b32 s{T+2}, s{S_WAVE}, 8"); A(f"v_add_u32 v{t0}, s{T+2}, v{t0}")
    A(f"v_lshl_add_u32 v{XA}, v{r8}, 10, v{t0}")
    A(f"v_add_u32 v{t0}, {MOD_OFF + 2048}, v{t0}")
    if check: wait_mod(A, fail, t1, t1 + 1)
    for k, (dst, row) in enumerate(((GA, 2), (SB, 3), (CB, 4))):
        for i in range(2):
            for hf in range(2):
                A(f"global_load_dwordx2 v[{RAW+8+8*k+4*i+2*hf}:{RAW+9+8*k+4*i+2*hf}], v{t0}, s[{S_WS}:{S_WS+1}] offset:{(row-2)*1024 + i*128 + hf*16} sc1")
    A(f"v_lshrrev_b32 v{t1}, 2, v{r8}"); A(f"v_lshlrev_b32 v{HA}, 14, v{t1}")
    A(f"v_lshrrev_b32 v{t1}, 2, v{c}"); A(f"v_lshl_add_u32 v{HA}, v{t1}, 10, v{HA}")
    A(f"v_and_b32 v{t1}, 3, v{c}"); A(f"v_lshl_add_u32 v{HA}, v{t1}, 8, v{HA}")
    A(f"v_and_b32 v{t1}, 3, v{r8}"); A(f"v_lshl_add_u32 v{HA}, v{t1}, 4, v{HA}")
    A(f"v_lshlrev_b32 v{FA}, 2, v{ln}")
    A(f"v_lshlrev_b32 v{LR}, 4, v{r8}")
    A(f"s_lshl_b32 s{T+3}, s{S_WAVE}, 2"); A(f"v_lshl_add_u32 v{LW}, v{r8}, 4, s{T+3}")
    A(f"v_mov_b32 v{C10}, 0x3f80"); A(f"v_mov_b32 v{C01}, 0x3f800000")
    A("s_waitcnt lgkmcnt(0)")
    mkbase(A, S_A, PART_OFF, [(s_phase, 19), (S_WAVE, 13), (s_gam, 7)])
    mkbase(A, S_B, 0, [(s_phase, 15), (s_gam, 13)], src=T)
    mkbase(A, S_C2, X1_OFF, [(s_phase, 15), (s_gam, 13)])
    mkbase(A, S_D, H2F_OFF, [(s_phase, 15), (S_WAVE, 12), (s_gam, 6)])
    mkbase(A, S_E, PARTFLAG, [(s_phase, 8)])
    mkbase(A, S_F, H2FLAG, [(s_phase, 6), (s_gam, 4), (S_WAVE, 2)])
    A("s_waitcnt vmcnt(0)")
    for k, dst in enumerate((GA, SB, CB)): unpack(A, dst, RAW + 8 + 8 * k, 8)
    A(f"s_mov_b32 s{S_SEG}, s{s_phase}")
    LOOP = A.newlabel("Lr")
    A.label(LOOP)
    for i in range(2):
        for hf in range(2): A(f"global_load_dwordx2 v[{XR+4*i+2*hf}:{XR+4*i+2*hf+1}], v{XA}, s[{S_B}:{S_B+1}] offset:{i*128+hf*16}")
    if check: wait_flags(A, S_E, FA, 64, fail, t)
    A(f"v_mov_b32 v{t}, v{PA}")
    for p in range(16):
        A(f"global_load_dwordx4 v[{RAW+8*p}:{RAW+8*p+3}], v{t}, s[{S_A}:{S_A+1}] sc1")
        A(f"v_add_u32 v{t+1}, 4096, v{t}")
        A(f"global_load_dwordx4 v[{RAW+8*p+4}:{RAW+8*p+7}], v{t+1}, s[{S_A}:{S_A+1}] sc1")
        if p < 15: A(f"v_add_u32 v{t}, 0x8000, v{t}")
    for i in range(16): A(f"v_mov_b32 v{AC+i}, 0")
    A("s_waitcnt vmcnt(32)")
    unpack(A, XV, XR, 8)
    for p in range(16):
        A(f"s_waitcnt vmcnt({30-2*p})")
        for e in range(8):
            A(f"v_dot2c_f32_bf16 v{AC+2*e}, v{RAW+8*p+e}, v{C10}")
            A(f"v_dot2c_f32_bf16 v{AC+2*e+1}, v{RAW+8*p+e}, v{C01}")
    for i in range(16): A(f"v_fmac_f32 v{XV+i}, v{AC+i}, v{GA+i}")
    for i in range(8): A(f"v_cvt_pk_bf16_f32 v{XR+i}, v{XV+2*i}, v{XV+2*i+1}")
    unpack(A, XV, XR, 8)
    for i in range(2):
        for hf in range(2): A(f"global_store_dwordx2 v{XA}, v[{XR+4*i+2*hf}:{XR+4*i+2*hf+1}], s[{S_C2}:{S_C2+1}] offset:{i*128+hf*16} sc1")
    def wgsum(off):
        xreduce8(A, t, t + 1)
        A(f"ds_write_b32 v{LW}, v{t} offset:{off}")
        A("s_waitcnt lgkmcnt(0)"); A("s_barrier")
        A(f"ds_read_b128 v[{AC}:{AC+3}], v{LR} offset:{off}")
        A("s_waitcnt lgkmcnt(0)")
        A(f"v_add_f32 v{t}, v{AC}, v{AC+1}"); A(f"v_add_f32 v{t+1}, v{AC+2}, v{AC+3}"); A(f"v_add_f32 v{t}, v{t}, v{t+1}")
    A(f"v_add_f32 v{t}, v{XV}, v{XV+1}"); A(f"v_add_f32 v{t+1}, v{XV+2}, v{XV+3}")
    for i in range(4, 16, 2): A(f"v_add_f32 v{t}, v{t}, v{XV+i}"); A(f"v_add_f32 v{t+1}, v{t+1}, v{XV+i+1}")
    A(f"v_add_f32 v{t}, v{t}, v{t+1}")
    wgsum(0)
    A(f"v_mul_f32 v{t}, {np_f32_bits(1.0/512):#x}, v{t}")
    for i in range(16): A(f"v_sub_f32 v{XV+i}, v{XV+i}, v{t}")
    A(f"v_mul_f32 v{t}, v{XV}, v{XV}"); A(f"v_mul_f32 v{t+1}, v{XV+1}, v{XV+1}")
    for i in range(2, 16, 2): A(f"v_fmac_f32 v{t}, v{XV+i}, v{XV+i}"); A(f"v_fmac_f32 v{t+1}, v{XV+i+1}, v{XV+i+1}")
    A(f"v_add_f32 v{t}, v{t}, v{t+1}")
    wgsum(128)
    A(f"v_mov_b32 v{t+1}, {np_f32_bits(1e-5):#x}")
    A(f"v_fmac_f32 v{t+1}, {np_f32_bits(1.0/512):#x}, v{t}")
    A(f"v_rsq_f32 v{t}, v{t+1}")
    for i in range(16): A(f"v_mul_f32 v{XV+i}, v{XV+i}, v{t}")
    for i in range(16): A(f"v_fma_f32 v{XV+i}, v{XV+i}, v{CB+i}, v{SB+i}")
    for i in range(8): A(f"v_cvt_pk_bf16_f32 v{AC+i}, v{XV+2*i}, v{XV+2*i+1}")
    A(f"global_store_dwordx4 v{HA}, v[{AC}:{AC+3}], s[{S_D}:{S_D+1}] sc1")
    A(f"global_store_dwordx4 v{HA}, v[{AC+4}:{AC+7}], s[{S_D}:{S_D+1}] offset:2048 sc1")
    set_flag(A, S_F, 0, FA, t)
    adv(A, [(S_A, NR << 19), (S_B, NR << 15), (S_C2, NR << 15), (S_D, NR << 15), (S_E, NR << 8), (S_F, NR << 6)])
    A(f"s_add_u32 s{S_SEG}, s{S_SEG}, {NR}")
    A(f"s_cmp_lt_u32 s{S_SEG}, 64"); A(f"s_cbranch_scc1 {LOOP}")

def load_w16(A, sw, pitch, nks, rows_fn, ntile, dst_fn, lds_base_sreg, tmp, rowmax=None, inter=False):
    ln, a0, a1, src, TR0 = tmp, tmp + 1, tmp + 2, tmp + 3, tmp + 4
    rb = 32 * ntile
    upr = rb // 16
    rpi = 64 // upr
    A(f"v_and_b32 v{ln}, 63, v0")
    d1 = rows_fn(1, 0) - rows_fn(0, 0); d2 = rows_fn(2, 0) - rows_fn(0, 0); sec = rows_fn(0, 4) - rows_fn(0, 0)
    assert rows_fn(3, 0) == d1 + d2
    A(f"v_bfe_u32 v{a0}, v{ln}, 4, 1"); A(f"v_mul_u32_u24 v{a0}, {d1}, v{a0}")
    A(f"v_bfe_u32 v{a1}, v{ln}, 5, 1"); A(f"v_mul_u32_u24 v{a1}, {d2}, v{a1}"); A(f"v_add_u32 v{a0}, v{a0}, v{a1}")
    A(f"v_bfe_u32 v{a1}, v{ln}, 2, 2"); A(f"v_add_u32 v{a0}, v{a0}, v{a1}")
    A(f"v_mul_u32_u24 v{a0}, {rb}, v{a0}")
    A(f"v_and_b32 v{a1}, 3, v{ln}"); A(f"v_lshl_add_u32 v{a0}, v{a1}, {4 if inter else 3}, v{a0}")
    A(f"v_add_u32 v{TR0}, s{lds_base_sreg}, v{a0}")
    A(f"v_lshrrev_b32 v{a0}, {upr.bit_length()-1}, v{ln}")
    A(f"v_and_b32 v{a1}, {upr-1}, v{ln}"); A(f"v_lshlrev_b32 v{src}, 4, v{a1}")
    A(f"s_mov_b32 s{S_T+12}, {pitch}")
    ninstr = 32 * nks // rpi
    CH = 32
    done = 0
    while done < ninstr:
        n = min(CH, ninstr - done)
        for i in range(n):
            A(f"s_add_u32 m0, s{lds_base_sreg}, {i*1024}")
            A(f"v_add_u32 v{a1}, {(done+i)*rpi}, v{a0}")
            if rowmax is not None: A(f"v_min_u32 v{a1}, {rowmax}, v{a1}")
            A(f"v_mad_u32_u24 v{a1}, v{a1}, s{S_T+12}, v{src}")
            A(f"global_load_lds_dwordx4 v{a1}, s[{sw}:{sw+1}]")
        A("s_waitcnt vmcnt(0)")
        ks0 = done * rpi // 32
        for ks in range(n * rpi // 32):
            for nt in range(ntile):
                pre, b = dst_fn(nt, ks0 + ks)
                o = ks * 32 * rb + nt * (8 if inter else 32)
                A(f"ds_read_b64_tr_b16 {rng(pre, b, 2)}, v{TR0} offset:{o}")
                A(f"ds_read_b64_tr_b16 {rng(pre, b+2, 2)}, v{TR0} offset:{o + sec*rb}")
        A("s_waitcnt lgkmcnt(0)")
        done += n

def sigma(g, e): return 16 * (g // 2) + 4 * (g % 2) + (e % 4) + 8 * (e // 4)

def gelu(A, x, t, n):
    k0 = 2 * 0.7978845608028654 * LOG2E; k1 = k0 * 0.044715
    for i in range(n): A(f"v_mul_f32 v{t+i}, v{x+i}, v{x+i}")
    for i in range(n): A(f"v_fma_f32 v{t+i}, v{t+i}, s{S_T+14}, v{t+n}")
    for i in range(n): A(f"v_mul_f32 v{t+i}, v{t+i}, v{x+i}")
    for i in range(n): A(f"v_exp_f32 v{t+i}, -v{t+i}")
    for i in range(n): A(f"v_add_f32 v{t+i}, 1.0, v{t+i}")
    for i in range(n): A(f"v_rcp_f32 v{t+i}, v{t+i}")
    for i in range(n): A(f"v_mul_f32 v{x+i}, v{x+i}, v{t+i}")
    return k0, k1

def gen_z(A, s_zi, s_phase, NZ, fail, check=True):
    T = S_T
    L16, FA, HW, SW, SR = 1, 2, 3, 4, 5
    WF, HB, AC, t, ST, HL = 64, 128, 16, 24, 40, 160
    LDS_H, LDS_S = 0, 0x8000
    A(f"s_load_dwordx2 s[{T}:{T+1}], s[0:1], {KA['w_in']}")
    A(f"s_lshl_b32 s{T+2}, s{s_zi}, 2"); A(f"s_add_u32 s{T+2}, s{T+2}, s{S_WAVE}")
    A(f"s_min_u32 s{T+3}, s{T+2}, 85"); A(f"s_lshl_b32 s{T+3}, s{T+3}, 5")
    A(f"s_lshl_b32 s{T+4}, s{S_WAVE}, 15")
    A("s_waitcnt lgkmcnt(0)")
    A(f"s_add_u32 s{T}, s{T}, s{T+3}"); A(f"s_addc_u32 s{T+1}, s{T+1}, 0")
    A("s_barrier")
    load_w16(A, T, 2752, 16, sigma, 1, lambda nt, ks: ("v", WF + 4 * ks), T + 4, 16)
    A("s_barrier")
    A("v_and_b32 v16, 63, v0")
    A(f"v_lshlrev_b32 v{L16}, 4, v16"); A(f"v_lshlrev_b32 v{FA}, 2, v16")
    A(f"s_lshl_b32 s{T+5}, s{S_WAVE}, 13"); A(f"v_add_u32 v{HW}, s{T+5}, v{L16}")
    A(f"v_lshrrev_b32 v17, 4, v16"); A(f"v_lshlrev_b32 v17, 6, v17"); A(f"s_lshl_b32 s{T+6}, s{S_WAVE}, 8"); A(f"s_add_u32 s{T+6}, s{T+6}, {LDS_S}")
    A(f"v_add_u32 v{SW}, s{T+6}, v17")
    A(f"v_add_u32 v{SR}, {LDS_S}, v{FA}")
    mkbase(A, S_A, H2F_OFF, [(s_phase, 15)])
    A(f"s_mov_b32 s{T+7}, {UF_OFF - 43*1024}")
    A(f"s_cmp_lt_u32 s{T+2}, 43")
    A(f"s_cselect_b32 s{T+7}, {Z1F_OFF}, s{T+7}")
    A(f"s_cselect_b32 s{T+13}, 1, 0")
    A(f"s_min_u32 s{T+8}, s{T+2}, 86"); A(f"s_lshl_b32 s{T+8}, s{T+8}, 10"); A(f"s_add_u32 s{T+7}, s{T+7}, s{T+8}")
    A(f"s_mul_i32 s{T+8}, s{s_phase}, {44*1024}"); A(f"s_add_u32 s{T+7}, s{T+7}, s{T+8}")
    A(f"s_add_u32 s{S_B}, s{S_WS}, s{T+7}"); A(f"s_addc_u32 s{S_B+1}, s{S_WS+1}, 0")
    mkbase(A, S_C2, STAT_OFF - 10 * 256, [(s_phase, 12), (s_zi, 8)])
    mkbase(A, S_E, H2FLAG, [(s_phase, 6)])
    mkbase(A, S_F, ZFLAG, [(s_phase, 7), (s_zi, 2)])
    k0 = 2 * 0.7978845608028654 * LOG2E; k1 = k0 * 0.044715
    A(f"s_mov_b32 s{T+14}, {np_f32_bits(k1):#x}")
    A(f"v_mov_b32 v{t+8}, {np_f32_bits(k0):#x}")
    A(f"s_cmp_lt_u32 s{T+2}, 86"); A(f"s_cselect_b32 s{T+15}, 0, 1"); A(f"s_or_b32 s{T+15}, s{T+15}, s{T+13}")
    A(f"s_mov_b32 s{S_SEG}, s{s_phase}")
    LOOP = A.newlabel("Lz")
    A.label(LOOP)
    if check: wait_flags(A, S_E, FA, 16, fail, t)
    A(f"v_add_u32 v{t}, 4096, v{HW}")
    for i in range(8): A(f"global_load_dwordx4 v[{HL+4*i}:{HL+4*i+3}], v{HW if i < 4 else t}, s[{S_A}:{S_A+1}] offset:{(i&3)*1024} sc1")
    for i in range(8):
        A(f"s_waitcnt vmcnt({7-i})")
        A(f"ds_write_b128 v{HW}, v[{HL+4*i}:{HL+4*i+3}] offset:{i*1024}")
    A("s_waitcnt lgkmcnt(0)"); A("s_barrier")
    LZ2 = A.newlabel("Lz2"); LG = A.newlabel("Lzg")
    def mm(z1):
        fr = [(mt, ks) for ks in range(16) for mt in range(2)]
        def rd(i): mt, ks = fr[i]; return f"ds_read_b128 v[{HB+4*(i&7)}:{HB+4*(i&7)+3}], v{L16} offset:{mt*16384 + ks*1024}"
        for i in range(7): A(rd(i))
        for i, (mt, ks) in enumerate(fr):
            A(f"s_waitcnt lgkmcnt({min(6, 31-i)})")
            h = v(HB + 4 * (i & 7), 4); w = v(WF + 4 * ks, 4)
            ops = (w, h) if z1 else (h, w)
            A(f"v_mfma_f32_16x16x32_bf16 v[{AC+4*mt}:{AC+4*mt+3}], {ops[0]}, {ops[1]}, " + ("0" if ks == 0 else f"v[{AC+4*mt}:{AC+4*mt+3}]"))
            if i + 7 < 32: A(rd(i + 7))
    A(f"s_cmp_eq_u32 s{T+13}, 0"); A(f"s_cbranch_scc1 {LZ2}")
    mm(True); A(f"s_branch {LG}")
    A.label(LZ2); mm(False)
    A.label(LG)
    A("s_nop 7")
    for i in range(4): A(f"v_cvt_pk_bf16_f32 v{ST+i}, v{AC+2*i}, v{AC+2*i+1}")
    unpack(A, AC, ST, 4)
    gelu(A, AC, t, 8)
    for i in range(4): A(f"v_cvt_pk_bf16_f32 v{HL+i}, v{AC+2*i}, v{AC+2*i+1}")
    A(f"global_store_dwordx4 v{L16}, v[{HL}:{HL+3}], s[{S_B}:{S_B+1}] sc1")
    for i in range(8): A(f"v_mov_b32 v{ST+2*i}, v{AC+i}"); A(f"v_mul_f32 v{ST+2*i+1}, v{AC+i}, v{AC+i}")
    for sh in (8, 4, 2, 1):
        for i in range(16): A(f"v_add_f32_dpp v{ST+i}, v{ST+i}, v{ST+i} row_ror:{sh} row_mask:0xf bank_mask:0xf")
    LN = A.newlabel("Lzn")
    A(f"s_cmp_eq_u32 s{T+15}, 0"); A(f"s_cbranch_scc1 {LN}")
    A.skip_begin()
    for i in range(0, 16, 2): A(f"v_mov_b64 v[{ST+i}:{ST+i+1}], 0")
    A.skip_end()
    A.label(LN)
    for i in range(4): A(f"ds_write_b128 v{SW}, v[{ST+4*i}:{ST+4*i+3}] offset:{16*i}")
    A("s_waitcnt vmcnt(0) lgkmcnt(0)"); A("s_barrier")
    LE = A.newlabel("Lze")
    A(f"s_cmp_lg_u32 s{S_WAVE}, 0"); A(f"s_cbranch_scc1 {LE}")
    LF = A.newlabel("Lzf")
    A(f"s_cmp_lt_u32 s{s_zi}, 10"); A(f"s_cbranch_scc1 {LF}")
    for i in range(4): A(f"ds_read_b32 v{ST+i}, v{SR} offset:{256*i}")
    A("s_waitcnt lgkmcnt(0)")
    A(f"v_add_f32 v{ST}, v{ST}, v{ST+1}"); A(f"v_add_f32 v{ST+2}, v{ST+2}, v{ST+3}"); A(f"v_add_f32 v{ST}, v{ST}, v{ST+2}")
    A(f"global_store_dword v{FA}, v{ST}, s[{S_C2}:{S_C2+1}] sc1")
    A.label(LF)
    set_flag(A, S_F, 0, FA, t)
    A.label(LE)
    adv(A, [(S_A, NZ << 15), (S_B, NZ * 44 * 1024), (S_C2, NZ << 12), (S_E, NZ << 6), (S_F, NZ << 7)])
    A(f"s_add_u32 s{S_SEG}, s{S_SEG}, {NZ}")
    A(f"s_cmp_lt_u32 s{S_SEG}, 64"); A(f"s_cbranch_scc1 {LOOP}")
```

```python
from asm import *
from layout import *
from flags import wait_flags, set_flag
import math

IDX, L16, MEMW, MR1, MR2, MR3, XW, XR0, XR1, OW, OR_, WL, SPARE, PST, QST, QLD = range(16)
JUNK2 = 20
JUNK = 103
WL0, WL1 = 30, 31
RA, RB, RC, RD, RE, RF = 16, 48, 80, 96, 104, 120
LDS_MEM, LDS_KX, LDS_X, LDS_O, LDS_MISC, LDS_W = 0x0, 0x2000, 0x6000, 0x7000, 0x7A00, 0x8000
LDS_SEL = 0x7C00
OS = 288
S_WS, S_DBG, S_RANK, S_WAVE, S_STEP, S_TAG = 4, 6, 8, 9, 10, 11
S_P0, S_P1, S_PL0, S_PL1, S_Q0, S_Q1 = 12, 14, 16, 18, 20, 22
S_KX, S_VX, S_KM, S_VM, S_C, S_QMASK = 24, 26, 28, 30, 32, 34
S_KMF, S_KVF = 36, 38
S_T = 40
S_SPIN = 60
S_CKM = 58
S_VMI = 59
S_KXB = 61
S_T0 = 62

def piece_list():
    L = []
    for i in range(8):
        L.append(("q", i)); L.append(("k", i))
    for i in range(8): L.append(("v", i))
    for u in range(2):
        for j in range(2):
            for pp in range(2): L.append(("o", u, j, pp))
    return L
LDS_PIECES = [("q", 1), ("k", 1), ("q", 2), ("k", 2), ("q", 3), ("o", 1, 0, 0), ("o", 1, 0, 1), ("o", 1, 1, 0)]
REG_PIECES = [p for p in piece_list() if p not in LDS_PIECES]
assert len(REG_PIECES) == 24
def octet_reg(k):
    return ("v", 128 + 8 * k) if k < 16 else ("a", 8 * (k - 16))
OCT = {}
for i, p in enumerate(REG_PIECES):
    OCT[(p, 0)] = octet_reg(2 * i); OCT[(p, 1)] = octet_reg(2 * i + 1)
LSLOT = {p: i for i, p in enumerate(LDS_PIECES)}

def tr_octet(A, dst, slot, t):
    pre, b = dst
    for r in range(4):
        A(f"ds_read_b64_tr_b16 {rng(pre, b + 2 * r, 2)}, v{WL0 + (r & 1)} offset:{slot * 4096 + t * 512 + (r >> 1) * 2048}")

def gen_team(A, fail_label, done_label, standalone=True, nsteps=64, d1=0, d2=0, timing=False, nopub=0, nokv=False, tslot=0, vsplit=(2,2,8,4), qdepth=1, qgap=0, pdepth=1, d3=0, qmask=True, wov=1, confirm=None, stampw=None):
    T = S_T
    NST = 8
    def stamp(k):
        if timing == 2: A(f"s_memtime s[{64+2*k}:{65+2*k}]")
    def accum():
        if timing == 2:
            for k in range(1, NST):
                A(f"s_sub_u32 s{96}, s{64+2*k}, s{64+2*(k-1)}")
                A(f"s_add_u32 s{80+k}, s{80+k}, s{96}")
            A(f"s_sub_u32 s96, s90, s{64+2*(NST-1)}"); A("s_add_u32 s88, s88, s96")
            LS = A.newlabel("Lsnap")
            A(f"s_cmp_lg_u32 s{S_STEP}, 31"); A(f"s_cbranch_scc1 {LS}")
            for k in range(NST): A(f"v_writelane_b32 v{JUNK2}, s{64+2*k}, {k}")
            A(f"v_writelane_b32 v{JUNK2}, s90, 8")
            A(f"s_lshl_b32 s96, s{S_RANK}, 2"); A(f"s_add_u32 s96, s96, s{S_WAVE}"); A("s_lshl_b32 s96, s96, 6"); A(f"s_add_u32 s96, s96, {TST_OFF + 0x1000 + tslot * 0x2000}")
            A(f"v_lshrrev_b32 v{JUNK2+1}, 2, v{L16}"); A(f"v_add_u32 v{JUNK2+1}, s96, v{JUNK2+1}")
            A("s_mov_b64 exec, 0xffff")
            A(f"global_store_dword v{JUNK2+1}, v{JUNK2}, s[{S_WS}:{S_WS+1}]")
            A("s_mov_b64 exec, -1")
            A.label(LS)
            A("s_mov_b64 s[64:65], s[90:91]")
    ln, n_, g_, t0, t1, t2, t3 = RA, RA + 1, RA + 2, RA + 3, RA + 4, RA + 5, RA + 6
    DSRC, DSRO = RA + 8, RA + 9
    A(f"v_and_b32 v{ln}, 63, v0")
    A(f"v_and_b32 v{n_}, 15, v{ln}")
    A(f"v_lshrrev_b32 v{g_}, 4, v{ln}")
    A(f"s_load_dwordx4 s[{T}:{T+3}], s[0:1], {KA['Wq']}")
    A(f"s_load_dwordx4 s[{T+4}:{T+7}], s[0:1], {KA['Wv']}")
    A(f"s_load_dwordx2 s[{T+8}:{T+9}], s[0:1], {KA['mem0']}")
    A(f"v_bfe_u32 v{t0}, v{ln}, 4, 1")
    A(f"v_bfe_u32 v{t1}, v{ln}, 3, 1")
    A(f"v_xor_b32 v{t1}, v{t1}, v{t0}")
    A(f"v_bfe_u32 v{t2}, v{ln}, 2, 1")
    A(f"v_bfe_u32 v{t3}, v{ln}, 1, 1")
    A(f"v_lshl_add_u32 v{t3}, v{t1}, 1, v{t3}")
    A(f"v_lshl_add_u32 v{t3}, v{t2}, 2, v{t3}")
    A(f"v_lshl_add_u32 v{t3}, v{t0}, 3, v{t3}")
    A(f"v_lshrrev_b32 v{t0}, 5, v{ln}")
    A(f"v_and_b32 v{t1}, 1, v{ln}")
    A(f"v_lshlrev_b32 v{t0}, 5, v{t0}")
    A(f"v_lshl_add_u32 v{t0}, v{t1}, 4, v{t0}")
    A(f"v_lshl_add_u32 v{DSRC}, v{t3}, 13, v{t0}")
    A(f"v_lshl_add_u32 v{DSRO}, v{t3}, 10, v{t0}")
    A(f"v_bfe_u32 v{t0}, v{ln}, 5, 1")
    A(f"v_lshlrev_b32 v{t0}, 10, v{t0}")
    A(f"v_bfe_u32 v{t1}, v{ln}, 3, 1")
    A(f"v_lshl_add_u32 v{t0}, v{t1}, 8, v{t0}")
    A(f"v_lshl_add_u32 v{t0}, v{t1}, 7, v{t0}")
    A(f"v_bfe_u32 v{t1}, v{ln}, 4, 1")
    A(f"v_lshl_add_u32 v{t0}, v{t1}, 6, v{t0}")
    A(f"v_bfe_u32 v{t1}, v{ln}, 2, 1")
    A(f"v_lshl_add_u32 v{t0}, v{t1}, 5, v{t0}")
    A(f"v_and_b32 v{t1}, 3, v{ln}")
    A(f"v_lshl_add_u32 v{t0}, v{t1}, 3, v{t0}")
    A(f"s_lshl_b32 s{T+10}, s{S_WAVE}, 15")
    A(f"s_add_u32 s{T+10}, s{T+10}, {LDS_W}")
    A(f"v_add_u32 v{WL0}, s{T+10}, v{t0}")
    A(f"v_xor_b32 v{WL1}, 128, v{WL0}")
    A("s_waitcnt lgkmcnt(0)")
    A(f"s_lshl_b32 s{T+11}, s{S_RANK}, 8")
    A(f"s_lshl_b32 s{T+12}, s{S_WAVE}, 6")
    A(f"s_add_u32 s{T+11}, s{T+11}, s{T+12}")
    for m in range(3):
        A(f"s_add_u32 s{T+2*m}, s{T+2*m}, s{T+11}")
        A(f"s_addc_u32 s{T+2*m+1}, s{T+2*m+1}, 0")
    A(f"s_lshl_b32 s{T+11}, s{S_RANK}, 17")
    A(f"s_lshl_b32 s{T+12}, s{S_WAVE}, 7")
    A(f"s_add_u32 s{T+11}, s{T+11}, s{T+12}")
    A(f"s_add_u32 s{T+6}, s{T+6}, s{T+11}")
    A(f"s_addc_u32 s{T+7}, s{T+7}, 0")
    for i in range(4):
        A(f"s_add_u32 s{T+12+i}, s{S_WAVE}, {i}")
        A(f"s_and_b32 s{T+12+i}, s{T+12+i}, 3")
        A(f"s_lshl_b32 s{T+12+i}, s{T+12+i}, 19")
    VT = RA + 10
    def dma_piece(p, slot):
        for i in range(4):
            A(f"s_add_u32 m0, s{T+10}, {slot * 4096 + i * 1024}")
            if p[0] in "qkv":
                mi = "qkv".index(p[0]); sl = p[1]
                A(f"s_add_u32 s{T+16}, s{T+12+(sl & 3)}, {(sl >> 2) * (4 << 19) + i * 16 * 8192}")
                A(f"v_add_u32 v{VT + (i & 1)}, s{T+16}, v{DSRC}")
                A(f"global_load_lds_dwordx4 v{VT + (i & 1)}, s[{T+2*mi}:{T+2*mi+1}]")
            else:
                _, u, j, pp = p
                A(f"v_add_u32 v{VT + (i & 1)}, {(64 * j + 16 * i) * 1024 + u * 512 + pp * 64}, v{DSRO}")
                A(f"global_load_lds_dwordx4 v{VT + (i & 1)}, s[{T+6}:{T+7}]")
    order = REG_PIECES + LDS_PIECES
    for i in range(8): dma_piece(order[i], i)
    A(f"v_lshlrev_b32 v{L16}, 4, v{ln}")
    A(f"s_lshl_b32 s{T+16}, s{S_WAVE}, 10")
    A(f"v_add_u32 v{MEMW}, s{T+16}, v{L16}")
    for i in (1, 2, 3):
        A(f"s_lshr_b32 s{T+17}, s{T+12+i}, 9")
        A(f"v_add_u32 v{MR1+i-1}, s{T+17}, v{L16}")
    A(f"v_bfe_u32 v{t0}, v{ln}, 1, 1")
    A(f"v_mul_u32_u24 v{t0}, 0xAAAA, v{t0}")
    A(f"v_add_u32 v{IDX}, 0x4444, v{t0}")
    A(f"v_lshrrev_b32 v{t0}, 2, v{n_}")
    A(f"v_xor_b32 v{t0}, v{t0}, v{g_}")
    A(f"v_lshlrev_b32 v{t0}, 3, v{t0}")
    A(f"v_lshl_add_u32 v{t0}, v{n_}, 5, v{t0}")
    A(f"s_add_u32 s{T+17}, s{T+16}, {LDS_X}")
    A(f"v_add_u32 v{XW}, s{T+17}, v{t0}")
    A(f"v_bfe_u32 v{t0}, v{ln}, 5, 1")
    A(f"v_lshlrev_b32 v{t0}, 4, v{t0}")
    A(f"v_bfe_u32 v{t1}, v{ln}, 4, 1")
    A(f"v_lshl_add_u32 v{t0}, v{t1}, 2, v{t0}")
    A(f"v_lshrrev_b32 v{t2}, 2, v{n_}")
    A(f"v_add_u32 v{t0}, v{t0}, v{t2}")
    A(f"v_and_b32 v{t2}, 3, v{ln}")
    A(f"v_xor_b32 v{t2}, v{t2}, v{t1}")
    A(f"v_lshlrev_b32 v{t2}, 3, v{t2}")
    A(f"v_lshl_add_u32 v{t0}, v{t0}, 5, v{t2}")
    A(f"v_add_u32 v{XR0}, {LDS_X}, v{t0}")
    A(f"v_xor_b32 v{t0}, 16, v{t0}")
    A(f"v_add_u32 v{XR1}, {LDS_X + 256}, v{t0}")
    A(f"v_lshrrev_b32 v{t0}, 2, v{n_}")
    A(f"v_and_b32 v{t1}, 1, v{n_}")
    A(f"v_lshl_add_u32 v{t0}, v{t0}, 1, v{t1}")
    A(f"v_mul_u32_u24 v{t1}, {OS}, v{t0}")
    A(f"v_lshl_add_u32 v{t2}, v{g_}, 3, v{t1}")
    A(f"s_lshl_b32 s{T+17}, s{S_WAVE}, 6")
    A(f"s_add_u32 s{T+17}, s{T+17}, {LDS_O}")
    A(f"v_add_u32 v{OW}, s{T+17}, v{t2}")
    A(f"v_bfe_u32 v{t3}, v{ln}, 1, 1")
    A(f"v_cmp_eq_u32 vcc, 0, v{t3}")
    A(f"v_lshlrev_b32 v{t3}, 2, v{ln}")
    A(f"v_add_u32 v{t3}, {LDS_MISC + 64}, v{t3}")
    A(f"v_and_b32 v{t3}, -8, v{t3}")
    A(f"v_cndmask_b32 v{OW}, v{OW}, v{t3}, vcc")
    A(f"v_lshl_add_u32 v{t2}, v{g_}, 5, v{t1}")
    A(f"v_bfe_u32 v{t3}, v{ln}, 1, 1")
    A(f"v_lshl_add_u32 v{t2}, v{t3}, 4, v{t2}")
    A(f"v_add_u32 v{OR_}, {LDS_O}, v{t2}")
    M0A = RA + 12
    A(f"v_lshlrev_b32 v{t0}, 10, v{t0}")
    A(f"v_lshl_add_u32 v{t0}, v{g_}, 5, v{t0}")
    A(f"v_lshl_add_u32 v{t0}, v{t3}, 4, v{t0}")
    A(f"s_lshl_b32 s{T+17}, s{S_WAVE}, 7")
    A(f"v_add_u32 v{M0A}, s{T+17}, v{t0}")
    A(f"v_lshlrev_b32 v{t0}, 13, v{g_}")
    A(f"v_lshl_add_u32 v{t0}, v{n_}, 4, v{t0}")
    A(f"s_lshl_b32 s{T+17}, s{S_WAVE}, 15")
    A(f"s_lshl_b32 s{T+18}, s{S_RANK}, 8")
    A(f"s_add_u32 s{T+17}, s{T+17}, s{T+18}")
    A(f"v_add_u32 v{PST}, s{T+17}, v{t0}")
    A(f"v_and_b32 v{t0}, 7, v{ln}")
    A(f"v_lshlrev_b32 v{t0}, 5, v{t0}")
    A(f"v_lshl_add_u32 v{t0}, v{g_}, 3, v{t0}")
    A(f"s_lshl_b32 s{T+17}, s{S_RANK}, 8")
    A(f"v_add_u32 v{QST}, s{T+17}, v{t0}")
    A(f"v_lshrrev_b32 v{t0}, 2, v{n_}")
    A(f"v_lshlrev_b32 v{t0}, 8, v{t0}")
    A(f"v_lshl_add_u32 v{t0}, v{g_}, 6, v{t0}")
    A(f"v_and_b32 v{t1}, 1, v{ln}")
    A(f"v_lshl_add_u32 v{t0}, v{t1}, 5, v{t0}")
    A(f"v_bfe_u32 v{t1}, v{ln}, 1, 1")
    A(f"v_lshl_add_u32 v{t0}, v{t1}, 4, v{t0}")
    A(f"v_add_u32 v{QLD}, s{T+16}, v{t0}")
    def base(dst, off_const, sreg=None, shift=0):
        A(f"s_add_u32 s{dst}, s{S_WS}, {off_const}")
        A(f"s_addc_u32 s{dst+1}, s{S_WS+1}, 0")
        if sreg is not None:
            A(f"s_lshl_b32 s{T+17}, s{sreg}, {shift}")
            A(f"s_add_u32 s{dst}, s{dst}, s{T+17}")
            A(f"s_addc_u32 s{dst+1}, s{dst+1}, 0")
    base(S_P0, P_OFF); base(S_P1, P_OFF + 0x20000)
    base(S_PL0, P_OFF, S_RANK, 13); base(S_PL1, P_OFF + 4096, S_RANK, 13)
    base(S_Q0, Q_OFF); base(S_Q1, Q_OFF + 4096)
    base(S_KX, REC_OFF + R_KX, S_RANK, 21); base(S_VX, REC_OFF + R_VX, S_RANK, 21)
    base(S_KM, REC_OFF + R_KM, S_RANK, 21); base(S_VM, REC_OFF + R_VM, S_RANK, 21)
    A(f"s_lshl_b32 s{T+18}, s{S_RANK}, 9")
    A(f"s_add_u32 s{T+18}, s{T+18}, s{S_WAVE}")
    base(S_KMF, KMFLAG, T + 18, 2)
    base(S_KVF, QKVFLAG, S_RANK, 9)
    A(f"s_lshl_b32 s{T+17}, s{S_WAVE}, 11")
    for b in (S_KX, S_VX):
        A(f"s_add_u32 s{b}, s{b}, s{T+17}"); A(f"s_addc_u32 s{b+1}, s{b+1}, 0")
    A(f"s_lshl_b32 s{T+17}, s{S_WAVE}, 10")
    A(f"s_add_u32 s{S_KM}, s{S_KM}, s{T+17}"); A(f"s_addc_u32 s{S_KM+1}, s{S_KM+1}, 0")
    A(f"v_add_u32 v{WL}, s{T+10}, v{L16}")
    A(f"v_lshlrev_b32 v{SPARE}, 1, v{L16}")
    A(f"v_add_u32 v{SPARE}, {2*REC_SZ}, v{SPARE}")
    A(f"v_and_b32 v{t0}, 7, v{ln}")
    for i in range(4):
        A(f"v_cmp_eq_u32 vcc, {2*i}, v{t0}")
        A(f"v_mov_b32 v{t1}, 0x3f80")
        A(f"v_cndmask_b32 v{RB+4+i}, 0, v{t1}, vcc")
        A(f"v_cmp_eq_u32 vcc, {2*i+1}, v{t0}")
        A(f"v_mov_b32 v{t1}, 0x3f800000")
        A(f"v_cndmask_b32 v{RB+4+i}, v{RB+4+i}, v{t1}, vcc")
    A(f"ds_write_b128 v{L16}, v[{RB+4}:{RB+7}] offset:{LDS_SEL}")
    A(f"s_lshl_b32 s{T+17}, s{S_WAVE}, 10")
    A(f"s_add_u32 s{S_VM}, s{S_VM}, s{T+17}"); A(f"s_addc_u32 s{S_VM+1}, s{S_VM+1}, 0")
    cval = np_f32_bits(128 ** -0.5 * math.log2(math.e))
    A(f"s_mov_b32 s{S_C}, {cval:#x}"); A(f"s_mov_b32 s{S_C+1}, {cval:#x}")
    A(f"s_mov_b32 s{S_QMASK}, 0x00ff00ff"); A(f"s_mov_b32 s{S_QMASK+1}, 0x00ff00ff")
    if confirm: confirm()
    Z = RB
    for i in range(4): A(f"v_mov_b32 v{Z+i}, 0")
    A(f"global_store_dwordx4 v{MEMW}, v[{Z}:{Z+3}], s[{S_PL0}:{S_PL0+1}]")
    A(f"global_store_dwordx4 v{MEMW}, v[{Z}:{Z+3}], s[{S_PL1}:{S_PL1+1}]")
    A(f"global_store_dwordx2 v{QST}, v[{Z}:{Z+1}], s[{S_Q0}:{S_Q0+1}]")
    NX = 3
    for i in range(24):
        newer = 4 * 7 + (NX if i < 8 else 0)
        A(f"s_waitcnt vmcnt({newer})")
        p = order[i]
        tr_octet(A, OCT[(p, 0)], i % 8, 0)
        tr_octet(A, OCT[(p, 1)], i % 8, 1)
        A("s_waitcnt lgkmcnt(0)")
        dma_piece(order[i + 8], i % 8)
        if i == 8:
            A(f"s_lshl_b32 s{T+17}, s{S_RANK}, 4"); A(f"s_lshl_b32 s{T+18}, s{S_WAVE}, 2"); A(f"s_add_u32 s{T+17}, s{T+17}, s{T+18}"); A(f"s_add_u32 s{T+17}, s{T+17}, {TINITF}")
            A(f"v_mov_b32 v{t1}, s{T+17}")
            set_flag(A, S_WS, 0, t1, t0, wait="s_nop 0")
    for i in range(8):
        A(f"s_waitcnt vmcnt({4*(7-i)})")
        tr_octet(A, ("v", RB), i, 0); tr_octet(A, ("v", RB + 8), i, 1)
        A("s_waitcnt lgkmcnt(0)")
        for r in range(4): A(f"ds_write_b128 v{WL}, v[{RB+4*r}:{RB+4*r+3}] offset:{i*4096 + r*1024}")
    if stampw: stampw(1)
    if not standalone:
        A(f"v_lshrrev_b32 v{t1}, 2, v{L16}")
        wait_flags(A, S_KVF, t1, 8, fail_label, t0)
    A(f"s_lshl_b32 s{T+17}, s{S_WAVE}, 11")
    A(f"s_add_u32 s{S_KXB}, s{T+17}, {LDS_KX}")
    A(f"s_mov_b32 m0, s{S_KXB}")
    A("s_nop 0")
    A(f"global_load_lds_dwordx4 v{L16}, s[{S_KX}:{S_KX+1}] sc1")
    A(f"global_load_lds_dwordx4 v{L16}, s[{S_KX}:{S_KX+1}] offset:1024 sc1")
    A(f"global_load_dwordx4 v[{RF}:{RF+3}], v{L16}, s[{S_VX}:{S_VX+1}] sc1")
    A(f"global_load_dwordx4 v[{RF+4}:{RF+7}], v{L16}, s[{S_VX}:{S_VX+1}] offset:1024 sc1")
    A(f"global_load_dwordx4 v[{RC}:{RC+3}], v{M0A}, s[{T+8}:{T+9}]")
    A(f"global_load_dwordx4 v[{RC+4}:{RC+7}], v{M0A}, s[{T+8}:{T+9}] offset:512")
    A(f"v_lshrrev_b32 v{t1}, 2, v{L16}"); A(f"v_add_u32 v{t1}, {TINITF}, v{t1}")
    wait_flags(A, S_WS, t1, 64, fail_label, t0)
    A(f"v_add_u32 v{t1}, 256, v{t1}")
    wait_flags(A, S_WS, t1, 64, fail_label, t0)
    A("s_waitcnt vmcnt(0) lgkmcnt(0)")
    for i in range(4):
        A(f"v_mov_b32 v{RA+i}, v{RC+i}"); A(f"v_mov_b32 v{RA+16+i}, v{RC+4+i}")
    A(f"s_mov_b32 s{S_STEP}, 0")
    A(f"s_mov_b32 s{S_SPIN}, 0")
    A(f"s_mov_b32 s{S_TAG}, 0")
    A(f"s_mov_b32 s{S_CKM}, 0")
    A(f"s_mov_b32 s{S_VMI}, 0")
    def wl(dst, p, t, r):
        return f"ds_read_b128 v[{dst+4*r}:{dst+4*r+3}], v{WL} offset:{LSLOT[p]*4096 + t*2048 + r*1024}"
    def wl2(dst, p, t): return [wl(dst, p, t, 0), wl(dst, p, t, 1)]
    def prefetch_qk():
        for d, p, t in ((RB, ("q", 1), 0), (RB + 8, ("k", 1), 0), (RB + 16, ("q", 2), 0), (RB + 24, ("k", 2), 0), (RE, ("q", 3), 0), (RE + 8, ("q", 1), 1)):
            for x in wl2(d, p, t): A(x)
    def zero_acc():
        for i in range(0, 16, 2): A(f"v_mov_b64 v[{RC+i}:{RC+i+1}], 0")
        for i in range(0, 8, 2): A(f"v_mov_b64 v[{RD+i}:{RD+i+1}], 0")
    prefetch_qk(); zero_acc()
    if stampw: A("s_waitcnt lgkmcnt(0)"); stampw(2)
    if timing:
        A(f"s_memtime s[{S_T0}:{S_T0+1}]"); A("s_waitcnt lgkmcnt(0)")
        for k in range(NST): A(f"s_mov_b32 s{80+k}, 0"); A(f"s_mov_b64 s[{64+2*k}:{65+2*k}], s[{S_T0}:{S_T0+1}]")
        A("s_mov_b32 s88, 0")
    A("s_barrier")
    LOOP = A.newlabel("Lteam"); FIN = A.newlabel("Lfin")
    ENTER = A.newlabel("Lent"); RETRY = A.newlabel("Lretry")
    CK, CK2 = RA + 12, RA + 13
    VP = RF
    A(f"s_branch {ENTER}")
    A.label(RETRY)
    A("s_nop 5")
    for r in (RC, RC + 2, RC + 4, RC + 6): A(f"v_mov_b64 v[{r}:{r+1}], 0")
    A(f"s_add_u32 s{S_SPIN}, s{S_SPIN}, 1"); A(f"s_cmp_gt_u32 s{S_SPIN}, 200000"); A(f"s_cbranch_scc1 {fail_label}")
    A.raw(".p2align 3")
    A.label(LOOP)
    A(f"global_load_dwordx4 v[{RA}:{RA+3}], v{QLD}, s[{S_Q0}:{S_Q0+1}] sc1")
    A(f"global_load_dwordx4 v[{RA+16}:{RA+19}], v{QLD}, s[{S_Q1}:{S_Q1+1}] sc1")
    A(f"s_waitcnt vmcnt({2*(qdepth-1)})")
    A.label(ENTER)
    QA = {0: RC + 4, 1: RC + 12}; KAa = {0: RC, 1: RC + 8}
    def wsrc(mat, slot, t):
        p = (mat, slot)
        if p in LSLOT:
            m = {(("q", 1), 0): RB, (("k", 1), 0): RB + 8, (("q", 2), 0): RB + 16, (("k", 2), 0): RB + 24, (("q", 3), 0): RE, (("q", 1), 1): RE + 8,
                 (("k", 1), 1): RB, (("q", 2), 1): RB + 8, (("k", 2), 1): RB + 16, (("q", 3), 1): RB + 24}
            return v(m[(p, t)], 8)
        pre, b = OCT[(p, t)]
        return rng(pre, b, 8)
    def smf(acc, slot, src):
        A(f"v_smfmac_f32_16x16x64_bf16 v[{acc}:{acc+3}], v[{RA+4*slot}:{RA+4*slot+3}], {src}, v{IDX}")
    def qk(mat, slot, t, *extra):
        smf((QA if mat == "q" else KAa)[t], slot, wsrc(mat, slot, t))
        for x in extra: A(x)
    vlist = [(sl, t) for sl in range(8) for t in range(2)]
    def vv(n, *extra):
        ex = list(extra)
        for _ in range(n):
            sl, t = vlist.pop(0)
            smf(RD + 4 * t, sl, wsrc("v", sl, t))
            if ex: A(ex.pop(0))
        for x in ex: A(x)
    def mr(i): return f"ds_read_b128 v[{RA+4*i}:{RA+4*i+3}], v{MR1+(i&3)-1} offset:{LDS_MEM + (i>>2)*4096}"
    def add(d, x, y): return f"v_add_f32 v{d}, v{x}, v{y}"
    def cvt(d, x): return f"v_cvt_pk_bf16_f32 v{d}, v{x}, v{x+1}"
    A(f"v_bitop3_b32 v{CK}, v{RA}, v{RA+2}, s{S_TAG} bitop3:0x7e")
    A(f"ds_write_b128 v{MEMW}, v[{RA}:{RA+3}] offset:{LDS_MEM}")
    qk("q", 0, 0, f"v_bitop3_b32 v{CK2}, v{RA+16}, v{RA+18}, s{S_TAG} bitop3:0x7e", f"ds_write_b128 v{MEMW}, v[{RA+16}:{RA+19}] offset:{LDS_MEM + 4096}",
       f"v_or_b32 v{CK}, v{CK}, v{CK2}", f"v_and_b32 v{CK}, s{S_CKM}, v{CK}")
    qk("k", 0, 0, f"v_cmp_ne_u32 vcc, 0, v{CK}", f"s_cbranch_vccnz {RETRY}")
    if timing == 2: A('s_memtime s[90:91]')
    if timing: A(f"s_lshl_b32 s96, s{S_SPIN}, 16"); A("s_add_u32 s80, s80, s96")
    A("s_waitcnt lgkmcnt(0)")
    accum()
    A("s_barrier")
    A(mr(1))
    qk("q", 0, 1, mr(2))
    qk("k", 0, 1, mr(3))
    qk("q", 4, 0, mr(5), f"s_xor_b32 s{S_TAG}, s{S_TAG}, 1", f"s_mov_b32 s{S_CKM}, 1"); qk("k", 4, 0, mr(6)); qk("q", 4, 1, mr(7))
    qk("k", 4, 1, f"s_add_u32 s{S_KX}, s{S_KX}, {REC_SZ}", f"s_addc_u32 s{S_KX+1}, s{S_KX+1}, 0", "s_waitcnt lgkmcnt(5)")
    qk("q", 1, 0, wl(RB, ("k", 1), 1, 0))
    qk("k", 1, 0, wl(RB, ("k", 1), 1, 1), "s_waitcnt lgkmcnt(6)")
    qk("q", 2, 0, wl(RB + 8, ("q", 2), 1, 0), f"s_xor_b32 m0, s{S_KXB}, 0x6000")
    qk("k", 2, 0, wl(RB + 8, ("q", 2), 1, 1), "s_waitcnt lgkmcnt(7)")
    qk("q", 3, 0, wl(RB + 16, ("k", 2), 1, 0))
    qk("k", 3, 0, wl(RB + 16, ("k", 2), 1, 1), "s_waitcnt lgkmcnt(6)")
    qk("q", 5, 0, wl(RB + 24, ("q", 3), 1, 0))
    qk("k", 5, 0, wl(RB + 24, ("q", 3), 1, 1))
    kvops = [] if nokv else [f"global_load_lds_dwordx4 v{L16}, s[{S_KX}:{S_KX+1}] sc1", f"global_load_lds_dwordx4 v{L16}, s[{S_KX}:{S_KX+1}] offset:1024 sc1",
             f"s_mov_b32 m0, {LDS_MISC + 64}\ns_nop 0\nglobal_load_lds_dword v{SPARE}, s[{S_VX}:{S_VX+1}] sc1"]
    kvops += [None] * 3
    qk("q", 6, 0, *[x for x in kvops[0:1] if x]); qk("k", 6, 0, *[x for x in kvops[1:2] if x]); qk("q", 7, 0, *[x for x in kvops[2:3] if x])
    qk("k", 7, 0, f"s_and_b32 s{T}, s{S_KXB}, 0x6000")
    PK = RE
    KXA = RE + 6
    def kx(i): return f"ds_read_b128 v[{RB+4*i}:{RB+4*i+3}], v{KXA} offset:{i*1024}"
    qk("q", 1, 1, f"v_add_u32 v{KXA}, s{T}, v{L16}", "s_waitcnt lgkmcnt(0)")
    qk("k", 1, 1, f"s_add_u32 s{S_VX}, s{S_VX}, {REC_SZ}", f"s_addc_u32 s{S_VX+1}, s{S_VX+1}, 0")
    qk("q", 2, 1, kx(0), add(KAa[0], KAa[0], KAa[0] + 2))
    qk("k", 2, 1, kx(1), add(KAa[0] + 1, KAa[0] + 1, KAa[0] + 3))
    qk("q", 3, 1, kx(2), add(QA[0], QA[0], QA[0] + 2))
    qk("k", 3, 1, kx(3), add(QA[0] + 1, QA[0] + 1, QA[0] + 3))
    qk("q", 5, 1, kx(4), cvt(PK, KAa[0]))
    qk("k", 5, 1, kx(5), cvt(PK + 1, QA[0]))
    qk("q", 6, 1, f"ds_write_b64 v{XW}, v[{PK}:{PK+1}]")
    qk("k", 6, 1, kx(6))
    qk("q", 7, 1, kx(7))
    qk("k", 7, 1)
    vv(vsplit[0])
    A(add(QA[1], QA[1], QA[1] + 2)); A(add(QA[1] + 1, QA[1] + 1, QA[1] + 3))
    A(add(KAa[1], KAa[1], KAa[1] + 2)); A(add(KAa[1] + 1, KAa[1] + 1, KAa[1] + 3))
    A(cvt(PK + 3, QA[1])); A(cvt(PK + 2, KAa[1]))
    A(f"ds_write_b64 v{XW}, v[{PK+2}:{PK+3}] offset:512")
    ex = []
    if not (nopub & 4): ex.append(f"global_store_dwordx4 v{L16}, v[{PK}:{PK+3}], s[{S_KM}:{S_KM+1}] sc1")
    vv(vsplit[1], *ex)
    stamp(1)
    A("s_waitcnt lgkmcnt(0)")
    A("s_barrier")
    xr = []
    for kb in range(4):
        xr.append(f"ds_read_b64_tr_b16 v[{RE+4*kb}:{RE+4*kb+1}], v{XR0} offset:{kb*1024}")
        xr.append(f"ds_read_b64_tr_b16 v[{RE+4*kb+2}:{RE+4*kb+3}], v{XR1} offset:{kb*1024}")
    for x in xr: A(x)
    ex = []
    if not (nopub & 2): ex += [f"v_mov_b32 v{RC+15}, s{S_NONCE}", f"s_mov_b64 exec, 1\nglobal_store_dword v{L16}, v{RC+15}, s[{S_KMF}:{S_KMF+1}] sc1\ns_mov_b64 exec, -1"]
    vv(vsplit[2], *ex)
    A(f"s_cmp_eq_u32 s{S_STEP}, {nsteps-1}"); A(f"s_cbranch_scc1 {FIN}")
    vrest = list(vlist)
    S0, S1, S2 = RC, RC + 4, RC + 8
    def mf(d, a_, b_, first, *extra):
        A(f"v_mfma_f32_16x16x32_bf16 v[{d}:{d+3}], v[{a_}:{a_+3}], v[{b_}:{b_+3}], " + ("0" if first else f"v[{d}:{d+3}]"))
        for x in extra: A(x)
    for kb in range(4):
        A(f"s_waitcnt lgkmcnt({6-2*kb})")
        mf(S0, RE + 4 * kb, RE + 4 * kb, kb == 0)
    for kb in range(4): mf(S1, RB + 4 * kb, RE + 4 * kb, kb == 0)
    M_, T_, R_ = RC + 12, RC + 13, RC + 14
    ONES, SUM = RB, RB + 4
    def z2(r): return f"v_mov_b64 v[{r}:{r+1}], 0"
    g2 = [[f"v_mov_b32 v{ONES}, 0x3f803f80", f"v_mov_b32 v{ONES+1}, 0x3f803f80"], [f"v_mov_b32 v{ONES+2}, 0x3f803f80", f"v_mov_b32 v{ONES+3}, 0x3f803f80"],
          [z2(RB + 8), z2(RB + 10)], [z2(RB + 12), f"v_max3_f32 v{M_}, v{S0}, v{S0+1}, v{S1}"]]
    for kb in range(4): mf(S2, RB + 16 + 4 * kb, RE + 4 * kb, kb == 0, *g2[kb])
    stamp(2)
    vv(vsplit[3], f"v_max3_f32 v{M_}, v{M_}, v{S1+1}, v{S1+2}", z2(RB + 14), z2(RB + 16), z2(RB + 18))
    assert not vlist
    A(f"v_max3_f32 v{M_}, v{M_}, v{S1+3}, v{S2}")
    A(f"v_max3_f32 v{M_}, v{M_}, v{S2+1}, v{S2+2}")
    A(f"v_max_f32 v{T_}, v{M_}, v{S2+3}")
    A(f"v_max_f32 v{M_}, v{M_}, v{S2+3}")
    A(wl(RA, ("o", 1, 0, 0), 0, 0)); A(wl(RA, ("o", 1, 0, 0), 0, 1))
    A(f"v_permlane32_swap_b32 v{M_}, v{T_}")
    A(f"v_max_f32 v{R_}, v{M_}, v{T_}")
    A(f"v_max_f32 v{M_}, v{M_}, v{T_}")
    A(cvt(RD, RD)); A(cvt(RD + 1, RD + 2))
    A(f"v_permlane16_swap_b32 v{M_}, v{R_}")
    A(f"v_max_f32 v{M_}, v{M_}, v{R_}")
    A(f"v_mul_f32 v{M_}, s{S_C}, v{M_}")
    for r in (S1, S1 + 2, S2, S2 + 2, S0):
        A(f"v_pk_fma_f32 v[{r}:{r+1}], v[{r}:{r+1}], s[{S_C}:{S_C+1}], v[{M_}:{M_+1}] op_sel_hi:[1,0,0] neg_lo:[0,0,1] neg_hi:[0,0,1]")
    PX, PM = RE, RE + 4
    for r in (S1, S1 + 1, S1 + 2, S1 + 3, S2, S2 + 1, S2 + 2, S2 + 3): A(f"v_exp_f32 v{r}, v{r}")
    A(cvt(PX, S1)); A(cvt(PX + 1, S1 + 2)); A(cvt(PX + 2, S2)); A(cvt(PX + 3, S2 + 2))
    OA = RE + 8
    A(f"v_exp_f32 v{S0}, v{S0}")
    A(f"v_exp_f32 v{S0+1}, v{S0+1}")
    mf(SUM, ONES, PX, True, cvt(RD + 2, RD + 4), cvt(PM, S0))
    mf(OA, RF, PX, True, cvt(PM + 1, S0), f"v_mov_b32 v{ONES+1}, 0")
    mf(OA + 4, RF + 4, PX, True, cvt(RD + 3, RD + 6), wl(RA + 8, ("o", 1, 0, 0), 1, 0))
    def mf16(d, a_, *extra):
        A(f"v_mfma_f32_16x16x16_bf16 v[{d}:{d+3}], v[{a_}:{a_+1}], v[{PM}:{PM+1}], v[{d}:{d+3}]")
        for x in extra: A(x)
    mf16(SUM, ONES, wl(RA + 8, ("o", 1, 0, 0), 1, 1), z2(RB + 20))
    mf16(OA, RD, wl(RA + 16, ("o", 1, 0, 1), 0, 0), z2(RB + 22))
    mf16(OA + 4, RD + 2, wl(RA + 16, ("o", 1, 0, 1), 0, 1))
    if not (nopub & 1): A(f"global_store_dwordx4 v{L16}, v[{RD}:{RD+3}], s[{S_VM}:{S_VM+1}] sc1")
    A(wl(RA + 24, ("o", 1, 0, 1), 1, 0)); A(wl(RA + 24, ("o", 1, 0, 1), 1, 1))
    A(f"v_rcp_f32 v{M_}, v{SUM}")
    if not nokv:
        A(f"global_load_dwordx4 v[{RF}:{RF+3}], v{L16}, s[{S_VX}:{S_VX+1}] sc1")
        A(f"global_load_dwordx4 v[{RF+4}:{RF+7}], v{L16}, s[{S_VX}:{S_VX+1}] offset:1024 sc1")
    for i in range(0, 4, 2):
        A(f"v_pk_mul_f32 v[{OA+i}:{OA+i+1}], v[{OA+i}:{OA+i+1}], v[{M_}:{M_+1}] op_sel_hi:[1,0]")
    A(cvt(OA, OA)); A(cvt(OA + 1, OA + 2))
    A(f"ds_write_b64 v{OW}, v[{OA}:{OA+1}]")
    for i in range(4, 8, 2):
        A(f"v_pk_mul_f32 v[{OA+i}:{OA+i+1}], v[{OA+i}:{OA+i+1}], v[{M_}:{M_+1}] op_sel_hi:[1,0]")
    A(cvt(OA + 2, OA + 4)); A(cvt(OA + 3, OA + 6))
    A(f"ds_write_b64 v{OW}, v[{OA+2}:{OA+3}] offset:32")
    stamp(3)
    for r in (RB, RB + 2, RB + 4, RB + 6): A(z2(r))
    A("s_waitcnt lgkmcnt(0)")
    A("s_barrier")
    OP = RE
    A(f"ds_read_b128 v[{OP}:{OP+3}], v{OR_}")
    A(f"ds_read_b128 v[{OP+4}:{OP+7}], v{OR_} offset:128")
    for x in wl2(RC, ("o", 1, 1, 0), 0) + wl2(RC + 8, ("o", 1, 1, 0), 1): A(x)
    for i in range(24, 32, 2): A(f"v_mov_b64 v[{RB+i}:{RB+i+1}], 0")
    def osrc(u, j, i):
        p = ("o", u, j, i >> 1); t = i & 1
        if p in LSLOT:
            m = {(("o", 1, 0, 0), 0): RA, (("o", 1, 0, 0), 1): RA + 8, (("o", 1, 0, 1), 0): RA + 16, (("o", 1, 0, 1), 1): RA + 24,
                 (("o", 1, 1, 0), 0): RC, (("o", 1, 1, 0), 1): RC + 8}
            return v(m[(p, t)], 8)
        pre, b = OCT[(p, t)]
        return rng(pre, b, 8)
    def wo(u, j, i, *extra):
        acc = RB + 16 * u + 4 * i
        A(f"v_smfmac_f32_16x16x64_bf16 v[{acc}:{acc+3}], v[{OP+4*j}:{OP+4*j+3}], {osrc(u, j, i)}, v{IDX}")
        for x in extra: A(x)
    PS = RE + 8
    def f0(u, i): acc = RB + 16 * u + 4 * i; return add(acc, acc, acc + 2)
    def f1(u, i): acc = RB + 16 * u + 4 * i; return add(acc + 1, acc + 1, acc + 3)
    def pack(u, i): return cvt(PS + 4 * u + i, RB + 16 * u + 4 * i)
    tag0 = f"v_and_or_b32 v{PS}, v{PS}, -2, s{S_TAG}"; tag1 = f"v_and_or_b32 v{PS+4}, v{PS+4}, -2, s{S_TAG}"
    st0 = f"global_store_dwordx4 v{PST}, v[{PS}:{PS+3}], s[{S_P0}:{S_P0+1}]"; st1 = f"global_store_dwordx4 v{PST}, v[{PS+4}:{PS+7}], s[{S_P1}:{S_P1+1}]"
    if wov == 0:
        A("s_waitcnt lgkmcnt(5)")
        for i in range(4): wo(0, 0, i)
        A("s_waitcnt lgkmcnt(4)")
        for i in range(4): wo(0, 1, i)
        wo(1, 0, 0, f0(0, 0)); wo(1, 0, 1, f1(0, 0), f0(0, 1)); wo(1, 0, 2, f1(0, 1), f0(0, 2)); wo(1, 0, 3, f1(0, 2), f0(0, 3), "s_waitcnt lgkmcnt(0)")
        wo(1, 1, 0, f1(0, 3), pack(0, 0)); wo(1, 1, 1, pack(0, 1), pack(0, 2))
        wo(1, 1, 2, pack(0, 3), tag0)
        wo(1, 1, 3, st0)
        for x in (f0(1, 0), f1(1, 0), pack(1, 0), f0(1, 1), f1(1, 1), tag1, pack(1, 1), f0(1, 2), f1(1, 2), pack(1, 2), f0(1, 3), f1(1, 3), pack(1, 3)): A(x)
        A(st1)
    else:
        A("s_waitcnt lgkmcnt(4)")
        wo(0, 0, 0); wo(0, 1, 0); wo(0, 0, 1); wo(0, 1, 1); wo(0, 0, 2); wo(0, 1, 2)
        wo(0, 0, 3, f0(0, 0), f1(0, 0)); wo(0, 1, 3, pack(0, 0), f0(0, 1))
        wo(1, 0, 2, f1(0, 1), pack(0, 1), tag0); wo(1, 1, 2, f0(0, 2), f1(0, 2))
        wo(1, 0, 3, pack(0, 2), f0(0, 3)); wo(1, 1, 3, f1(0, 3), pack(0, 3), st0, "s_waitcnt lgkmcnt(0)")
        wo(1, 0, 0, f0(1, 2)); wo(1, 1, 0, f1(1, 2), pack(1, 2))
        wo(1, 0, 1, f0(1, 3), f1(1, 3)); wo(1, 1, 1, pack(1, 3))
        for x in (f0(1, 0), f1(1, 0), pack(1, 0), tag1, f0(1, 1), f1(1, 1), pack(1, 1)): A(x)
        A(st1)
    stamp(4)
    NOTRED = A.newlabel("Lnr")
    A(f"s_cmp_lg_u32 s{S_WAVE}, 0"); A(f"s_cbranch_scc1 {NOTRED}")
    SEL, DR = RA + 4, RA + 8
    A(f"ds_read_b128 v[{SEL}:{SEL+3}], v{L16} offset:{LDS_SEL}")
    for i in range(d1): A("s_nop 7")
    A(f"s_mov_b32 s{S_SPIN}, 0")
    def ploads():
        for u in range(8):
            b = S_PL0 if u < 4 else S_PL1
            A(f"global_load_dwordx4 v[{RB+4*u}:{RB+4*u+3}], v{L16}, s[{b}:{b+1}] offset:{(u%4)*1024} sc1")
    for _ in range(pdepth - 1): ploads()
    PP = A.newlabel("Lp")
    A.label(PP)
    stamp(5)
    ploads()
    A(f"s_add_u32 s{S_SPIN}, s{S_SPIN}, 1"); A(f"s_cmp_gt_u32 s{S_SPIN}, 200000"); A(f"s_cbranch_scc1 {fail_label}")
    A("s_waitcnt lgkmcnt(0)")
    for u in range(0, 8, 2):
        A(f"s_waitcnt vmcnt({8*pdepth-2-u})")
        A(f"v_bitop3_b32 v{CK2 if u > 1 else CK}, v{RB+4*u}, v{RB+4*u+4}, s{S_TAG} bitop3:0x7e")
        mf(DR, RB + 4 * u, SEL, u == 0)
        if u > 1: A(f"v_or_b32 v{CK}, v{CK}, v{CK2}")
        mf(DR, RB + 4 * u + 4, SEL, False)
    A(f"v_and_b32 v{CK}, 1, v{CK}")
    A(f"v_cmp_ne_u32 vcc, 0, v{CK}")
    A(f"s_cbranch_vccnz {PP}")
    if timing: A(f"s_add_u32 s80, s80, s{S_SPIN}")
    A(cvt(DR, DR)); A(cvt(DR + 1, DR + 2))
    A(f"v_and_or_b32 v{DR}, v{DR}, -2, s{S_TAG}")
    if qmask: A(f"s_mov_b64 exec, s[{S_QMASK}:{S_QMASK+1}]")
    A(f"global_store_dwordx2 v{QST}, v[{DR}:{DR+1}], s[{S_Q0}:{S_Q0+1}]")
    if qmask: A("s_mov_b64 exec, -1")
    stamp(6)
    A("s_barrier")
    def tailwork():
        prefetch_qk()
        zero_acc()
        A(f"s_xor_b32 s{S_KXB}, s{S_KXB}, 0x6000")
        A(f"s_add_u32 s{S_STEP}, s{S_STEP}, 1")
        A(f"s_add_u32 s{S_KM}, s{S_KM}, {REC_SZ}"); A(f"s_addc_u32 s{S_KM+1}, s{S_KM+1}, 0")
        A(f"s_add_u32 s{S_KMF}, s{S_KMF}, 16"); A(f"s_addc_u32 s{S_KMF+1}, s{S_KMF+1}, 0")
        A(f"s_add_u32 s{S_VM}, s{S_VM}, {REC_SZ}"); A(f"s_addc_u32 s{S_VM+1}, s{S_VM+1}, 0")
        A(f"s_mov_b32 s{S_SPIN}, 0")
    def qpre():
        for _ in range(qdepth - 1):
            A(f"global_load_dwordx4 v[{RA}:{RA+3}], v{QLD}, s[{S_Q0}:{S_Q0+1}] sc1")
            A(f"global_load_dwordx4 v[{RA+16}:{RA+19}], v{QLD}, s[{S_Q1}:{S_Q1+1}] sc1")
            for _ in range(qgap): A("s_nop 7")
    if pdepth > 1: A("s_waitcnt vmcnt(1)")
    tailwork()
    for i in range(d3): A("s_nop 7")
    stamp(7)
    qpre()
    A(f"s_branch {LOOP}")
    A.label(NOTRED)
    stamp(5)
    tailwork()
    if not standalone:
        A(f"s_add_u32 s{T}, s{S_STEP}, 2"); A(f"s_lshr_b32 s{T}, s{T}, 3"); A(f"s_min_u32 s{T}, s{T}, 7"); A(f"s_lshl_b32 s{T}, s{T}, 6")
        A(f"v_lshrrev_b32 v{RA+4}, 2, v{L16}"); A(f"v_add_u32 v{RA+4}, s{T}, v{RA+4}")
        wait_flags(A, S_KVF, RA + 4, 8, fail_label, RA + 5)
        A(f"s_mov_b32 s{S_SPIN}, 0")
    A("s_barrier")
    stamp(6)
    for i in range(d2): A("s_nop 7")
    stamp(7)
    qpre()
    A(f"s_branch {LOOP}")
    A.label(FIN)
    vlist.extend(vrest); vv(len(vrest))
    A("s_nop 7")
    for x in (cvt(RD, RD), cvt(RD + 1, RD + 2), cvt(RD + 2, RD + 4), cvt(RD + 3, RD + 6)): A(x)
    A(f"global_store_dwordx4 v{L16}, v[{RD}:{RD+3}], s[{S_VM}:{S_VM+1}] sc1")
    A("s_waitcnt vmcnt(0)")
    A("s_mov_b64 exec, 1")
    A(f"v_mov_b32 v{RC+15}, s{S_NONCE}")
    A(f"global_store_dword v{L16}, v{RC+15}, s[{S_KMF}:{S_KMF+1}] offset:16 sc1")
    A("s_mov_b64 exec, -1")
    if timing:
        A(f"s_memtime s[{T}:{T+1}]"); A("s_waitcnt lgkmcnt(0)")
        A(f"s_sub_u32 s{T}, s{T}, s{S_T0}")
        A(f"v_mov_b32 v{RD}, s{T}")
        A(f"s_lshl_b32 s{T+2}, s{S_RANK}, 2")
        A(f"s_add_u32 s{T+2}, s{T+2}, {DBG_TIME*4}")
        A(f"v_mov_b32 v{RD+1}, s{T+2}")
        A("s_mov_b64 exec, 1")
        A(f"global_store_dword v{RD+1}, v{RD}, s[{S_DBG}:{S_DBG+1}]")
        LT = A.newlabel("Lt")
        A(f"s_cmp_lg_u32 s{S_RANK}, 5"); A(f"s_cbranch_scc1 {LT}")
        for k in range(12): A(f"v_mov_b32 v{RB+k}, s{80+k}")
        A(f"s_lshl_b32 s{T+2}, s{S_WAVE}, 6")
        A(f"s_add_u32 s{T+2}, s{T+2}, {TST_OFF + tslot*256}")
        A(f"v_mov_b32 v{RD+1}, s{T+2}")
        A(f"global_store_dwordx4 v{RD+1}, v[{RB}:{RB+3}], s[{S_WS}:{S_WS+1}]")
        A(f"global_store_dwordx4 v{RD+1}, v[{RB+4}:{RB+7}], s[{S_WS}:{S_WS+1}] offset:16")
        A(f"global_store_dwordx4 v{RD+1}, v[{RB+8}:{RB+11}], s[{S_WS}:{S_WS+1}] offset:32")
        A.label(LT)
    A("s_waitcnt vmcnt(0)")
    A(f"s_branch {done_label}")

def np_f32_bits(x):
    import struct
    return struct.unpack("<I", struct.pack("<f", x))[0]

def gen_wait_flag(A, sbase, off, expect, fail_label, t0, t1):
    L = A.newlabel("Lw")
    A(f"s_mov_b32 s{S_SPIN}, 0")
    A(f"v_mov_b32 v{t1}, {off}")
    A.label(L)
    A(f"global_load_dword v{t0}, v{t1}, s[{sbase}:{sbase+1}] sc1")
    A(f"s_add_u32 s{S_SPIN}, s{S_SPIN}, 1"); A(f"s_cmp_gt_u32 s{S_SPIN}, 400000"); A(f"s_cbranch_scc1 {fail_label}")
    A("s_waitcnt vmcnt(0)")
    A(f"v_cmp_gt_u32 vcc, {expect}, v{t0}") if expect <= 64 else (A(f"v_cmp_gt_u32 vcc, {expect:#x}, v{t0}"))
    A(f"s_cbranch_vccnz {L}")
```

```python
import sys
from asm import *
from layout import *
from team import gen_team, S_WS, S_DBG, S_RANK, S_WAVE, S_T, S_SPIN
from common import *
from pre import gen_mod, gen_ln1
from flags import wait_flags
from qkv import gen_qkv_setup, gen_unit
from attn import gen_attn
from rz import gen_red, gen_z
from go import gen_g, gen_o, gen_o_weights
NAME = "adaLN_cond__memory_aug_recurrent_mem_tr__mixer_gmlp__prompt_kernel"
def build(timing=0, stamps=False):
    A = Asm()
    F, D = "Lfail", "Ldone"
    T = S_T
    S_W, S_B, S_NEXT = 96, 3, 94
    def stampw(k, r=254):
        if stamps:
            L = A.newlabel("Lst")
            A(f"s_cmp_lg_u32 s{S_WAVE}, 0"); A(f"s_cbranch_scc1 {L}")
            A("s_memrealtime s[92:93]"); A("s_waitcnt lgkmcnt(0)")
            A(f"s_lshl_b32 s93, s{S_WIDX}, 5"); A(f"s_add_u32 s93, s93, {TST_OFF + 4*k}")
            A(f"v_mov_b32 v{r}, s92"); A(f"v_mov_b32 v{r+1}, s93"); A("s_mov_b64 exec, 1")
            A(f"global_store_dword v{r+1}, v{r}, s[{S_WS}:{S_WS+1}]"); A("s_mov_b64 exec, -1")
            A.label(L)
    gen_entry(A, 256, D)
    if stamps: A("s_memrealtime s[90:91]"); A("s_waitcnt lgkmcnt(0)"); A("s_mov_b32 s101, s90")
    gen_register(A)
    A.label("Lstart")
    restore_tid(A)
    conf = lambda tv: (lambda: gen_confirm(A, "Lstart", F, tv))
    A(f"s_cmp_ge_u32 s{S_WIDX}, 32"); A("s_cbranch_scc1 Lworker")
    A(f"s_mov_b32 s{S_RANK}, s{S_WIDX}")
    gen_team(A, F, "Lteamdone", standalone=False, d1=11, d2=5, d3=1, qdepth=3, qgap=2, confirm=lambda: gen_confirm(A, 'Lstart', F, 56, 0x7A00), timing=timing, stampw=(lambda k: stampw(k, 20)) if stamps else None)
    A.label("Lteamdone")
    restore_tid(A)
    stampw(3)
    A("s_branch Low")
    A.label("Lworker")
    A(f"s_sub_u32 s{S_W}, s{S_WIDX}, 32")
    A(f"s_cmp_lt_u32 s{S_W}, 64"); A("s_cbranch_scc1 Lp1")
    A(f"s_cmp_lt_u32 s{S_W}, 160"); A("s_cbranch_scc0 Lln1")
    A(f"s_sub_u32 s{S_B}, s{S_W}, 64")
    gen_mod(A, S_B, confirm=conf(24), flag=True)
    A("s_branch Lp1")
    A.label("Lln1")
    A(f"s_sub_u32 s{S_B}, s{S_W}, 160"); A(f"s_lshl_b32 s{S_B}, s{S_B}, 2"); A(f"s_add_u32 s{S_B}, s{S_B}, s{S_WAVE}")
    def wm():
        gen_confirm(A, "Lstart", F, 12)
        A("v_and_b32 v12, 63, v0"); A("v_lshlrev_b32 v12, 2, v12"); A(f"v_add_u32 v12, {MODFLAG}, v12")
        wait_flags(A, S_WS, 12, 32, F, 13, sleep=0)
    gen_ln1(A, S_B, wait_mod=wm, flag=True)
    A.label("Lp1")
    stampw(1)
    gen_qkv_setup(A)
    A(f"s_and_b32 s{S_RANK}, s{S_W}, 31")
    A(f"s_cmp_lt_u32 s{S_W}, 64"); A("s_cbranch_scc0 Lp3a")
    A(f"s_mov_b32 s{S_B}, 0")
    A(f"s_cmp_lt_u32 s{S_W}, 32"); A("s_cbranch_scc0 Lp2")
    gen_unit(A, S_B, S_RANK, mats=("k", "q"), flags=True, fail=F, confirm=conf(20))
    A(f"s_mov_b32 s{S_B}, 6"); A("s_branch Lp3")
    A.label("Lp2")
    gen_unit(A, S_B, S_RANK, mats=("v",), flags=True, fail=F, confirm=conf(20))
    A(f"s_mov_b32 s{S_B}, 7"); A("s_branch Lp3")
    A.label("Lp3a")
    A(f"s_lshr_b32 s{S_B}, s{S_W}, 5"); A(f"s_sub_u32 s{S_B}, s{S_B}, 1")
    A.label("Lp3")
    gen_unit(A, S_B, S_RANK, mats=("k", "v", "q"), flags=True, fail=F)
    stampw(2)
    A(f"s_cmp_lt_u32 s{S_W}, 64"); A("s_cbranch_scc1 Lnota")
    A(f"s_cmp_lt_u32 s{S_W}, 128"); A("s_cbranch_scc0 Lnota")
    A(f"s_sub_u32 s{S_B}, s{S_W}, 64"); A(f"s_and_b32 s{S_RANK}, s{S_B}, 15"); A(f"s_lshr_b32 s{S_B}, s{S_B}, 4")
    gen_attn(A, S_RANK, S_B, 4, F)
    stampw(3)
    A.label("Low")
    gen_o_weights(A, S_WIDX)
    A("s_branch Lout")
    A.label("Lnota")
    gen_o_weights(A, S_WIDX)
    A(f"s_cmp_lt_u32 s{S_W}, 28"); A("s_cbranch_scc1 Lg0")
    A(f"s_cmp_lt_u32 s{S_W}, 64"); A("s_cbranch_scc1 Lout")
    A(f"s_cmp_lt_u32 s{S_W}, 144"); A("s_cbranch_scc0 Lnotr")
    A(f"s_sub_u32 s{S_B}, s{S_W}, 128"); A(f"s_and_b32 s{S_RANK}, s{S_B}, 3"); A(f"s_lshr_b32 s{S_B}, s{S_B}, 2")
    gen_red(A, S_RANK, S_B, 4, F)
    stampw(3)
    A("s_branch Lout")
    A.label("Lnotr")
    A(f"s_cmp_lt_u32 s{S_W}, 188"); A("s_cbranch_scc0 Lg1")
    A(f"s_sub_u32 s{S_RANK}, s{S_W}, 144"); A(f"s_cmp_ge_u32 s{S_RANK}, 22"); A(f"s_cselect_b32 s{S_B}, 1, 0"); A(f"s_cselect_b32 s{T}, 22, 0"); A(f"s_sub_u32 s{S_RANK}, s{S_RANK}, s{T}")
    gen_z(A, S_RANK, S_B, 2, F)
    stampw(3)
    A("s_branch Lout")
    A.label("Lg1")
    A(f"s_sub_u32 s{S_W}, s{S_W}, 160")
    A.label("Lg0")
    A(f"s_and_b32 s{S_RANK}, s{S_W}, 3"); A(f"s_lshr_b32 s{S_B}, s{S_W}, 2")
    gen_g(A, S_B, S_RANK, F)
    stampw(3)
    A.label("Lout")
    gen_o(A, S_WIDX, F)
    stampw(4)
    if stamps:
        A("s_mov_b32 s92, s101"); A(f"s_lshl_b32 s93, s{S_WIDX}, 5"); A(f"s_add_u32 s93, s93, {TST_OFF}")
        A("v_mov_b32 v254, s92"); A("v_mov_b32 v255, s93"); A("s_mov_b64 exec, 1")
        A(f"global_store_dword v255, v254, s[{S_WS}:{S_WS+1}]"); A("s_mov_b64 exec, -1")
    A(f"s_branch {D}")
    gen_fail(A, F)
    A.label(D); A("s_waitcnt vmcnt(0)"); A("s_endpgm")
    A.fix_hazards()
    hdr = f"; @launch kernel={NAME} grid=(256,1,1) block=(256,1,1) lds=163840\n"
    return hdr + '.amdgcn_target "amdgcn-amd-amdhsa--gfx950"\n.text\n' + kernel_header(NAME) + A.text() + '.section .rodata,"a"\n' + kernel_desc(NAME, nsgpr=102)
if __name__ == "__main__":
    open("../dev/mega.s", "w").write(build(stamps=True))
    open("../dev/mega_ns.s", "w").write(build(stamps=False))
```

```python
from asm import *
from layout import *
from team import S_WS, S_DBG, S_RANK, S_WAVE, S_T, S_SPIN, np_f32_bits
from pre import unpack
import math
L16, XW, XR0, XR1, OW, ORD, FA = 1, 2, 3, 4, 5, 6, 7
MK = 8
QF, KF, VF, KM, VM, XO = 16, 32, 64, 96, 112, 128
S0, S1, S2 = 144, 148, 152
M_, T_, R_ = 156, 157, 158
PX, PM = 160, 164
OA = 168
OB = 200
ACC = 64
PK = 216
LDS_X, LDS_O = 0x0, 0x4000
OSTR = 528
S_REC, S_PART, S_SEG, S_C, S_PF, S_KF, S_QF = 64, 66, 68, 70, 72, 74, 76

from flags import wait_flags, set_flag

def load_w32(A, sw, pitch_log2, nrows, dst_fn, lds_base_sreg, tmp):
    ln, a0, a1, src = tmp, tmp + 1, tmp + 2, tmp + 3
    TR = tmp + 4
    A(f"v_and_b32 v{ln}, 63, v0")
    A(f"v_lshrrev_b32 v{a0}, 5, v{ln}"); A(f"v_lshlrev_b32 v{a0}, 11, v{a0}")
    A(f"v_bfe_u32 v{a1}, v{ln}, 2, 2"); A(f"v_lshl_add_u32 v{a0}, v{a1}, 8, v{a0}")
    A(f"v_bfe_u32 v{src}, v{ln}, 4, 1"); A(f"v_lshl_add_u32 v{a0}, v{src}, 5, v{a0}")
    A(f"v_and_b32 v{src}, 3, v{ln}"); A(f"v_lshl_add_u32 v{a0}, v{src}, 3, v{a0}")
    A(f"v_add_u32 v{a0}, s{lds_base_sreg}, v{a0}")
    for nt in range(4):
        A(f"v_xor_b32 v{src}, {nt}, v{a1}"); A(f"v_lshl_add_u32 v{TR+nt}, v{src}, 6, v{a0}")
    A(f"v_lshrrev_b32 v{a0}, 4, v{ln}"); A(f"v_xor_b32 v{a1}, v{a1}, v{a0}")
    A(f"v_lshlrev_b32 v{a0}, {pitch_log2}, v{a0}"); A(f"v_lshl_add_u32 v{a0}, v{a1}, 6, v{a0}")
    A(f"v_and_b32 v{a1}, 3, v{ln}"); A(f"v_lshl_add_u32 v{src}, v{a1}, 4, v{a0}")
    for rnd in range(nrows // 128):
        for i in range(32):
            A(f"s_add_u32 m0, s{lds_base_sreg}, {i*1024}")
            A(f"v_add_u32 v{a0+(i&1)}, {(rnd*128 + 4*i) << pitch_log2}, v{src}")
            A(f"global_load_lds_dwordx4 v{a0+(i&1)}, s[{sw}:{sw+1}]")
        for ks in range(8):
            A(f"s_waitcnt vmcnt({28-4*ks})")
            for nt in range(4):
                pre, b = dst_fn(nt, rnd * 8 + ks)
                A(f"ds_read_b64_tr_b16 {rng(pre, b, 2)}, v{TR+nt} offset:{ks*4096}")
                A(f"ds_read_b64_tr_b16 {rng(pre, b+2, 2)}, v{TR+nt} offset:{ks*4096+1024}")
        A("s_waitcnt lgkmcnt(0)")

def gen_attn(A, s_pair, s_phase, NA, fail, check=True, st=lambda k, r=254: None, NARROW=56):
    T = S_T
    A(f"s_load_dwordx2 s[{T}:{T+1}], s[0:1], {KA['Wo']}")
    A(f"s_lshl_b32 s{T+2}, s{s_pair}, 18"); A(f"s_lshl_b32 s{T+3}, s{S_WAVE}, 8"); A(f"s_add_u32 s{T+2}, s{T+2}, s{T+3}")
    A(f"s_lshl_b32 s{T+4}, s{S_WAVE}, 15")
    A("s_waitcnt lgkmcnt(0)")
    A(f"s_add_u32 s{T}, s{T}, s{T+2}"); A(f"s_addc_u32 s{T+1}, s{T+1}, 0")
    A("s_barrier")
    load_w32(A, T, 10, 256, lambda nt, ks: ("a", (ks * 4 + nt) * 4), T + 4, 16)
    A("s_barrier")
    ln, n_, g_, t0, t1, t2 = 16, 17, 18, 19, 20, 21
    A(f"v_and_b32 v{ln}, 63, v0"); A(f"v_and_b32 v{n_}, 15, v{ln}"); A(f"v_lshrrev_b32 v{g_}, 4, v{ln}")
    A(f"v_lshlrev_b32 v{L16}, 4, v{ln}")
    A(f"s_lshl_b32 s{T+5}, s{S_WAVE}, 12")
    A(f"v_lshrrev_b32 v{t0}, 2, v{n_}"); A(f"v_xor_b32 v{t0}, v{t0}, v{g_}"); A(f"v_lshlrev_b32 v{t0}, 3, v{t0}")
    A(f"v_lshl_add_u32 v{t0}, v{n_}, 5, v{t0}"); A(f"v_add_u32 v{XW}, s{T+5}, v{t0}")
    A(f"v_bfe_u32 v{t0}, v{ln}, 5, 1"); A(f"v_lshlrev_b32 v{t0}, 4, v{t0}")
    A(f"v_bfe_u32 v{t1}, v{ln}, 4, 1"); A(f"v_lshl_add_u32 v{t0}, v{t1}, 2, v{t0}")
    A(f"v_mov_b32 v{FA}, v{t0}")
    A(f"v_lshrrev_b32 v{t2}, 2, v{n_}"); A(f"v_add_u32 v{t0}, v{t0}, v{t2}")
    A(f"v_and_b32 v{t2}, 3, v{ln}"); A(f"v_xor_b32 v{t2}, v{t2}, v{t1}"); A(f"v_lshlrev_b32 v{t2}, 3, v{t2}")
    A(f"v_lshl_add_u32 v{t0}, v{t0}, 5, v{t2}")
    A(f"v_add_u32 v{XR0}, s{T+5}, v{t0}"); A(f"v_xor_b32 v{t0}, 16, v{t0}"); A(f"v_add_u32 v{t0}, 256, v{t0}"); A(f"v_add_u32 v{XR1}, s{T+5}, v{t0}")
    A(f"s_and_b32 s{T+6}, s{S_WAVE}, 1"); A(f"s_lshl_b32 s{T+7}, s{T+6}, 4")
    A(f"v_add_u32 v{t0}, s{T+7}, v{n_}")
    A(f"v_sub_u32 v{t0}, v{t0}, v{FA}")
    A(f"v_mov_b32 v{t1}, {np_f32_bits(-1e30):#x}")
    for kt in range(2):
        for r in range(4):
            A(f"v_cmp_gt_i32 vcc, {r + 8*kt}, v{t0}")
            A(f"v_cndmask_b32 v{MK+4*kt+r}, 0, v{t1}, vcc")
    A(f"v_add_u32 v{t0}, s{T+7}, v{n_}"); A(f"v_mul_u32_u24 v{t0}, {OSTR}, v{t0}"); A(f"v_lshl_add_u32 v{t0}, v{g_}, 3, v{t0}")
    A(f"s_lshr_b32 s{T+8}, s{S_WAVE}, 1"); A(f"s_lshl_b32 s{T+9}, s{T+8}, 8"); A(f"s_add_u32 s{T+9}, s{T+9}, {LDS_O}")
    A(f"v_add_u32 v{OW}, s{T+9}, v{t0}")
    A(f"v_and_b32 v{t0}, 31, v{ln}"); A(f"v_mul_u32_u24 v{t0}, {OSTR}, v{t0}"); A(f"v_lshrrev_b32 v{t1}, 5, v{ln}"); A(f"v_lshl_add_u32 v{t0}, v{t1}, 4, v{t0}")
    A(f"v_add_u32 v{ORD}, {LDS_O}, v{t0}")
    A(f"v_lshlrev_b32 v{FA}, 2, v{ln}")
    A(f"s_lshl_b32 s{T+10}, s{s_pair}, 1"); A(f"s_add_u32 s{T+10}, s{T+10}, s{T+8}")
    def base(dst, const, parts):
        A(f"s_add_u32 s{dst}, s{S_WS}, {const}"); A(f"s_addc_u32 s{dst+1}, s{S_WS+1}, 0")
        for sr, sh in parts:
            A(f"s_lshl_b32 s{T+11}, s{sr}, {sh}"); A(f"s_add_u32 s{dst}, s{dst}, s{T+11}"); A(f"s_addc_u32 s{dst+1}, s{dst+1}, 0")
    base(S_REC, REC_OFF, [(T + 10, 21), (s_phase, 15)])
    base(S_PART, PART_OFF, [(s_pair, 15), (S_WAVE, 13), (s_phase, 19)])
    base(S_PF, PARTFLAG, [(s_pair, 8), (S_WAVE, 12), (s_phase, 14)])
    base(S_KF, KMFLAG + 16, [(T + 10, 11), (s_phase, 4)])
    base(S_QF, QKVFLAG, [(T + 10, 10)])
    A(f"s_lshl_b32 s{T+12}, s{T+6}, 12")
    cval = np_f32_bits(128 ** -0.5 * math.log2(math.e))
    A(f"s_mov_b32 s{S_C}, {cval:#x}"); A(f"s_mov_b32 s{S_C+1}, {cval:#x}")
    A(f"s_mov_b32 s{S_SEG}, s{s_phase}")
    LOOP = A.newlabel("Lat"); END = A.newlabel("Late")
    AD = OA
    def ld(dst, areg, off): A(f"global_load_dwordx4 v[{dst}:{dst+3}], v{areg}, s[{S_REC}:{S_REC+1}] offset:{off} sc1")
    def qkvcheck():
        A(f"s_lshr_b32 s{T}, s{S_SEG}, 3"); A(f"s_lshl_b32 s{T}, s{T}, 5")
        A(f"v_and_b32 v22, 28, v{FA}"); A(f"v_lshrrev_b32 v23, 5, v{FA}"); A("v_lshl_add_u32 v22, v23, 8, v22")
        A(f"v_add_u32 v22, s{T}, v22")
        wait_flags(A, S_QF, 22, 24, fail, 23)
    def qkvloads():
        for i in range(7): A(f"v_add_u32 v{AD+i}, {i*4096}, v{L16}")
        A(f"v_add_u32 v{AD+4}, s{T+12}, v{AD+4}")
        for i in range(4): ld(QF + 4 * i, AD + 4, i * 1024)
        for i in range(8): ld(KF + 4 * i, AD + (i >> 2), (i & 3) * 1024)
        for i in range(8): ld(VF + 4 * i, AD + 2 + (i >> 2), (i & 3) * 1024)
        A(f"v_add_u32 v{AD+5}, {7*4096}, v{L16}")
    if check: qkvcheck()
    qkvloads()
    A.label(LOOP)
    if check: wait_flags(A, S_KF, FA, 4, fail, AD + 7)
    st(5)
    for i in range(2): ld(KM + 4 * i, AD + 6, 2048 + i * 1024)
    for i in range(4): ld(VM + 4 * i, AD + 5, i * 1024)
    def mf(d, a_, b_, c, *extra):
        A(f"v_mfma_f32_16x16x32_bf16 v[{d}:{d+3}], v[{a_}:{a_+3}], v[{b_}:{b_+3}], {c}")
        for x in extra: A(x)
    A("s_waitcnt vmcnt(14)")
    for kb in range(4): mf(S1, KF + 4 * kb, QF + 4 * kb, f"v[{MK}:{MK+3}]" if kb == 0 else f"v[{S1}:{S1+3}]")
    for kb in range(4): mf(S2, KF + 16 + 4 * kb, QF + 4 * kb, f"v[{MK+4}:{MK+7}]" if kb == 0 else f"v[{S2}:{S2+3}]")
    for i in range(2):
        A(f"s_waitcnt vmcnt({5-i})")
        A(f"ds_write2st64_b32 v{XW}, v{KM+4*i}, v{KM+4*i+1} offset0:{8*i} offset1:{8*i+2}")
        A(f"ds_write2st64_b32 v{XW}, v{KM+4*i+2}, v{KM+4*i+3} offset0:{8*i+4} offset1:{8*i+6}")
    A("s_waitcnt lgkmcnt(0)")
    for kb in range(4):
        A(f"ds_read_b64_tr_b16 v[{XO+4*kb}:{XO+4*kb+1}], v{XR0} offset:{kb*1024}")
        A(f"ds_read_b64_tr_b16 v[{XO+4*kb+2}:{XO+4*kb+3}], v{XR1} offset:{kb*1024}")
    A(f"v_max3_f32 v{M_}, v{S1}, v{S1+1}, v{S1+2}")
    A(f"v_max3_f32 v{M_}, v{M_}, v{S1+3}, v{S2}")
    A(f"v_max3_f32 v{M_}, v{M_}, v{S2+1}, v{S2+2}")
    A(f"v_max_f32 v{M_}, v{M_}, v{S2+3}")
    for kb in range(4):
        A(f"s_waitcnt lgkmcnt({6-2*kb})")
        mf(S0, XO + 4 * kb, QF + 4 * kb, "0" if kb == 0 else f"v[{S0}:{S0+3}]")
    A(f"v_max3_f32 v{T_}, v{M_}, v{S0}, v{S0+1}")
    A(f"v_max3_f32 v{M_}, v{M_}, v{S0}, v{S0+1}")
    def xred(op):
        A(f"v_permlane32_swap_b32 v{M_}, v{T_}")
        A(f"{op} v{R_}, v{M_}, v{T_}"); A(f"{op} v{M_}, v{M_}, v{T_}")
        A(f"v_permlane16_swap_b32 v{M_}, v{R_}")
        A(f"{op} v{M_}, v{M_}, v{R_}")
    xred("v_max_f32")
    A(f"v_mul_f32 v{M_}, s{S_C}, v{M_}")
    for r in (S1, S1 + 2, S2, S2 + 2, S0):
        A(f"v_pk_fma_f32 v[{r}:{r+1}], v[{r}:{r+1}], s[{S_C}:{S_C+1}], v[{M_}:{M_+1}] op_sel_hi:[1,0,0] neg_lo:[0,0,1] neg_hi:[0,0,1]")
    vals = [S1, S1 + 1, S1 + 2, S1 + 3, S2, S2 + 1, S2 + 2, S2 + 3, S0, S0 + 1]
    for r in vals: A(f"v_exp_f32 v{r}, v{r}")
    A(f"v_pk_add_f32 v[{PX}:{PX+1}], v[{S1}:{S1+1}], v[{S1+2}:{S1+3}]")
    A(f"v_pk_add_f32 v[{PX+2}:{PX+3}], v[{S2}:{S2+1}], v[{S2+2}:{S2+3}]")
    A(f"v_pk_add_f32 v[{PX}:{PX+1}], v[{PX}:{PX+1}], v[{S0}:{S0+1}]")
    A(f"v_pk_add_f32 v[{PX}:{PX+1}], v[{PX}:{PX+1}], v[{PX+2}:{PX+3}]")
    A(f"v_add_f32 v{M_}, v{PX}, v{PX+1}"); A(f"v_add_f32 v{T_}, v{PX}, v{PX+1}")
    xred("v_add_f32")
    A(f"v_rcp_f32 v{M_}, v{M_}")
    for r in (S1, S1 + 2, S2, S2 + 2, S0):
        A(f"v_pk_mul_f32 v[{r}:{r+1}], v[{r}:{r+1}], v[{M_}:{M_+1}] op_sel_hi:[1,0]")
    for i, r in enumerate((S1, S1 + 2, S2, S2 + 2, S0, S0)): A(f"v_cvt_pk_bf16_f32 v{PX+i}, v{r}, v{r+1}")
    A("s_waitcnt vmcnt(0)")
    for dt in range(8): mf(OA + 4 * dt, VF + 4 * dt, PX, "0")
    A("s_barrier")
    for dt in range(8):
        A(f"v_mfma_f32_16x16x16_bf16 v[{OA+4*dt}:{OA+4*dt+3}], v[{VM+2*dt}:{VM+2*dt+1}], v[{PM}:{PM+1}], v[{OA+4*dt}:{OA+4*dt+3}]")
        if dt >= 3:
            d = dt - 3
            A(f"v_cvt_pk_bf16_f32 v{PK+2*(d&1)}, v{OA+4*d}, v{OA+4*d+1}"); A(f"v_cvt_pk_bf16_f32 v{PK+2*(d&1)+1}, v{OA+4*d+2}, v{OA+4*d+3}")
            A(f"ds_write_b64 v{OW}, v[{PK+2*(d&1)}:{PK+2*(d&1)+1}] offset:{d*32}")
    for d in range(5, 8):
        A(f"v_cvt_pk_bf16_f32 v{PK+2*(d&1)}, v{OA+4*d}, v{OA+4*d+1}"); A(f"v_cvt_pk_bf16_f32 v{PK+2*(d&1)+1}, v{OA+4*d+2}, v{OA+4*d+3}")
        A(f"ds_write_b64 v{OW}, v[{PK+2*(d&1)}:{PK+2*(d&1)+1}] offset:{d*32}")
    A("s_waitcnt lgkmcnt(0)")
    A("s_barrier")
    st(6)
    LN = A.newlabel("Lan"); LE = A.newlabel("Lae")
    for ks in range(3): A(f"ds_read_b128 v[{OB+4*ks}:{OB+4*ks+3}], v{ORD} offset:{ks*32}")
    A(f"v_add_u32 v{AD}, 4096, v{L16}")
    A(f"s_cmp_ge_u32 s{S_SEG}, {NARROW}"); A(f"s_cbranch_scc1 {LN}")
    def wo(nts, accs):
        for ks in range(16):
            A(f"s_waitcnt lgkmcnt({min(2, 15-ks)})")
            for k, nt in enumerate(nts):
                acc = accs(ks, nt)
                A(f"v_mfma_f32_32x32x16_bf16 v[{acc}:{acc+15}], {a((ks*4+nt)*4, 4)}, v[{OB+4*(ks&3)}:{OB+4*(ks&3)+3}], " + ("0" if ks < (1 if len(nts) > 1 else 1) else f"v[{acc}:{acc+15}]"))
                if k == 0 and ks + 3 < 16: A(f"ds_read_b128 v[{OB+4*((ks+3)&3)}:{OB+4*((ks+3)&3)+3}], v{ORD} offset:{(ks+3)*32}")
    def out(nt, acc):
        pk = PK + 8 * (nt & 1)
        for e in range(8): A(f"v_cvt_pk_bf16_f32 v{pk+e}, v{acc+2*e}, v{acc+2*e+1}")
        ar = L16 if nt < 2 else AD
        A(f"global_store_dwordx4 v{ar}, v[{pk}:{pk+3}], s[{S_PART}:{S_PART+1}] offset:{(nt&1)*2048} sc1")
        A(f"global_store_dwordx4 v{ar}, v[{pk+4}:{pk+7}], s[{S_PART}:{S_PART+1}] offset:{(nt&1)*2048+1024} sc1")
    wo([0, 1, 2, 3], lambda ks, nt: ACC + 16 * nt)
    for nt in range(4): out(nt, ACC + 16 * nt)
    st(7)
    A(f"v_lshlrev_b32 v{PK+17}, 3, v{L16}")
    set_flag(A, S_PF, 0, PK + 17, PK + 16, lanes=2)
    def advance(which):
        for b, sh in which:
            A(f"s_lshl_b32 s{T+1}, s{T}, {sh}"); A(f"s_add_u32 s{b}, s{b}, s{T+1}"); A(f"s_addc_u32 s{b+1}, s{b+1}, 0")
    A(f"s_lshr_b32 s{T+1}, s{s_phase}, 1"); A(f"s_add_u32 s{T+1}, s{T+1}, {NARROW}")
    A(f"s_add_u32 s{T}, s{S_SEG}, {NA}"); A(f"s_cmp_ge_u32 s{T}, {NARROW}"); A(f"s_cselect_b32 s{T}, s{T+1}, s{T}"); A(f"s_sub_u32 s{T}, s{T}, s{S_SEG}")
    advance(((S_REC, 15), (S_PART, 19), (S_PF, 14), (S_KF, 4)))
    A(f"s_add_u32 s{S_SEG}, s{S_SEG}, s{T}")
    if check: qkvcheck()
    qkvloads()
    A(f"s_branch {LOOP}")
    A.label(LN)
    LD = A.newlabel("Lad")
    A(f"s_mov_b32 s{T}, 2")
    for hf in range(2):
        LX = A.newlabel("Lax")
        if hf == 0: A(f"s_bitcmp1_b32 s{s_phase}, 0"); A(f"s_cbranch_scc1 {LX}")
        wo([2 * hf, 2 * hf + 1], lambda ks, nt: ACC + 16 * nt)
        out(2 * hf, ACC + 32 * hf); out(2 * hf + 1, ACC + 32 * hf + 16)
        st(7)
        LL = A.newlabel("Lal"); LM = A.newlabel("Lam")
        A(f"s_cmp_ge_u32 s{S_SEG}, 62"); A(f"s_cbranch_scc1 {LL}")
        advance(((S_REC, 15),))
        qkvloads()
        set_flag(A, S_PF, 128 * hf, L16, PK + 16, wait="s_waitcnt vmcnt(20)")
        A(f"s_branch {LM}")
        A.label(LL)
        set_flag(A, S_PF, 128 * hf, L16, PK + 16)
        A.label(LM)
        if hf == 0: A(f"s_branch {LD}"); A.label(LX)
    A.label(LD)
    advance(((S_PART, 19), (S_PF, 14), (S_KF, 4)))
    A(f"s_add_u32 s{S_SEG}, s{S_SEG}, 2")
    A(f"s_cmp_lt_u32 s{S_SEG}, 64"); A(f"s_cbranch_scc1 {LOOP}")
    A("s_waitcnt vmcnt(0)")
```

```python
from asm import *
from layout import *
from team import S_WS, S_DBG, S_RANK, S_WAVE, S_T, S_SPIN
LDS_FORM = 0x7A00

def gen_entry(A, nwg, exit_label):
    A(f"s_cmp_ge_u32 s2, {nwg}"); A(f"s_cbranch_scc1 {exit_label}")
    A(f"s_load_dwordx2 s[{S_WS}:{S_WS+1}], s[0:1], {KA['ws']}")
    A(f"s_load_dwordx2 s[{S_DBG}:{S_DBG+1}], s[0:1], {KA['dbg']}")
    A("v_lshrrev_b32 v1, 6, v0")
    A("s_nop 0")
    A(f"v_readfirstlane_b32 s{S_WAVE}, v1")
    A("s_waitcnt lgkmcnt(0)")

def gen_register(A, fake=False):
    T = S_T
    A(f"s_getreg_b32 s{S_XCC}, hwreg(HW_REG_XCC_ID)")
    A(f"s_and_b32 s{S_XCC}, s{S_XCC}, 7")
    if fake: A(f"s_cmp_eq_u32 s{S_XCC}, 0"); A(f"s_cselect_b32 s{S_XCC}, 7, s{S_XCC}")
    L = A.newlabel("Lreg")
    A(f"s_cmp_lg_u32 s{S_WAVE}, 0"); A(f"s_cbranch_scc1 {L}")
    A(f"s_cmp_lg_u32 s{S_XCC}, 0"); A(f"s_cbranch_scc1 {L}")
    gen_presence(A, T, 2)
    A.label(L)
    gen_guess(A)

def gen_presence(A, T, tv):
    A(f"s_memtime s[{T}:{T+1}]"); A(f"s_memrealtime s[{T+2}:{T+3}]"); A("s_waitcnt lgkmcnt(0)")
    A(f"s_lshr_b32 s{T+1}, s{T}, 4"); A(f"s_xor_b32 s{T}, s{T}, s{T+1}"); A(f"s_lshr_b32 s{T+1}, s{T}, 9"); A(f"s_xor_b32 s{T}, s{T}, s{T+1}")
    A(f"s_xor_b32 s{T}, s{T}, s{T+2}"); A(f"s_lshr_b32 s{T+1}, s{T+2}, 5"); A(f"s_xor_b32 s{T}, s{T}, s{T+1}")
    A(f"s_and_b32 s{T}, s{T}, 15"); A(f"s_lshl_b32 s{T}, s{T}, 3"); A(f"s_or_b32 s{T}, s{T}, s{S_XCC}"); A(f"s_or_b32 s{T}, s{T}, 0x80")
    A(f"v_mov_b32 v{tv}, s2"); A(f"v_mov_b32 v{tv+1}, s{T}")
    A("s_mov_b64 exec, 1")
    A(f"global_store_byte v{tv}, v{tv+1}, s[{S_DBG}:{S_DBG+1}] sc1")
    A("s_mov_b64 exec, -1")

def gen_guess(A):
    T = S_T
    A(f"s_sub_u32 s{T}, s2, s{S_XCC}"); A(f"s_and_b32 s{T}, s{T}, 7")
    A(f"s_add_u32 s{T+1}, s2, 7"); A(f"s_sub_u32 s{T+1}, s{T+1}, s{T}"); A(f"s_lshr_b32 s{T+1}, s{T+1}, 3")
    A(f"s_sub_u32 s{T+2}, s2, s{T+1}"); A(f"s_add_u32 s{T+2}, s{T+2}, 32")
    A(f"s_cmp_eq_u32 s{S_XCC}, 0"); A(f"s_cselect_b32 s{S_WIDX}, s{T+1}, s{T+2}")
    A(f"s_min_u32 s{S_WIDX}, s{S_WIDX}, 255")
    A(f"s_mov_b32 s{S_CONF}, 0")

def gen_confirm(A, restart_label, fail_label, tv, LDS_FORM=0x27FF0):
    U = 84
    DONE = A.newlabel("Lcf"); L1 = A.newlabel("Lcf"); LP = A.newlabel("Lcf"); LX = A.newlabel("Lcf"); LY = A.newlabel("Lcf")
    A(f"s_cmp_lg_u32 s{S_CONF}, 0"); A(f"s_cbranch_scc1 {DONE}")
    A(f"s_cmp_lg_u32 s{S_WAVE}, 0"); A(f"s_cbranch_scc1 {L1}")
    LN = A.newlabel("Lcf"); LQ = A.newlabel("Lcf")
    A(f"s_mov_b32 s{S_SPIN}, 0")
    A(f"s_lshr_b32 s{U+10}, s2, 2"); A(f"s_and_b32 s{U+11}, s2, 3")
    A.label(LP)
    A(f"v_mbcnt_lo_u32_b32 v{tv}, -1, 0"); A(f"v_mbcnt_hi_u32_b32 v{tv}, -1, v{tv}")
    A(f"v_lshlrev_b32 v{tv}, 2, v{tv}")
    A(f"global_load_dword v{tv+1}, v{tv}, s[{S_DBG}:{S_DBG+1}] sc1")
    A(f"s_add_u32 s{S_SPIN}, s{S_SPIN}, 1"); A(f"s_cmp_gt_u32 s{S_SPIN}, 300000"); A(f"s_cbranch_scc1 {fail_label}")
    A(f"s_cmp_lg_u32 s{S_SPIN}, 64"); A(f"s_cbranch_scc1 {LN}")
    A(f"s_cmp_eq_u32 s{S_XCC}, 0"); A(f"s_cbranch_scc1 {LN}")
    gen_presence(A, U + 4, tv + 2)
    A.label(LN)
    A("s_waitcnt vmcnt(0)")
    A(f"v_and_b32 v{tv+2}, 0x80808080, v{tv+1}")
    A(f"v_cmp_ne_u32 vcc, 0x80808080, v{tv+2}")
    A(f"s_cmp_eq_u64 vcc, 0"); A(f"s_cselect_b32 s{U+9}, 8, 1")
    A(f"s_mov_b32 s{U+1}, 0x80")
    A.label(LX)
    A(f"s_mov_b32 s{U+2}, 0"); A(f"s_mov_b32 s{U+3}, 0"); A(f"s_mov_b32 s{U}, 0")
    for j in range(4):
        A(f"v_bfe_u32 v{tv+2}, v{tv+1}, {8*j}, 8")
        A(f"v_and_b32 v{tv+3}, 0x87, v{tv+2}")
        A(f"v_cmp_eq_u32 vcc, s{U+1}, v{tv+3}")
        A(f"s_bcnt1_i32_b64 s{U+4}, vcc"); A(f"s_add_u32 s{U+2}, s{U+2}, s{U+4}")
        A(f"s_cmp_gt_u32 s{U+11}, {j}"); A(f"s_cselect_b32 s{U+4}, 1, 0"); A(f"s_add_u32 s{U+4}, s{U+4}, s{U+10}")
        A(f"s_bfm_b64 s[{U+6}:{U+7}], s{U+4}, 0")
        A(f"s_cmp_eq_u32 s{U+4}, 64"); A(f"s_cselect_b64 s[{U+6}:{U+7}], -1, s[{U+6}:{U+7}]")
        A(f"s_and_b64 s[{U+6}:{U+7}], s[{U+6}:{U+7}], vcc")
        A(f"s_bcnt1_i32_b64 s{U+4}, s[{U+6}:{U+7}]"); A(f"s_add_u32 s{U+3}, s{U+3}, s{U+4}")
        A(f"v_cndmask_b32 v{tv+2}, 0, v{tv+2}, vcc")
        for b in (3, 4, 5, 6):
            A(f"v_bfe_u32 v{tv+3}, v{tv+2}, {b}, 1")
            A(f"v_cmp_ne_u32 s[{U+6}:{U+7}], 0, v{tv+3}")
            A(f"s_mul_i32 s{U}, s{U}, 0x9e3779b1"); A(f"s_xor_b32 s{U}, s{U}, s{U+6}"); A(f"s_mul_i32 s{U}, s{U}, 0x85ebca6b"); A(f"s_add_u32 s{U}, s{U}, s{U+7}")
    A(f"s_cmp_ge_u32 s{U+2}, 32"); A(f"s_cbranch_scc1 {LY}")
    A(f"s_add_u32 s{U+1}, s{U+1}, 1"); A(f"s_and_b32 s{U+4}, s{U+1}, 15"); A(f"s_cmp_lt_u32 s{U+4}, s{U+9}"); A(f"s_cbranch_scc1 {LX}")
    A(f"s_branch {LP}")
    A.label(LY)
    A(f"s_or_b32 s{U}, s{U}, 1")
    A(f"s_and_b32 s{U+1}, s{U+1}, 7")
    A(f"s_min_u32 s{U+4}, s{U+3}, 32"); A(f"s_sub_u32 s{U+4}, s2, s{U+4}"); A(f"s_add_u32 s{U+4}, s{U+4}, 32")
    A(f"s_cmp_lt_u32 s{U+3}, 32"); A(f"s_cselect_b32 s{U+5}, s{U+3}, s{U+4}")
    A(f"s_cmp_eq_u32 s{U+1}, s{S_XCC}"); A(f"s_cselect_b32 s{U+5}, s{U+5}, s{U+4}")
    A(f"v_mov_b32 v{tv+2}, s{U}"); A(f"v_mov_b32 v{tv+3}, s{U+5}"); A(f"v_mov_b32 v{tv}, {LDS_FORM}")
    A(f"ds_write_b64 v{tv}, v[{tv+2}:{tv+3}]")
    A("s_waitcnt lgkmcnt(0)")
    A.label(L1)
    A("s_barrier")
    A(f"v_mov_b32 v{tv}, {LDS_FORM}")
    A(f"ds_read_b64 v[{tv+2}:{tv+3}], v{tv}")
    A("s_waitcnt lgkmcnt(0)")
    A(f"v_readfirstlane_b32 s{S_NONCE}, v{tv+2}"); A(f"v_readfirstlane_b32 s{U+5}, v{tv+3}")
    A(f"s_mov_b32 s{S_CONF}, 1")
    A("s_nop 3")
    A(f"s_cmp_eq_u32 s{U+5}, s{S_WIDX}"); A(f"s_cbranch_scc1 {DONE}")
    A(f"s_mov_b32 s{S_WIDX}, s{U+5}")
    A("s_waitcnt vmcnt(0)")
    A("s_barrier")
    A(f"s_branch {restart_label}")
    A.label(DONE)

def gen_fail(A, fail_label, code=1):
    A.label(fail_label)
    A("s_mov_b64 exec, 1")
    A(f"v_mov_b32 v2, {FAILW}"); A(f"v_mov_b32 v3, s{S_WIDX}")
    A(f"global_store_dword v2, v3, s[{S_WS}:{S_WS+1}]")
    A("s_waitcnt vmcnt(0)")
    A("s_endpgm")

def restore_tid(A):
    A("v_mbcnt_lo_u32_b32 v0, -1, 0"); A("v_mbcnt_hi_u32_b32 v0, -1, v0")
    A(f"s_lshl_b32 s{S_T}, s{S_WAVE}, 6"); A(f"v_add_u32 v0, s{S_T}, v0")
```

```python
from asm import *
from layout import *
S_SPIN = 60
SLEEP = 1
def wait_flags(A, sbase, voff, nlanes, fail, tmp, sleep=1, drain=False):
    L = A.newlabel("Lwf")
    A(f"s_mov_b32 s{S_SPIN}, 0")
    A(f"s_mov_b64 exec, {(1 << nlanes) - 1:#x}" if nlanes <= 32 else ("s_mov_b64 exec, -1" if nlanes == 64 else f"s_mov_b32 exec_lo, -1\ns_mov_b32 exec_hi, {(1 << (nlanes - 32)) - 1:#x}"))
    A(f"global_load_dword v{tmp}, v{voff}, s[{sbase}:{sbase+1}] sc1")
    A("s_waitcnt vmcnt(0)")
    L2 = A.newlabel("Lwf")
    A(f"v_cmp_ne_u32 vcc, s{S_NONCE}, v{tmp}")
    A(f"s_cbranch_vccz {L2}")
    A(f"global_load_dword v{tmp}, v{voff}, s[{sbase}:{sbase+1}] sc1")
    A("s_sleep 2")
    A.label(L)
    A(f"global_load_dword v{tmp}, v{voff}, s[{sbase}:{sbase+1}] sc1")
    A(f"s_add_u32 s{S_SPIN}, s{S_SPIN}, 1"); A(f"s_cmp_gt_u32 s{S_SPIN}, 1000000"); A(f"s_cbranch_scc1 {fail}")
    A("s_waitcnt vmcnt(1)")
    A(f"v_cmp_ne_u32 vcc, s{S_NONCE}, v{tmp}")
    A(f"s_cbranch_vccz {L2}")
    if sleep: A(f"s_sleep {sleep * SLEEP}")
    A(f"s_branch {L}")
    A.label(L2)
    if drain: A("s_waitcnt vmcnt(0)")
    A("s_mov_b64 exec, -1")

def set_flag(A, sbase, off, vz, vtmp, wait="s_waitcnt vmcnt(0)", lanes=1):
    A(f"v_mov_b32 v{vtmp}, s{S_NONCE}")
    A(wait)
    A(f"s_mov_b64 exec, {(1 << lanes) - 1:#x}")
    A(f"global_store_dword v{vz}, v{vtmp}, s[{sbase}:{sbase+1}] offset:{off} sc1")
    A("s_mov_b64 exec, -1")
```

```python
from asm import *
from layout import *
from team import S_WS, S_DBG, S_RANK, S_WAVE, S_T, S_SPIN, np_f32_bits
from pre import unpack
from attn import wait_flags, set_flag
from rz import wait_mod, mkbase, adv, load_w16, S_A, S_B, S_C2, S_D, S_E, S_F, S_SEG
S_G, S_H = 78, 80

def gen_g(A, s_tb, s_fg, fail, check=True, st=lambda k, r=254: None):
    T = S_T
    L16, FA, WA0, WA1, STA, UW, PW, PR = 1, 2, 3, 4, 5, 6, 7, 8
    t = 10
    UL, STL, RS, WS, UB, UN = 16, 28, 40, 56, 72, 120
    AC = 128
    Z1 = 16
    LDS_U, LDS_P = 0, 0x6000
    A(f"s_load_dwordx4 s[{T}:{T+3}], s[0:1], {KA['w_sp']}")
    ln, n_, g_, t0, t1 = 16, 17, 18, 19, 20
    A(f"v_and_b32 v{ln}, 63, v0"); A(f"v_and_b32 v{n_}, 15, v{ln}"); A(f"v_lshrrev_b32 v{g_}, 4, v{ln}")
    A(f"v_lshlrev_b32 v{L16}, 4, v{ln}"); A(f"v_min_u32 v{FA}, 11, v{ln}"); A(f"v_lshlrev_b32 v{FA}, 7, v{FA}")
    A(f"v_lshrrev_b32 v{t0}, 2, v{n_}"); A(f"v_lshlrev_b32 v{t0}, 3, v{t0}"); A(f"v_and_b32 v{t1}, 3, v{n_}"); A(f"v_add_u32 v{t0}, v{t0}, v{t1}")
    A(f"v_lshlrev_b32 v{t+4}, 1, v{t0}")
    A(f"v_lshlrev_b32 v{WA0}, 12, v{t0}"); A(f"v_lshl_add_u32 v{WA0}, v{g_}, 4, v{WA0}"); A(f"v_add_u32 v{WA1}, {4*4096}, v{WA0}")
    A(f"v_and_b32 v{t0}, 31, v{ln}"); A(f"v_lshlrev_b32 v{t0}, 3, v{t0}")
    A(f"v_lshrrev_b32 v{t1}, 5, v{ln}"); A(f"v_mul_u32_u24 v{t1}, {6*256}, v{t1}"); A(f"v_add_u32 v{STA}, v{t0}, v{t1}")
    A(f"s_mul_i32 s{T+4}, s{S_WAVE}, 3072"); A(f"v_add_u32 v{UW}, s{T+4}, v{L16}")
    A(f"s_lshl_b32 s{T+5}, s{S_WAVE}, 8"); A(f"s_add_u32 s{T+5}, s{T+5}, {LDS_P}")
    A(f"v_add_u32 v{PW}, s{T+5}, v{t0}")
    A(f"v_lshlrev_b32 v{t1}, 6, v{g_}"); A(f"v_add_u32 v{PR}, s{T+5}, v{t1}")
    A(f"s_lshl_b32 s{T+6}, s{s_tb}, 2"); A(f"s_add_u32 s{T+6}, s{T+6}, s{S_WAVE}")
    A(f"s_mul_i32 s{T+7}, s{s_fg}, 12"); A(f"s_cmp_eq_u32 s{s_fg}, 3"); A(f"s_cselect_b32 s{T+7}, 34, s{T+7}")
    A("s_waitcnt lgkmcnt(0)")
    mkbase(A, S_A, 0, [(T + 6, 17)], src=T)
    mkbase(A, S_B, UF_OFF, [(T + 7, 10)])
    mkbase(A, S_C2, STAT_OFF, [])
    mkbase(A, S_E, ZFLAG + 10 * 128, [(S_WAVE, 12)])
    mkbase(A, S_G, 0, [(T + 6, 6)], src=T + 2)
    A(f"global_load_ushort v{t+2}, v{t+4}, s[{S_G}:{S_G+1}]")
    A(f"global_load_ushort v{t+3}, v{t+4}, s[{S_G}:{S_G+1}] offset:8")
    for i in range(0, 96, 2): A(f"v_mov_b64 v[{AC+i}:{AC+i+1}], 0")
    A(f"global_load_dwordx4 v[{WS}:{WS+3}], v{WA0}, s[{S_A}:{S_A+1}]")
    A(f"global_load_dwordx4 v[{WS+4}:{WS+7}], v{WA1}, s[{S_A}:{S_A+1}]")
    A(f"s_mov_b32 s{S_SEG}, 0")
    A(f"s_mul_i32 s{T+8}, s{T+6}, {44*1024}")
    mkbase(A, S_D, Z1F_OFF, [(T + 7, 10), (T + 8, 0)])
    mkbase(A, S_F, ZFLAG, [(T + 6, 14), (S_WAVE, 12)])
    A("s_barrier")
    def loads():
        for k in range(3): A(f"global_load_dwordx4 v[{UL+4*k}:{UL+4*k+3}], v{UW}, s[{S_B}:{S_B+1}] offset:{k*1024} sc1")
        for k in range(6): A(f"global_load_dwordx2 v[{STL+2*k}:{STL+2*k+1}], v{STA}, s[{S_C2}:{S_C2+1}] offset:{k*256} sc1")
    def z1loads():
        if check: wait_flags(A, S_F, FA, 11, fail, 9)
        A(f"v_add_u32 v{t}, 4096, v{L16}"); A(f"v_add_u32 v{t+1}, 8192, v{L16}")
        for j in range(12): A(f"global_load_dwordx4 a[{176+4*j}:{179+4*j}], v{(L16, t, t+1)[j>>2]}, s[{S_D}:{S_D+1}] offset:{(j&3)*1024} sc1")
    if check: wait_flags(A, S_E, FA, 12, fail, 9)
    loads()
    LOOP = A.newlabel("Lg")
    A.label(LOOP)
    for par in range(2):
        wc, wn = WS + 8 * par, WS + 8 * (par ^ 1)
        adv(A, [(S_B, 44 * 1024), (S_C2, 4096), (S_E, 16384)])
        A(f"global_load_dword v{t+5}, v{FA}, s[{S_E}:{S_E+1}] sc1")
        A(f"s_add_u32 s{T}, s{S_SEG}, {par+1}"); A(f"s_and_b32 s{T}, s{T}, 63"); A(f"s_lshl_b32 s{T}, s{T}, 6")
        A(f"v_add_u32 v{t}, s{T}, v{WA0}"); A(f"v_add_u32 v{t+1}, s{T}, v{WA1}")
        A(f"global_load_dwordx4 v[{wn}:{wn+3}], v{t}, s[{S_A}:{S_A+1}]")
        A(f"global_load_dwordx4 v[{wn+4}:{wn+7}], v{t+1}, s[{S_A}:{S_A+1}]")
        A("s_waitcnt vmcnt(3)")
        for k in range(1, 6): A(f"v_add_f32 v{STL}, v{STL}, v{STL+2*k}"); A(f"v_add_f32 v{STL+1}, v{STL+1}, v{STL+2*k+1}")
        A(f"v_mov_b32 v{STL+2}, v{STL}"); A(f"v_mov_b32 v{STL+3}, v{STL+1}")
        A(f"v_permlane32_swap_b32 v{STL}, v{STL+2}"); A(f"v_permlane32_swap_b32 v{STL+1}, v{STL+3}")
        A(f"v_add_f32 v{STL}, v{STL}, v{STL+2}"); A(f"v_add_f32 v{STL+1}, v{STL+1}, v{STL+3}")
        A(f"v_mul_f32 v{STL}, {np_f32_bits(1.0/688):#x}, v{STL}")
        A(f"v_mul_f32 v{STL+1}, {np_f32_bits(1.0/688):#x}, v{STL+1}")
        A(f"v_fma_f32 v{STL+1}, -v{STL}, v{STL}, v{STL+1}")
        A(f"v_max_f32 v{STL+1}, 0, v{STL+1}")
        A(f"v_add_f32 v{STL+1}, {np_f32_bits(1e-5):#x}, v{STL+1}")
        A(f"v_rsq_f32 v{STL+2}, v{STL+1}")
        A(f"v_mul_f32_e64 v{STL+3}, -v{STL}, v{STL+2}")
        A(f"ds_write_b64 v{PW}, v[{STL+2}:{STL+3}]")
        A("s_waitcnt lgkmcnt(0)")
        for k in range(4): A(f"ds_read_b128 v[{RS+4*k}:{RS+4*k+3}], v{PR} offset:{16*k}")
        for k in range(3):
            unpack(A, UN, UL + 4 * k, 4)
            if k == 0: A("s_waitcnt lgkmcnt(0)")
            for e in range(8): A(f"v_fma_f32 v{UN+e}, v{UN+e}, v{RS+2*e}, v{RS+2*e+1}")
            for e in range(4): A(f"v_cvt_pk_bf16_f32 v{UL+4*k+e}, v{UN+2*e}, v{UN+2*e+1}")
            A(f"ds_write_b128 v{UW}, v[{UL+4*k}:{UL+4*k+3}] offset:{LDS_U + par*12288 + k*1024}")
        LNP = A.newlabel("Lgn"); LB = A.newlabel("Lgb")
        A("s_waitcnt vmcnt(2) lgkmcnt(0)")
        A(f"v_cmp_ne_u32 vcc, s{S_NONCE}, v{t+5}")
        A(f"s_and_b32 s{T+1}, vcc_lo, 0xfff")
        if not check: A(f"s_mov_b32 s{T+1}, 0")
        if par == 1:
            A(f"s_cmp_eq_u32 s{S_SEG}, 62"); A(f"s_cselect_b32 s{T+1}, 0, s{T+1}")
        A(f"s_cmp_lg_u32 s{T+1}, 0"); A(f"s_cbranch_scc1 {LNP}")
        loads()
        A.label(LNP)
        A("s_barrier")
        for j in range(12): A(f"ds_read_b128 v[{UB+4*j}:{UB+4*j+3}], v{L16} offset:{LDS_U + par*12288 + j*1024}")
        for j in range(12):
            A(f"s_waitcnt lgkmcnt({11-j})")
            for mt in range(2):
                ac = AC + 8 * j + 4 * mt
                A(f"v_mfma_f32_16x16x32_bf16 v[{ac}:{ac+3}], v[{UB+4*j}:{UB+4*j+3}], v[{wc+4*mt}:{wc+4*mt+3}], v[{ac}:{ac+3}]")
        if par == 1:
            LZ1 = A.newlabel("Lgz1")
            A(f"s_cmp_lg_u32 s{S_SEG}, 60"); A(f"s_cbranch_scc1 {LZ1}")
            A(f"s_cmp_eq_u32 s{s_tb}, 15"); A(f"s_cbranch_scc1 {LZ1}")
            z1loads()
            A.label(LZ1)
        A(f"s_cmp_eq_u32 s{T+1}, 0"); A(f"s_cbranch_scc1 {LB}")
        wait_flags(A, S_E, FA, 12, fail, 9)
        st(5)
        loads()
        A.label(LB)
    A(f"s_add_u32 s{S_SEG}, s{S_SEG}, 2")
    A(f"s_cmp_lt_u32 s{S_SEG}, 64"); A(f"s_cbranch_scc1 {LOOP}")
    st(6)
    LZ2 = A.newlabel("Lgz2")
    A(f"s_cmp_lg_u32 s{s_tb}, 15"); A(f"s_cbranch_scc1 {LZ2}")
    z1loads()
    A.label(LZ2)
    A(f"v_add_u32 v{t}, 4096, v{L16}")
    A(f"s_mov_b32 s{T}, s{T+8}")
    A(f"s_lshr_b32 s{T+1}, s{T+7}, 1")
    mkbase(A, S_H, YF_OFF, [(T, 0), (T + 1, 10)])
    mkbase(A, S_F, YFLAG, [(T + 6, 9), (s_fg, 7)])
    A(f"v_lshlrev_b32 v{t+2}, 16, v{t+2}"); A(f"v_lshlrev_b32 v{t+3}, 16, v{t+3}")
    A(f"v_add_u32 v{WA0}, {22*1024}, v{L16}"); A(f"v_add_u32 v{WA1}, {22*1024+4096}, v{L16}")
    YP = 72
    LSK = A.newlabel("Lgs")
    for jj in range(6):
        if jj == 5: A(f"s_cmp_ge_u32 s{s_fg}, 2"); A(f"s_cbranch_scc1 {LSK}")
        if jj == 0: A("s_waitcnt vmcnt(0)")
        yp = YP + 8 * (jj & 1)
        for h in range(2):
            j = 2 * jj + h
            for e in range(4): A(f"v_accvgpr_read_b32 v{Z1+e}, a{176+4*j+e}")
            unpack(A, UN, Z1, 4)
            for mt in range(2):
                ac = AC + 8 * j + 4 * mt
                for r in range(4):
                    A(f"v_add_f32 v{ac+r}, v{ac+r}, v{t+2+mt}")
                    A(f"v_mul_f32 v{ac+r}, v{ac+r}, v{UN+4*mt+r}")
                A(f"v_cvt_pk_bf16_f32 v{yp+4*mt+2*h}, v{ac}, v{ac+1}"); A(f"v_cvt_pk_bf16_f32 v{yp+4*mt+2*h+1}, v{ac+2}, v{ac+3}")
        if jj == 4:
            LZ = A.newlabel("Lgz")
            A(f"s_cmp_lg_u32 s{s_fg}, 3"); A(f"s_cbranch_scc1 {LZ}")
            A(f"v_mov_b64 v[{yp+2}:{yp+3}], 0"); A(f"v_mov_b64 v[{yp+6}:{yp+7}], 0")
            A.label(LZ)
        A(f"global_store_dwordx4 v{L16 if jj < 4 else t}, v[{yp}:{yp+3}], s[{S_H}:{S_H+1}] offset:{(jj&3)*1024} sc1")
        A(f"global_store_dwordx4 v{WA0 if jj < 4 else WA1}, v[{yp+4}:{yp+7}], s[{S_H}:{S_H+1}] offset:{(jj&3)*1024} sc1")
    A.label(LSK)
    st(7)
    set_flag(A, S_F, 0, L16, t)

def gen_o_weights(A, s_tile):
    T = S_T
    A(f"s_load_dwordx2 s[{T}:{T+1}], s[0:1], {KA['w_out']}")
    A(f"s_and_b32 s{T+5}, s{s_tile}, 3")
    A(f"s_lshl_b32 s{T+6}, s{T+5}, 8"); A(f"s_lshl_b32 s{T+7}, s{S_WAVE}, 6"); A(f"s_add_u32 s{T+6}, s{T+6}, s{T+7}")
    A(f"s_lshl_b32 s{T+8}, s{S_WAVE}, 15")
    A("s_waitcnt lgkmcnt(0)")
    A(f"s_add_u32 s{T}, s{T}, s{T+6}"); A(f"s_addc_u32 s{T+1}, s{T+1}, 0")
    A("s_barrier")
    load_w16(A, T, 1024, 22, lambda g, e: 4 * g + (e % 4) + 16 * (e // 4), 2, lambda nt, ks: ("a", (ks * 2 + nt) * 4), T + 8, 16, rowmax=687, inter=True)
    A("s_barrier")

def gen_o(A, s_tile, fail, check=True, st=lambda k, r=254: None):
    T = S_T
    L16, FA, YW, XA = 1, 2, 3, 4
    t = 8
    YL, YB, AC, XV, GB = 16, 64, 96, 112, 128
    A(f"s_load_dwordx2 s[{T+2}:{T+3}], s[0:1], {KA['out']}")
    A(f"s_lshr_b32 s{T+4}, s{s_tile}, 2"); A(f"s_and_b32 s{T+5}, s{s_tile}, 3")
    A(f"s_lshl_b32 s{T+6}, s{T+5}, 8"); A(f"s_lshl_b32 s{T+7}, s{S_WAVE}, 6"); A(f"s_add_u32 s{T+6}, s{T+6}, s{T+7}")
    A("s_waitcnt lgkmcnt(0)")
    A("s_barrier")
    if check: wait_mod(A, fail, 16, 17, 80, 16)
    ln, n_, g_, t0, t1 = 16, 17, 18, 19, 20
    A(f"v_and_b32 v{ln}, 63, v0"); A(f"v_and_b32 v{n_}, 15, v{ln}"); A(f"v_lshrrev_b32 v{g_}, 4, v{ln}")
    A(f"v_lshlrev_b32 v{L16}, 4, v{ln}"); A(f"v_lshlrev_b32 v{FA}, 2, v{ln}")
    A(f"s_mul_i32 s{T+9}, s{S_WAVE}, {11*1024}"); A(f"v_add_u32 v{YW}, s{T+9}, v{L16}")
    A(f"v_lshrrev_b32 v{t0}, 2, v{n_}"); A(f"v_lshlrev_b32 v{t0}, 3, v{t0}"); A(f"v_and_b32 v{t1}, 3, v{n_}"); A(f"v_add_u32 v{t0}, v{t0}, v{t1}")
    A(f"v_lshlrev_b32 v{XA}, 10, v{t0}"); A(f"v_lshl_add_u32 v{XA}, v{g_}, 4, v{XA}"); A(f"v_add_u32 v{XA}, s{T+6}, v{XA}")
    A(f"v_add_u32 v{XA+1}, 4096, v{XA}")
    A(f"v_lshlrev_b32 v{t0}, 4, v{g_}"); A(f"v_and_b32 v{t1}, 32, v{t0}"); A(f"v_add_u32 v{t0}, v{t0}, v{t1}"); A(f"s_lshl_b32 s{T+9}, s{T+6}, 1"); A(f"v_add_u32 v{t0}, s{T+9}, v{t0}"); A(f"v_add_u32 v{t0}, {MOD_OFF + 80*128}, v{t0}")
    A(f"global_load_dwordx4 v[{GB+8}:{GB+11}], v{t0}, s[{S_WS}:{S_WS+1}] sc1")
    A(f"s_mul_i32 s{T+9}, s{T+4}, {44*1024}")
    mkbase(A, S_A, YF_OFF, [(T + 9, 0)])
    mkbase(A, S_B, X1_OFF, [(T + 4, 15)])
    mkbase(A, S_C2, 0, [(T + 4, 15)], src=T + 2)
    mkbase(A, S_E, YFLAG, [(T + 4, 9)])
    A(f"v_lshlrev_b32 v7, 3, v{L16}")
    if check:
        A(f"s_and_b32 s{T+10}, s{T+4}, 3")
        mkbase(A, S_F, X1FLAG, [(T + 10, 7)])
        wait_flags(A, S_F, FA, 32, fail, t + 2, sleep=4)
    for mt in range(2): A(f"global_load_dwordx4 v[{XV+8+4*mt}:{XV+11+4*mt}], v{XA+mt}, s[{S_B}:{S_B+1}] sc1")
    if check: wait_flags(A, S_E, 7, 4, fail, t + 2)
    st(1)
    A(f"v_add_u32 v{t}, 4096, v{YW}"); A(f"v_add_u32 v{t+1}, 8192, v{YW}")
    for i in range(11): A(f"global_load_dwordx4 v[{YL+4*i}:{YL+4*i+3}], v{(YW, t, t+1)[i>>2]}, s[{S_A}:{S_A+1}] offset:{(i&3)*1024} sc1")
    for i in range(11):
        A(f"s_waitcnt vmcnt({10-i})")
        A(f"ds_write_b128 v{YW}, v[{YL+4*i}:{YL+4*i+3}] offset:{i*1024}")
    A("s_waitcnt lgkmcnt(0)"); A("s_barrier")
    st(2)
    fr = [(mt, j) for j in range(22) for mt in range(2)]
    def rd(i): mt, j = fr[i]; return f"ds_read_b128 v[{YB+4*(i&7)}:{YB+4*(i&7)+3}], v{L16} offset:{(mt*22+j)*1024}"
    for i in range(7): A(rd(i))
    unpack(A, GB, GB + 8, 4)
    for i, (mt, j) in enumerate(fr):
        A(f"s_waitcnt lgkmcnt({min(6, 43-i)})")
        for nt in range(2):
            ac = AC + 8 * mt + 4 * nt
            A(f"v_mfma_f32_16x16x32_bf16 v[{ac}:{ac+3}], {a((j*2+nt)*4, 4)}, v[{YB+4*(i&7)}:{YB+4*(i&7)+3}], " + ("0" if j == 0 else f"v[{ac}:{ac+3}]"))
            if nt == 0 and i + 7 < 44: A(rd(i + 7))
    A("s_waitcnt vmcnt(0)")
    for mt in range(2):
        unpack(A, XV, XV + 8 + 4 * mt, 4)
        for e in range(8): A(f"v_fmac_f32 v{XV+e}, v{AC+8*mt+e}, v{GB+e}")
        for e in range(4): A(f"v_cvt_pk_bf16_f32 v{YL+4*mt+e}, v{XV+2*e}, v{XV+2*e+1}")
        A(f"global_store_dwordx4 v{XA+mt}, v[{YL+4*mt}:{YL+4*mt+3}], s[{S_C2}:{S_C2+1}]")
```

```python
P_OFF   = 0x0000000
Q_OFF   = 0x0040000
FLAG_OFF= 0x0050000
KMFLAG  = FLAG_OFF + 0x0000

MOD_OFF = 0x0078000
H1F_OFF = 0x0100000
REC_OFF = 0x0400000
REC_SZ  = 0x8000
R_KX, R_VX, R_QX, R_KM, R_VM = 0x0, 0x2000, 0x4000, 0x6000, 0x7000
TST_OFF = 0x00E0000
KA = dict(x=0, mem0=8, Wq=16, Wk=24, Wv=32, Wo=40, seglen=48, Bx=56, w_in=64, w_sp=72, b_sp=80, w_out=88, c=96, w_mod=104, out=112, dbg=120, ws=128)
DBG_XCNT = 0
DBG_TEAM = 16
DBG_TINIT= 17
DBG_WCNT = 18
DBG_FAIL = 20
DBG_TIME = 24
PARTFLAG= 0x7A00000
H2FLAG  = 0x7B00000
ZFLAG   = 0x7C00000
YFLAG   = 0x7980000
X1FLAG  = 0x7990000
H1FLAG  = 0x79B0000
TINITF  = FLAG_OFF + 0x1A800
FAILW   = FLAG_OFF + 0x1AC00
QKVFLAG = 0x79A0000
FLAG_END= FLAG_OFF + 0x20000
PART_OFF= 0x4800000
X1_OFF  = 0x6800000
H2F_OFF = 0x6A00000
Z1F_OFF = 0x6C00000
UF_OFF  = 0x7000000
STAT_OFF= 0x7400000
YF_OFF  = 0x7500000
S_NONCE, S_CONF, S_WIDX, S_XCC = 97, 98, 99, 100
```

```python
from asm import *
from layout import *
from team import S_WS, S_DBG, S_RANK, S_WAVE, S_T, S_SPIN, np_f32_bits
LOG2E = 1.4426950408889634
from flags import wait_flags, set_flag

def unpack(A, dst, src, n):
    for i in range(n):
        A(f"v_lshlrev_b32 v{dst+2*i}, 16, v{src+i}")
        A(f"v_and_b32 v{dst+2*i+1}, 0xffff0000, v{src+i}")

def gen_mod(A, s_idx, coh="sc1", confirm=None, flag=False):
    T = S_T
    A(f"s_load_dwordx2 s[{T}:{T+1}], s[0:1], {KA['c']}")
    A(f"s_load_dwordx2 s[{T+2}:{T+3}], s[0:1], {KA['w_mod']}")
    A("v_lshrrev_b32 v1, 2, v0")
    A("v_and_b32 v2, 3, v0")
    A("v_lshlrev_b32 v3, 4, v1")
    A(f"s_mov_b32 s{T+4}, {8*6144}")
    A(f"v_mul_lo_u32 v4, v1, s{T+4}")
    A("v_lshl_add_u32 v4, v2, 4, v4")
    A(f"s_lshl_b32 s{T+5}, s{s_idx}, 6")
    A(f"v_add_u32 v4, s{T+5}, v4")
    A("s_waitcnt lgkmcnt(0)")
    A(f"global_load_dwordx4 v[8:11], v3, s[{T}:{T+1}]")
    for r in range(8):
        A(f"global_load_dwordx4 v[{16+4*r}:{19+4*r}], v4, s[{T+2}:{T+3}]")
        if r < 7: A("v_add_u32 v4, 6144, v4")
    A("s_waitcnt vmcnt(8)")
    unpack(A, 48, 8, 4)
    for i in range(8):
        A(f"v_mul_f32 v{56+i}, {np_f32_bits(-LOG2E):#x}, v{48+i}")
        A(f"v_exp_f32 v{56+i}, v{56+i}")
        A(f"v_add_f32 v{56+i}, 1.0, v{56+i}")
        A(f"v_rcp_f32 v{56+i}, v{56+i}")
        A(f"v_mul_f32 v{48+i}, v{48+i}, v{56+i}")
    for i in range(4): A(f"v_cvt_pk_bf16_f32 v{8+i}, v{48+2*i}, v{49+2*i}")
    unpack(A, 48, 8, 4)
    for i in range(8): A(f"v_mov_b32 v{64+i}, 0")
    for r in range(8):
        A(f"s_waitcnt vmcnt({7-r})")
        unpack(A, 56, 16 + 4 * r, 4)
        for i in range(8): A(f"v_fmac_f32 v{64+i}, v{48+r}, v{56+i}")
    A("v_lshlrev_b32 v5, 5, v0")
    A("ds_write_b128 v5, v[64:67]"); A("ds_write_b128 v5, v[68:71] offset:16")
    A("s_waitcnt lgkmcnt(0)"); A("s_barrier")
    A("v_and_b32 v6, 31, v0"); A("v_lshrrev_b32 v7, 5, v0")
    A("v_lshlrev_b32 v5, 10, v7"); A("v_lshl_add_u32 v5, v6, 2, v5")
    for r in range(8): A(f"ds_read_b32 v{16+r}, v5 offset:{r*128}")
    A("s_waitcnt lgkmcnt(0)")
    for r in range(1, 8): A(f"v_add_f32 v16, v16, v{16+r}")
    A("v_lshlrev_b32 v5, 2, v0")
    A("ds_write_b32 v5, v16 offset:8192")
    A("s_waitcnt lgkmcnt(0)"); A("s_barrier")
    if confirm: confirm()
    L = A.newlabel("Lmod")
    A(f"s_cmp_lg_u32 s{S_WAVE}, 0"); A(f"s_cbranch_scc1 {L}")
    A("v_lshlrev_b32 v5, 2, v6")
    for r in range(8): A(f"ds_read_b32 v{16+r}, v5 offset:{8192 + r*128}")
    A("s_waitcnt lgkmcnt(0)")
    for r in range(1, 8): A(f"v_add_f32 v16, v16, v{16+r}")
    A("v_cvt_pk_bf16_f32 v16, v16, v16")
    A(f"s_lshr_b32 s{T+6}, s{s_idx}, 4")
    A(f"s_cmp_eq_u32 s{T+6}, 1"); A(f"s_cselect_b32 s{T+7}, 1.0, 0")
    A(f"s_cmp_eq_u32 s{T+6}, 4"); A(f"s_cselect_b32 s{T+7}, 1.0, s{T+7}")
    A("v_and_b32 v16, 0xffff0000, v16")
    A(f"v_add_f32 v16, s{T+7}, v16")
    A("v_cvt_pk_bf16_f32 v16, v16, v16")
    A("v_mov_b32_dpp v17, v16 quad_perm:[1,1,3,3] row_mask:0xf bank_mask:0xf")
    A("v_and_b32 v16, 0xffff, v16"); A("v_and_b32 v17, 0xffff0000, v17"); A("v_or_b32 v16, v16, v17")
    A(f"v_mov_b32 v17, s{S_NONCE}")
    A("v_and_b32 v18, 63, v0")
    A("v_cmp_le_u32 vcc, 32, v18")
    A("v_cndmask_b32 v16, v16, v17, vcc")
    A("v_and_b32 v5, 15, v18"); A("v_lshlrev_b32 v5, 1, v5"); A("v_bfe_u32 v19, v18, 4, 1"); A("v_lshl_add_u32 v5, v19, 6, v5")
    A("v_and_b32 v19, 2, v18"); A("v_lshlrev_b32 v19, 5, v19"); A("v_add_u32 v19, 32, v19")
    A("v_cndmask_b32 v5, v5, v19, vcc")
    A(f"s_lshl_b32 s{T+5}, s{T+5}, 1"); A(f"s_add_u32 s{T+5}, s{T+5}, {MOD_OFF}")
    A(f"v_add_u32 v5, s{T+5}, v5")
    A("s_mov_b32 exec_lo, 0x55555555"); A("s_mov_b32 exec_hi, 5")
    A(f"global_store_dword v5, v16, s[{S_WS}:{S_WS+1}] {coh}")
    A("s_mov_b64 exec, -1")
    A.label(L)

def xreduce8(A, x, t, op="v_add_f32"):
    A(f"{op}_dpp v{x}, v{x}, v{x} row_ror:8 row_mask:0xf bank_mask:0xf")
    A(f"v_mov_b32 v{t}, v{x}")
    A(f"v_permlane16_swap_b32 v{x}, v{t}")
    A(f"{op} v{x}, v{x}, v{t}")
    A(f"v_mov_b32 v{t}, v{x}")
    A(f"v_permlane32_swap_b32 v{x}, v{t}")
    A(f"{op} v{x}, v{x}, v{t}")

def gen_ln_core(A, X, t, n=64):
    A(f"v_add_f32 v{t}, v{X}, v{X+1}")
    A(f"v_add_f32 v{t+1}, v{X+2}, v{X+3}")
    for i in range(4, n, 2):
        A(f"v_add_f32 v{t}, v{t}, v{X+i}"); A(f"v_add_f32 v{t+1}, v{t+1}, v{X+i+1}")
    A(f"v_add_f32 v{t}, v{t}, v{t+1}")
    xreduce8(A, t, t + 1)
    A(f"v_mul_f32 v{t}, {np_f32_bits(1.0/512):#x}, v{t}")
    for i in range(n): A(f"v_sub_f32 v{X+i}, v{X+i}, v{t}")
    A(f"v_mul_f32 v{t}, v{X}, v{X}"); A(f"v_mul_f32 v{t+1}, v{X+1}, v{X+1}")
    for i in range(2, n, 2):
        A(f"v_fmac_f32 v{t}, v{X+i}, v{X+i}"); A(f"v_fmac_f32 v{t+1}, v{X+i+1}, v{X+i+1}")
    A(f"v_add_f32 v{t}, v{t}, v{t+1}")
    xreduce8(A, t, t + 1)
    A(f"v_mov_b32 v{t+1}, {np_f32_bits(1e-5):#x}")
    A(f"v_fmac_f32 v{t+1}, {np_f32_bits(1.0/512):#x}, v{t}")
    A(f"v_rsq_f32 v{t}, v{t+1}")

def gen_ln1(A, s_grp, wait_mod=None, coh="sc1", flag=False):
    T = S_T
    X, RAW, MS, MA, t = 64, 16, 128, 160, 8
    A(f"s_load_dwordx2 s[{T}:{T+1}], s[0:1], {KA['x']}")
    A("v_and_b32 v1, 63, v0"); A("v_and_b32 v2, 7, v1"); A("v_lshrrev_b32 v3, 3, v1")
    A("v_lshlrev_b32 v4, 10, v2"); A("v_lshl_add_u32 v4, v3, 4, v4")
    A(f"s_lshl_b32 s{T+2}, s{s_grp}, 13")
    A(f"v_add_u32 v4, s{T+2}, v4")
    A("s_waitcnt lgkmcnt(0)")
    for i in range(8): A(f"global_load_dwordx4 v[{RAW+4*i}:{RAW+4*i+3}], v4, s[{T}:{T+1}] offset:{i*128}")
    A("v_lshrrev_b32 v5, 1, v3"); A("v_lshlrev_b32 v5, 10, v5")
    A("v_and_b32 v6, 1, v3"); A("v_lshl_add_u32 v5, v6, 9, v5")
    A("v_lshl_add_u32 v5, v2, 4, v5")
    A(f"s_lshr_b32 s{T+3}, s{s_grp}, 2"); A(f"s_lshl_b32 s{T+3}, s{T+3}, 15")
    A(f"s_and_b32 s{T+4}, s{s_grp}, 3"); A(f"s_lshl_b32 s{T+4}, s{T+4}, 7")
    A(f"s_add_u32 s{T+3}, s{T+3}, s{T+4}"); A(f"s_add_u32 s{T+3}, s{T+3}, {H1F_OFF}")
    A(f"v_add_u32 v5, s{T+3}, v5")
    A("v_lshrrev_b32 v6, 1, v3"); A("v_lshlrev_b32 v6, 6, v6"); A("v_and_b32 v7, 1, v3"); A("v_lshl_add_u32 v6, v7, 4, v6"); A(f"v_add_u32 v6, {MOD_OFF}, v6")
    for i in range(8):
        A(f"s_waitcnt vmcnt({7-i})")
        unpack(A, X + 8 * i, RAW + 4 * i, 4)
    gen_ln_core(A, X, t)
    if wait_mod: wait_mod()
    for i in range(8):
        A(f"global_load_dwordx4 v[{MA+4*i}:{MA+4*i+3}], v6, s[{S_WS}:{S_WS+1}] offset:{i*256} {coh}")
        A(f"global_load_dwordx4 v[{MS+4*i}:{MS+4*i+3}], v6, s[{S_WS}:{S_WS+1}] offset:{2048 + i*256} {coh}")
    for i in range(64): A(f"v_mul_f32 v{X+i}, v{X+i}, v{t}")
    for i in range(8):
        A(f"s_waitcnt vmcnt({14-2*i + i})") if False else A(f"s_waitcnt vmcnt({14 - 2*i + i})")
        unpack(A, RAW, MA + 4 * i, 4); unpack(A, RAW + 8, MS + 4 * i, 4)
        for e in range(8): A(f"v_fma_f32 v{X+8*i+e}, v{X+8*i+e}, v{RAW+8+e}, v{RAW+e}")
        for e in range(4): A(f"v_cvt_pk_bf16_f32 v{MA+4*i+e}, v{X+8*i+2*e}, v{X+8*i+2*e+1}")
        A(f"global_store_dwordx4 v5, v[{MA+4*i}:{MA+4*i+3}], s[{S_WS}:{S_WS+1}] {coh}")
        if i < 7: A("v_add_u32 v5, 4096, v5")
    if flag:
        L = A.newlabel("Lln")
        A("s_waitcnt vmcnt(0)"); A("s_barrier")
        A(f"s_cmp_lg_u32 s{S_WAVE}, 0"); A(f"s_cbranch_scc1 {L}")
        A(f"s_lshl_b32 s{T+5}, s{s_grp}, 5"); A(f"s_add_u32 s{T+5}, s{T+5}, {H1FLAG}")
        A(f"v_mov_b32 v5, s{T+5}")
        set_flag(A, S_WS, 0, 5, 6, wait="s_nop 0")
        A.label(L)
```

```python
from asm import *
from layout import *
from flags import wait_flags, set_flag
from team import S_WS, S_DBG, S_RANK, S_WAVE, S_T, S_SPIN

ACC, WF = 128, 64
V_TR, V_DS, V_HL, V_SK, V_SQ, V_PK = 8, 12, 13, 14, 15, 32
S_QF = 74
S_W, S_H, S_REC, S_M0B, S_SLOT, S_NW = 64, 66, 68, 70, 71, 72
NSLOT = 5

def gen_qkv_setup(A):
    T = S_T
    A("v_and_b32 v1, 63, v0")
    A("v_lshrrev_b32 v2, 5, v1"); A("v_lshlrev_b32 v2, 11, v2")
    A("v_bfe_u32 v3, v1, 2, 2"); A("v_lshl_add_u32 v2, v3, 8, v2")
    A("v_bfe_u32 v4, v1, 4, 1"); A("v_lshl_add_u32 v2, v4, 5, v2")
    A("v_and_b32 v4, 3, v1"); A("v_lshl_add_u32 v2, v4, 3, v2")
    for nt in range(4):
        A(f"v_xor_b32 v4, {nt}, v3"); A(f"v_lshl_add_u32 v{V_TR+nt}, v4, 6, v2")
    A("v_lshrrev_b32 v2, 4, v1"); A("v_xor_b32 v4, v3, v2")
    A("v_lshlrev_b32 v2, 13, v2"); A("v_lshl_add_u32 v2, v4, 6, v2")
    A("v_and_b32 v4, 3, v1"); A("v_lshl_add_u32 v2, v4, 4, v2")
    A(f"s_lshl_b32 s{T}, s{S_WAVE}, 15")
    A(f"v_add_u32 v{V_DS}, s{T}, v2")
    A(f"s_lshl_b32 s{S_M0B}, s{S_WAVE}, 10")
    A(f"v_lshlrev_b32 v2, 4, v1"); A(f"s_lshl_b32 s{T}, s{S_WAVE}, 15"); A(f"v_add_u32 v{V_HL}, s{T}, v2")
    A("v_lshlrev_b32 v17, 4, v1")
    A("v_bfe_u32 v2, v1, 3, 1"); A("v_lshlrev_b32 v2, 12, v2")
    A("v_lshrrev_b32 v3, 5, v1"); A("v_lshl_add_u32 v2, v3, 8, v2")
    A("v_bfe_u32 v4, v1, 4, 1"); A("v_lshl_add_u32 v2, v4, 7, v2")
    A("v_and_b32 v4, 7, v1"); A(f"v_lshl_add_u32 v{V_SK}, v4, 4, v2")
    A("v_and_b32 v4, 15, v1"); A("v_lshlrev_b32 v4, 4, v4"); A(f"v_lshl_add_u32 v{V_SQ}, v3, 8, v4")
    A("v_bfe_u32 v16, v1, 4, 1")

def dma_group(A, sw, g, slot_sreg_or_const):
    T = S_T
    for i in range(8):
        A(f"s_add_u32 m0, s{S_SLOT}, {i*4096}")
        A(f"v_add_u32 v{2+(i&1)}, {(128*g + 16*i)*8192}, v{V_DS}")
        A(f"global_load_lds_dwordx4 v{2+(i&1)}, s[{sw}:{sw+1}]")

def gen_chunk(A, mat, first, has_next, coh="sc1", prev=None):
    T = S_T
    for i in range(0, 128, 2): A(f"v_mov_b64 v[{ACC+i}:{ACC+i+1}], 0")
    for g in range(4):
        slot = (A.ring + g) % NSLOT
        A(f"s_waitcnt vmcnt({A.pend[g]})")
        if g == 1 and prev is not None:
            set_flag(A, S_QF, "kvq".index(prev) * 256, 17, 18, wait=f"s_waitcnt vmcnt({8 if has_next else 0})", lanes=2)
        A("s_barrier")
        if has_next and (g > 0 or True):
            ng = g if True else None
        base = slot * 32768
        for nt in range(4): A(f"v_add_u32 v{24+nt}, {base}, v{V_TR+nt}")
        def rd(ks, buf):
            L = []
            for nt in range(4):
                L.append(f"ds_read_b64_tr_b16 v[{WF+16*buf+4*nt}:{WF+16*buf+4*nt+1}], v{24+nt} offset:{ks*4096}")
                L.append(f"ds_read_b64_tr_b16 v[{WF+16*buf+4*nt+2}:{WF+16*buf+4*nt+3}], v{24+nt} offset:{ks*4096+1024}")
            return L
        for x in rd(0, 0): A(x)
        extra = []
        if has_next:
            ns = (A.ring + 4 + g) % NSLOT
            for i in range(8):
                extra.append(f"s_add_u32 m0, s{S_M0B}, {ns*32768 + i*4096}\nv_add_u32 v{2+(i&1)}, {(128*g + 16*i)*8192}, v{V_DS}\nglobal_load_lds_dwordx4 v{2+(i&1)}, s[{S_NW}:{S_NW+1}]")
        for ks in range(8):
            buf = ks & 1
            nxt = rd(ks + 1, buf ^ 1) if ks < 7 else []
            A(f"s_waitcnt lgkmcnt(0)")
            kk = 8 * g + ks
            for j in range(8):
                tt, nt = j >> 2, j & 3
                acc = ACC + 16 * (4 * tt + nt)
                h = a((kk * 2 + tt) * 4, 4); w = v(WF + 16 * buf + 4 * nt, 4)
                ops = (h, w) if mat == "v" else (w, h)
                A(f"v_mfma_f32_32x32x16_bf16 v[{acc}:{acc+15}], {ops[0]}, {ops[1]}, v[{acc}:{acc+15}]")
                if nxt and j < 4: A(nxt[2 * j]); A(nxt[2 * j + 1])
                if j == 5 and extra: A(extra.pop(0))
    A.ring = (A.ring + 4) % NSLOT
    epilogue(A, mat, (0, 1), coh)

def epilogue(A, mat, tts, coh):
    off = {"k": R_KX, "v": R_VX, "q": R_QX}[mat]
    if mat == "k": A(f"v_mov_b32 v28, v{V_SK}")
    else: A(f"v_lshl_add_u32 v28, v16, {12 if mat == 'q' else 10}, v{V_SQ}")
    A(f"v_add_u32 v28, {off}, v28")
    A(f"v_add_u32 v29, {4 * REC_SZ}, v28")
    if mat == "v": A("v_add_u32 v30, 4096, v28"); A("v_add_u32 v31, 4096, v29")
    n = 0
    for tt in tts:
        for nt in range(4):
            acc = ACC + 16 * (4 * tt + nt)
            pk = V_PK + 8 * (n & 1); n += 1
            for e in range(8): A(f"v_cvt_pk_bf16_f32 v{pk+e}, v{acc+2*e}, v{acc+2*e+1}")
            if mat == "v": ar, o = 28 + tt + 2 * (nt >> 1), (nt & 1) * 2048
            else: ar, o = 28 + tt, nt * 1024
            A(f"global_store_dwordx4 v{ar}, v[{pk}:{pk+3}], s[{S_REC}:{S_REC+1}] offset:{o} {coh}")
            A(f"global_store_dwordx4 v{ar}, v[{pk+4}:{pk+7}], s[{S_REC}:{S_REC+1}] offset:{o+512} {coh}")

def gen_split_chunk(A, mat, coh, st=lambda k, r: None):
    A("s_barrier")
    st(7, 48)
    A(f"v_mov_b32 v19, 0")
    for tt in range(2):
        def rd(kk, buf):
            L = []
            for nt in range(4):
                ar = (V_TR + nt) if kk < 16 else 24 + nt
                L.append(f"ds_read_b64_tr_b16 v[{WF+16*buf+4*nt}:{WF+16*buf+4*nt+1}], v{ar} offset:{(kk&15)*4096}")
                L.append(f"ds_read_b64_tr_b16 v[{WF+16*buf+4*nt+2}:{WF+16*buf+4*nt+3}], v{ar} offset:{(kk&15)*4096+1024}")
            return L
        if tt == 0:
            for nt in range(4): A(f"v_add_u32 v{24+nt}, 65536, v{V_TR+nt}")
        for x in rd(0, 0): A(x)
        for kk in range(32):
            buf = kk & 1
            nxt = rd(kk + 1, buf ^ 1) if kk < 31 else []
            if tt == 0 and kk % 4 == 0: A(f"s_waitcnt vmcnt({min(63, 60 - kk)})")
            if tt == 1 and kk == 0: A("s_waitcnt vmcnt(8)")
            if tt == 1 and kk == 10: set_flag(A, S_QF, "kvq".index(mat) * 256, 19, 18); st(4, 48)
            A(f"s_waitcnt lgkmcnt(0)")
            for nt in range(4):
                acc = ACC + 16 * (4 * tt + nt)
                h = a((kk * 2 + tt) * 4, 4); w = v(WF + 16 * buf + 4 * nt, 4)
                ops = (h, w) if mat == "v" else (w, h)
                A(f"v_mfma_f32_32x32x16_bf16 v[{acc}:{acc+15}], {ops[0]}, {ops[1]}, " + ("0" if kk == 0 else f"v[{acc}:{acc+15}]"))
                if nxt and nt < 2:
                    for x in nxt[4 * nt:4 * nt + 4]: A(x)
        if tt == 0: st(3, 48)
        epilogue(A, mat, (tt,), coh)
    set_flag(A, S_QF, "kvq".index(mat) * 256 + 16, 19, 18)

def gen_unit(A, s_blk, s_head, mats=("k", "v", "q"), coh="sc1", flags=False, fail=None, confirm=None, wfirst=True, split=False, st=lambda k, r: None):
    T = S_T
    A(f"s_load_dwordx4 s[{T}:{T+3}], s[0:1], {KA['Wq']}")
    A(f"s_load_dwordx2 s[{T+4}:{T+5}], s[0:1], {KA['Wv']}")
    A(f"s_lshl_b32 s{T+6}, s{s_blk}, 18")
    A(f"s_add_u32 s{S_H}, s{S_WS}, {H1F_OFF}"); A(f"s_addc_u32 s{S_H+1}, s{S_WS+1}, 0")
    A(f"s_add_u32 s{S_H}, s{S_H}, s{T+6}"); A(f"s_addc_u32 s{S_H+1}, s{S_H+1}, 0")
    A(f"s_lshl_b32 s{T+7}, s{s_head}, 21"); A(f"s_add_u32 s{T+7}, s{T+7}, s{T+6}")
    A(f"s_lshl_b32 s{T+8}, s{S_WAVE}, 15"); A(f"s_add_u32 s{T+7}, s{T+7}, s{T+8}")
    A(f"s_add_u32 s{T+7}, s{T+7}, {REC_OFF}")
    A(f"s_add_u32 s{S_REC}, s{S_WS}, s{T+7}"); A(f"s_addc_u32 s{S_REC+1}, s{S_WS+1}, 0")
    A(f"s_lshl_b32 s{T+8}, s{s_head}, 8")
    A("s_waitcnt lgkmcnt(0)")
    for m in range(3):
        A(f"s_add_u32 s{T+2*m}, s{T+2*m}, s{T+8}"); A(f"s_addc_u32 s{T+2*m+1}, s{T+2*m+1}, 0")
    wp = {"q": T, "k": T + 2, "v": T + 4}
    A.ring = 0
    A("s_barrier")
    if flags:
        if wfirst:
            for g in range(4):
                A(f"s_add_u32 s{S_SLOT}, s{S_M0B}, {g*32768}")
                dma_group(A, wp[mats[0]], g, None)
        if confirm: confirm()
        A(f"s_lshl_b32 s{T+9}, s{s_head}, 10"); A(f"s_lshl_b32 s{T+10}, s{s_blk}, 5"); A(f"s_add_u32 s{T+9}, s{T+9}, s{T+10}")
        A(f"s_lshl_b32 s{T+10}, s{S_WAVE}, 2"); A(f"s_add_u32 s{T+9}, s{T+9}, s{T+10}"); A(f"s_add_u32 s{T+9}, s{T+9}, {QKVFLAG}")
        A(f"s_add_u32 s{S_QF}, s{S_WS}, s{T+9}"); A(f"s_addc_u32 s{S_QF+1}, s{S_WS+1}, 0")
        A(f"s_lshl_b32 s{T+9}, s{s_blk}, 10"); A(f"s_lshl_b32 s{T+10}, s{S_WAVE}, 7"); A(f"s_add_u32 s{T+9}, s{T+9}, s{T+10}"); A(f"s_add_u32 s{T+9}, s{T+9}, {H1FLAG}")
        A("v_and_b32 v2, 1, v0"); A("v_lshlrev_b32 v2, 9, v2"); A(f"v_add_u32 v2, s{T+9}, v2")
        wait_flags(A, S_WS, 2, 2, fail, 19)
    if split:
        st(5, 48)
        for tt in range(2):
            for ks in range(32):
                if ks % 4 == 0: A(f"v_add_u32 v4, {ks*1024 + tt*131072}, v{V_HL}")
                A(f"global_load_dwordx4 {a((ks*2+tt)*4, 4)}, v4, s[{S_H}:{S_H+1}] offset:{(ks%4)*1024} {coh}")
                if tt == 1 and ks == 28: A("s_waitcnt vmcnt(58)")
        gen_split_chunk(A, mats[0], coh, st)
        for mat in mats[1:]:
            A("s_barrier")
            for g in range(4):
                A(f"s_add_u32 s{S_SLOT}, s{S_M0B}, {g*32768}")
                dma_group(A, wp[mat], g, None)
            A.ring = 0; A.pend = [24, 16, 8, 0]
            gen_chunk(A, mat, False, False, coh)
            set_flag(A, S_QF, "kvq".index(mat) * 256, 17, 18, lanes=2)
        return
    for g in range(4):
        if not (flags and wfirst):
            A(f"s_add_u32 s{S_SLOT}, s{S_M0B}, {g*32768}")
            dma_group(A, wp[mats[0]], g, None)
        for ks in range(8 * g, 8 * g + 8):
            if ks % 4 == 0: A(f"v_add_u32 v4, {ks*1024}, v{V_HL}"); A(f"v_add_u32 v5, {ks*1024 + 131072}, v{V_HL}")
            for tt in range(2):
                A(f"global_load_dwordx4 {a((ks*2+tt)*4, 4)}, v{4+tt}, s[{S_H}:{S_H+1}] offset:{(ks%4)*1024} {coh}")
        if not (flags and wfirst):
            if g == 1: A("s_waitcnt vmcnt(24)")
            if g == 2: A("s_waitcnt vmcnt(24)")
        elif g == 2: A("s_waitcnt vmcnt(32)")
    for ci, mat in enumerate(mats):
        has_next = ci + 1 < len(mats)
        if has_next: A(f"s_mov_b64 s[{S_NW}:{S_NW+1}], s[{wp[mats[ci+1]]}:{wp[mats[ci+1]]+1}]")
        nx = 8 if has_next else 0
        if ci == 0: A.pend = [48, 32 + nx, 16 + 2 * nx, 3 * nx] if (flags and wfirst) else [48, 48 + nx, 24 + 2 * nx, 3 * nx]
        else: A.pend = [24 + 16, 16 + 16 + nx, 8 + 16 + 2 * nx, 16 + 3 * nx]
        A.pend = [min(p, 63) for p in A.pend]
        gen_chunk(A, mat, ci == 0, has_next, coh, prev=(mats[ci - 1] if flags and ci > 0 else None))
    if flags: set_flag(A, S_QF, "kvq".index(mats[-1]) * 256, 17, 18, lanes=2)
```

```python
from asm import *
from layout import *
from team import S_WS, S_DBG, S_RANK, S_WAVE, S_T, S_SPIN, np_f32_bits
from pre import unpack, xreduce8, LOG2E
from attn import wait_flags, set_flag
S_A, S_B, S_C2, S_D, S_E, S_F, S_SEG = 64, 66, 68, 70, 72, 74, 76

def mkbase(A, dst, const, parts, src=S_WS):
    T = S_T
    A(f"s_add_u32 s{dst}, s{src}, {const}"); A(f"s_addc_u32 s{dst+1}, s{src+1}, 0")
    for sr, sh in parts:
        A(f"s_lshl_b32 s{T+11}, s{sr}, {sh}"); A(f"s_add_u32 s{dst}, s{dst}, s{T+11}"); A(f"s_addc_u32 s{dst+1}, s{dst+1}, 0")
def adv(A, lst):
    for b, inc in lst: A(f"s_add_u32 s{b}, s{b}, {inc}"); A(f"s_addc_u32 s{b+1}, s{b+1}, 0")

TOUCH = False
def wait_mod(A, fail, t0, t1, first=0, n=64):
    A(f"v_and_b32 v{t0}, 63, v0"); A(f"v_lshlrev_b32 v{t0}, 6, v{t0}"); A(f"v_add_u32 v{t0}, {MOD_OFF + 32 + first * 128}, v{t0}")
    n *= 2
    while n > 0:
        wait_flags(A, S_WS, t0, min(n, 64), fail, t1, drain=True)
        n -= 64
        if n > 0: A(f"v_add_u32 v{t0}, 4096, v{t0}")

def gen_red(A, s_gam, s_phase, NR, fail, check=True, st=lambda k, r=254: None):
    T = S_T
    PA, XA, HA, FA, LW, LR, X1A = 1, 2, 3, 4, 5, 6, 7
    GA, SB, CB, XV, AC, RAW, t = 16, 24, 32, 40, 48, 96, 8
    XR = 56
    C10, C01 = 12, 13
    A(f"s_load_dwordx2 s[{T}:{T+1}], s[0:1], {KA['x']}")
    ln, r4, c, t0, t1 = 96, 97, 98, 99, 100
    A(f"v_and_b32 v{ln}, 63, v0"); A(f"v_and_b32 v{r4}, 3, v{ln}"); A(f"v_lshrrev_b32 v{c}, 2, v{ln}")
    A(f"v_lshlrev_b32 v{PA}, 9, v{c}"); A(f"v_lshl_add_u32 v{PA}, v{r4}, 4, v{PA}")
    A(f"v_lshrrev_b32 v{t0}, 2, v{c}"); A(f"v_lshlrev_b32 v{t0}, 6, v{t0}")
    A(f"v_bfe_u32 v{t1}, v{c}, 1, 1"); A(f"v_lshl_add_u32 v{t0}, v{t1}, 5, v{t0}")
    A(f"v_and_b32 v{t1}, 1, v{c}"); A(f"v_lshl_add_u32 v{t0}, v{t1}, 3, v{t0}")
    A(f"s_lshl_b32 s{T+2}, s{S_WAVE}, 8"); A(f"v_add_u32 v{t0}, s{T+2}, v{t0}")
    A(f"v_lshl_add_u32 v{XA}, v{r4}, 10, v{t0}")
    A(f"v_and_b32 v{t1}, 0xffe0, v{t0}"); A(f"v_add_u32 v{t0}, v{t0}, v{t1}")
    A(f"v_add_u32 v{t0}, {MOD_OFF + 4096}, v{t0}")
    if check: wait_mod(A, fail, t1, t1 + 1, 32, 48)
    A(f"v_add_u32 v{t1}, 4096, v{t0}")
    for k in range(3):
        for hf in range(2):
            A(f"global_load_dwordx2 v[{RAW+8+4*k+2*hf}:{RAW+9+4*k+2*hf}], v{t0 if k < 2 else t1}, s[{S_WS}:{S_WS+1}] offset:{(k&1)*2048 + hf*16} sc1")
    A(f"v_lshrrev_b32 v{t1}, 2, v{c}"); A(f"v_lshlrev_b32 v{HA}, 10, v{t1}")
    A(f"v_and_b32 v{t1}, 3, v{c}"); A(f"v_lshl_add_u32 v{HA}, v{t1}, 8, v{HA}")
    A(f"v_lshl_add_u32 v{HA}, v{r4}, 4, v{HA}")
    A(f"v_lshlrev_b32 v{FA}, 2, v{ln}")
    A(f"v_lshlrev_b32 v{X1A}, 7, v{ln}")
    A(f"v_lshlrev_b32 v{LR}, 4, v{r4}")
    A(f"s_lshl_b32 s{T+3}, s{S_WAVE}, 2"); A(f"v_lshl_add_u32 v{LW}, v{r4}, 4, s{T+3}")
    A(f"v_mov_b32 v{C10}, 0x3f80"); A(f"v_mov_b32 v{C01}, 0x3f800000")
    A(f"s_and_b32 s{T+4}, s{s_gam}, 1"); A(f"s_lshr_b32 s{T+5}, s{s_gam}, 1")
    A("s_waitcnt lgkmcnt(0)")
    mkbase(A, S_A, PART_OFF, [(s_phase, 19), (S_WAVE, 13), (s_gam, 6)])
    mkbase(A, S_B, 0, [(s_phase, 15), (s_gam, 12)], src=T)
    mkbase(A, S_C2, X1_OFF, [(s_phase, 15), (s_gam, 12)])
    mkbase(A, S_D, H2F_OFF, [(s_phase, 15), (S_WAVE, 12), (T + 4, 14), (T + 5, 6)])
    mkbase(A, S_E, PARTFLAG, [(s_phase, 14), (S_WAVE, 12)])
    mkbase(A, S_F, H2FLAG, [(s_phase, 11), (s_gam, 7)])
    A(f"v_lshlrev_b32 v14, 10, v{ln}")
    A("s_waitcnt vmcnt(0)")
    for k, dst in enumerate((GA, SB, CB)): unpack(A, dst, RAW + 8 + 4 * k, 4)
    A(f"s_mov_b32 s{S_SEG}, s{s_phase}")
    LOOP = A.newlabel("Lr")
    A.label(LOOP)
    for hf in range(2): A(f"global_load_dwordx2 v[{XR+2*hf}:{XR+2*hf+1}], v{XA}, s[{S_B}:{S_B+1}] offset:{hf*16}")
    for i in range(8): A(f"v_mov_b32 v{AC+i}, 0")
    if TOUCH:
        A(f"v_lshlrev_b32 v{t}, 13, v{FA}")
        A("s_mov_b64 exec, 0xffff")
        A(f"global_load_dword v{t+2}, v{t}, s[{S_A}:{S_A+1}] sc1")
        A("s_mov_b64 exec, -1")
    if check: wait_flags(A, S_E, X1A, 32, fail, t + 3)
    st(5)
    A(f"v_mov_b32 v{t}, v{PA}")
    for p in range(16):
        A(f"global_load_dwordx4 v[{RAW+4*p}:{RAW+4*p+3}], v{t+(p&1)}, s[{S_A}:{S_A+1}] sc1")
        if p < 15: A(f"v_add_u32 v{t+((p+1)&1)}, {0x8000*(p+1)}, v{PA}")
    A("s_waitcnt vmcnt(16)")
    unpack(A, XV, XR, 4)
    for p in range(16):
        A(f"s_waitcnt vmcnt({15-p})")
        for e in range(4):
            A(f"v_dot2c_f32_bf16 v{AC+2*e}, v{RAW+4*p+e}, v{C10}")
            A(f"v_dot2c_f32_bf16 v{AC+2*e+1}, v{RAW+4*p+e}, v{C01}")
    st(6)
    for i in range(8): A(f"v_fmac_f32 v{XV+i}, v{AC+i}, v{GA+i}")
    for i in range(4): A(f"v_cvt_pk_bf16_f32 v{XR+i}, v{XV+2*i}, v{XV+2*i+1}")
    unpack(A, XV, XR, 4)
    def wgsum(off):
        A(f"v_add_f32_dpp v{t}, v{t}, v{t} row_ror:4 row_mask:0xf bank_mask:0xf")
        xreduce8(A, t, t + 1)
        A(f"ds_write_b32 v{LW}, v{t} offset:{off}")
        A("s_waitcnt lgkmcnt(0)"); A("s_barrier")
        A(f"ds_read_b128 v[{AC}:{AC+3}], v{LR} offset:{off}")
        A("s_waitcnt lgkmcnt(0)")
        A(f"v_add_f32 v{t}, v{AC}, v{AC+1}"); A(f"v_add_f32 v{t+1}, v{AC+2}, v{AC+3}"); A(f"v_add_f32 v{t}, v{t}, v{t+1}")
    A(f"v_add_f32 v{t}, v{XV}, v{XV+1}"); A(f"v_add_f32 v{t+1}, v{XV+2}, v{XV+3}")
    for i in range(4, 8, 2): A(f"v_add_f32 v{t}, v{t}, v{XV+i}"); A(f"v_add_f32 v{t+1}, v{t+1}, v{XV+i+1}")
    A(f"v_add_f32 v{t}, v{t}, v{t+1}")
    wgsum(0)
    A(f"v_mul_f32 v{t}, {np_f32_bits(1.0/512):#x}, v{t}")
    for i in range(8): A(f"v_sub_f32 v{XV+i}, v{XV+i}, v{t}")
    A(f"v_mul_f32 v{t}, v{XV}, v{XV}"); A(f"v_mul_f32 v{t+1}, v{XV+1}, v{XV+1}")
    for i in range(2, 8, 2): A(f"v_fmac_f32 v{t}, v{XV+i}, v{XV+i}"); A(f"v_fmac_f32 v{t+1}, v{XV+i+1}, v{XV+i+1}")
    A(f"v_add_f32 v{t}, v{t}, v{t+1}")
    wgsum(128)
    A(f"v_mov_b32 v{t+1}, {np_f32_bits(1e-5):#x}")
    A(f"v_fmac_f32 v{t+1}, {np_f32_bits(1.0/512):#x}, v{t}")
    A(f"v_rsq_f32 v{t}, v{t+1}")
    for i in range(8): A(f"v_mul_f32 v{XV+i}, v{XV+i}, v{t}")
    for i in range(8): A(f"v_fma_f32 v{XV+i}, v{XV+i}, v{CB+i}, v{SB+i}")
    for i in range(4): A(f"v_cvt_pk_bf16_f32 v{AC+i}, v{XV+2*i}, v{XV+2*i+1}")
    A(f"global_store_dwordx4 v{HA}, v[{AC}:{AC+3}], s[{S_D}:{S_D+1}] sc1")
    st(7)
    LW0 = A.newlabel("Lrw")
    A("s_waitcnt vmcnt(0)"); A("s_barrier")
    A(f"s_cmp_lg_u32 s{S_WAVE}, 0"); A(f"s_cbranch_scc1 {LW0}")
    set_flag(A, S_F, 0, 14, t, lanes=2, wait="s_nop 0")
    A.label(LW0)
    for hf in range(2): A(f"global_store_dwordx2 v{XA}, v[{XR+2*hf}:{XR+2*hf+1}], s[{S_C2}:{S_C2+1}] offset:{hf*16} sc1")
    adv(A, [(S_A, NR << 19), (S_B, NR << 15), (S_C2, NR << 15), (S_D, NR << 15), (S_E, NR << 14), (S_F, NR << 11)])
    A(f"s_add_u32 s{S_SEG}, s{S_SEG}, {NR}")
    A(f"s_cmp_lt_u32 s{S_SEG}, 64"); A(f"s_cbranch_scc1 {LOOP}")
    mkbase(A, S_F, X1FLAG, [(s_phase, 7), (s_gam, 4), (S_WAVE, 2)])
    set_flag(A, S_F, 0, FA, t)

def load_w16(A, sw, pitch, nks, rows_fn, ntile, dst_fn, lds_base_sreg, tmp, rowmax=None, inter=False):
    ln, a0, a1, src, TR0 = tmp, tmp + 1, tmp + 2, tmp + 3, tmp + 4
    rb = 32 * ntile
    upr = rb // 16
    rpi = 64 // upr
    A(f"v_and_b32 v{ln}, 63, v0")
    d1 = rows_fn(1, 0) - rows_fn(0, 0); d2 = rows_fn(2, 0) - rows_fn(0, 0); sec = rows_fn(0, 4) - rows_fn(0, 0)
    assert rows_fn(3, 0) == d1 + d2
    A(f"v_bfe_u32 v{a0}, v{ln}, 4, 1"); A(f"v_mul_u32_u24 v{a0}, {d1}, v{a0}")
    A(f"v_bfe_u32 v{a1}, v{ln}, 5, 1"); A(f"v_mul_u32_u24 v{a1}, {d2}, v{a1}"); A(f"v_add_u32 v{a0}, v{a0}, v{a1}")
    A(f"v_bfe_u32 v{a1}, v{ln}, 2, 2"); A(f"v_add_u32 v{a0}, v{a0}, v{a1}")
    A(f"v_mul_u32_u24 v{a0}, {rb}, v{a0}")
    A(f"v_and_b32 v{a1}, 3, v{ln}"); A(f"v_lshl_add_u32 v{a0}, v{a1}, {4 if inter else 3}, v{a0}")
    A(f"v_add_u32 v{TR0}, s{lds_base_sreg}, v{a0}")
    A(f"v_lshrrev_b32 v{a0}, {upr.bit_length()-1}, v{ln}")
    A(f"v_and_b32 v{a1}, {upr-1}, v{ln}"); A(f"v_lshlrev_b32 v{src}, 4, v{a1}")
    A(f"s_mov_b32 s{S_T+12}, {pitch}")
    ninstr = 32 * nks // rpi
    CH = 32
    done = 0
    while done < ninstr:
        n = min(CH, ninstr - done)
        for i in range(n):
            A(f"s_add_u32 m0, s{lds_base_sreg}, {i*1024}")
            A(f"v_add_u32 v{a1}, {(done+i)*rpi}, v{a0}")
            if rowmax is not None: A(f"v_min_u32 v{a1}, {rowmax}, v{a1}")
            A(f"v_mad_u32_u24 v{a1}, v{a1}, s{S_T+12}, v{src}")
            A(f"global_load_lds_dwordx4 v{a1}, s[{sw}:{sw+1}]")
        A("s_waitcnt vmcnt(0)")
        ks0 = done * rpi // 32
        for ks in range(n * rpi // 32):
            for nt in range(ntile):
                pre, b = dst_fn(nt, ks0 + ks)
                o = ks * 32 * rb + nt * (8 if inter else 32)
                A(f"ds_read_b64_tr_b16 {rng(pre, b, 2)}, v{TR0} offset:{o}")
                A(f"ds_read_b64_tr_b16 {rng(pre, b+2, 2)}, v{TR0} offset:{o + sec*rb}")
        A("s_waitcnt lgkmcnt(0)")
        done += n

def sigma(g, e): return 16 * (g // 2) + 4 * (g % 2) + (e % 4) + 8 * (e // 4)

def gelu(A, x, t, n):
    k0 = 2 * 0.7978845608028654 * LOG2E; k1 = k0 * 0.044715
    for i in range(n): A(f"v_mul_f32 v{t+i}, v{x+i}, v{x+i}")
    for i in range(n): A(f"v_fma_f32 v{t+i}, v{t+i}, s{S_T+14}, v{t+n}")
    for i in range(n): A(f"v_mul_f32 v{t+i}, v{t+i}, v{x+i}")
    for i in range(n): A(f"v_exp_f32 v{t+i}, -v{t+i}")
    for i in range(n): A(f"v_add_f32 v{t+i}, 1.0, v{t+i}")
    for i in range(n): A(f"v_rcp_f32 v{t+i}, v{t+i}")
    for i in range(n): A(f"v_mul_f32 v{x+i}, v{x+i}, v{t+i}")
    return k0, k1

def gen_z(A, s_zi, s_phase, NZ, fail, check=True, st=lambda k, r=254: None):
    T = S_T
    L16, FA, HW, SW, SR = 1, 2, 3, 4, 5
    WF, HB, AC, t, ST, HL = 64, 128, 16, 24, 40, 160
    LDS_H, LDS_S = 0, 0x8000
    A(f"s_load_dwordx2 s[{T}:{T+1}], s[0:1], {KA['w_in']}")
    A(f"s_lshl_b32 s{T+2}, s{s_zi}, 2"); A(f"s_add_u32 s{T+2}, s{T+2}, s{S_WAVE}")
    A(f"s_min_u32 s{T+3}, s{T+2}, 85"); A(f"s_lshl_b32 s{T+3}, s{T+3}, 5")
    A(f"s_lshl_b32 s{T+4}, s{S_WAVE}, 15")
    A("s_waitcnt lgkmcnt(0)")
    A(f"s_add_u32 s{T}, s{T}, s{T+3}"); A(f"s_addc_u32 s{T+1}, s{T+1}, 0")
    A("s_barrier")
    load_w16(A, T, 2752, 16, sigma, 1, lambda nt, ks: ("v", WF + 4 * ks), T + 4, 16)
    A("s_barrier")
    A("v_and_b32 v16, 63, v0")
    A(f"v_lshlrev_b32 v{L16}, 4, v16"); A(f"v_lshlrev_b32 v{FA}, 2, v16")
    A(f"s_lshl_b32 s{T+5}, s{S_WAVE}, 13"); A(f"v_add_u32 v{HW}, s{T+5}, v{L16}")
    A(f"v_lshrrev_b32 v17, 4, v16"); A(f"v_lshlrev_b32 v17, 6, v17"); A(f"s_lshl_b32 s{T+6}, s{S_WAVE}, 8"); A(f"s_add_u32 s{T+6}, s{T+6}, {LDS_S}")
    A(f"v_add_u32 v{SW}, s{T+6}, v17")
    A(f"v_add_u32 v{SR}, {LDS_S}, v{FA}")
    mkbase(A, S_A, H2F_OFF, [(s_phase, 15)])
    A(f"s_mov_b32 s{T+7}, {UF_OFF - 43*1024}")
    A(f"s_cmp_lt_u32 s{T+2}, 43")
    A(f"s_cselect_b32 s{T+7}, {Z1F_OFF}, s{T+7}")
    A(f"s_cselect_b32 s{T+13}, 1, 0")
    A(f"s_min_u32 s{T+8}, s{T+2}, 86"); A(f"s_lshl_b32 s{T+8}, s{T+8}, 10"); A(f"s_add_u32 s{T+7}, s{T+7}, s{T+8}")
    A(f"s_mul_i32 s{T+8}, s{s_phase}, {44*1024}"); A(f"s_add_u32 s{T+7}, s{T+7}, s{T+8}")
    A(f"s_add_u32 s{S_B}, s{S_WS}, s{T+7}"); A(f"s_addc_u32 s{S_B+1}, s{S_WS+1}, 0")
    mkbase(A, S_C2, STAT_OFF - 10 * 256, [(s_phase, 12), (s_zi, 8)])
    A(f"s_and_b32 s{T+9}, s{s_zi}, 1")
    mkbase(A, S_E, H2FLAG, [(s_phase, 11), (T + 9, 10)])
    mkbase(A, S_F, ZFLAG, [(s_phase, 14), (s_zi, 7)])
    A(f"v_lshlrev_b32 v6, 12, v16"); A("v_lshlrev_b32 v7, 7, v16")
    k0 = 2 * 0.7978845608028654 * LOG2E; k1 = k0 * 0.044715
    A(f"s_mov_b32 s{T+14}, {np_f32_bits(k1):#x}")
    A(f"v_mov_b32 v{t+8}, {np_f32_bits(k0):#x}")
    A(f"s_cmp_lt_u32 s{T+2}, 86"); A(f"s_cselect_b32 s{T+15}, 0, 1"); A(f"s_or_b32 s{T+15}, s{T+15}, s{T+13}")
    A(f"s_mov_b32 s{S_SEG}, s{s_phase}")
    LOOP = A.newlabel("Lz")
    A.label(LOOP)
    if check: wait_flags(A, S_E, 7, 8, fail, t + 1)
    st(5)
    A(f"v_add_u32 v{t}, 4096, v{HW}")
    for i in range(8): A(f"global_load_dwordx4 v[{HL+4*i}:{HL+4*i+3}], v{HW if i < 4 else t}, s[{S_A}:{S_A+1}] offset:{(i&3)*1024} sc1")
    for i in range(8):
        A(f"s_waitcnt vmcnt({7-i})")
        A(f"ds_write_b128 v{HW}, v[{HL+4*i}:{HL+4*i+3}] offset:{i*1024}")
    A("s_waitcnt lgkmcnt(0)"); A("s_barrier")
    st(6)
    LZ2 = A.newlabel("Lz2"); LG = A.newlabel("Lzg")
    def mm(z1):
        fr = [(mt, ks) for ks in range(16) for mt in range(2)]
        def rd(i): mt, ks = fr[i]; return f"ds_read_b128 v[{HB+4*(i&7)}:{HB+4*(i&7)+3}], v{L16} offset:{mt*16384 + ks*1024}"
        for i in range(7): A(rd(i))
        for i, (mt, ks) in enumerate(fr):
            A(f"s_waitcnt lgkmcnt({min(6, 31-i)})")
            h = v(HB + 4 * (i & 7), 4); w = v(WF + 4 * ks, 4)
            ops = (w, h) if z1 else (h, w)
            A(f"v_mfma_f32_16x16x32_bf16 v[{AC+4*mt}:{AC+4*mt+3}], {ops[0]}, {ops[1]}, " + ("0" if ks == 0 else f"v[{AC+4*mt}:{AC+4*mt+3}]"))
            if i + 7 < 32: A(rd(i + 7))
    A(f"s_cmp_eq_u32 s{T+13}, 0"); A(f"s_cbranch_scc1 {LZ2}")
    mm(True); A(f"s_branch {LG}")
    A.label(LZ2); mm(False)
    A.label(LG)
    A("s_nop 7")
    for i in range(4): A(f"v_cvt_pk_bf16_f32 v{ST+i}, v{AC+2*i}, v{AC+2*i+1}")
    unpack(A, AC, ST, 4)
    gelu(A, AC, t, 8)
    for i in range(4): A(f"v_cvt_pk_bf16_f32 v{HL+i}, v{AC+2*i}, v{AC+2*i+1}")
    A(f"global_store_dwordx4 v{L16}, v[{HL}:{HL+3}], s[{S_B}:{S_B+1}] sc1")
    for i in range(8): A(f"v_mov_b32 v{ST+2*i}, v{AC+i}"); A(f"v_mul_f32 v{ST+2*i+1}, v{AC+i}, v{AC+i}")
    for sh in (8, 4, 2, 1):
        for i in range(16): A(f"v_add_f32_dpp v{ST+i}, v{ST+i}, v{ST+i} row_ror:{sh} row_mask:0xf bank_mask:0xf")
    LN = A.newlabel("Lzn")
    A(f"s_cmp_eq_u32 s{T+15}, 0"); A(f"s_cbranch_scc1 {LN}")
    A.skip_begin()
    for i in range(0, 16, 2): A(f"v_mov_b64 v[{ST+i}:{ST+i+1}], 0")
    A.skip_end()
    A.label(LN)
    for i in range(4): A(f"ds_write_b128 v{SW}, v[{ST+4*i}:{ST+4*i+3}] offset:{16*i}")
    st(7)
    A("s_waitcnt vmcnt(0) lgkmcnt(0)"); A("s_barrier")
    LE = A.newlabel("Lze")
    A(f"s_cmp_lg_u32 s{S_WAVE}, 0"); A(f"s_cbranch_scc1 {LE}")
    LF = A.newlabel("Lzf")
    A(f"s_cmp_lt_u32 s{s_zi}, 10"); A(f"s_cbranch_scc1 {LF}")
    for i in range(4): A(f"ds_read_b32 v{ST+i}, v{SR} offset:{256*i}")
    A("s_waitcnt lgkmcnt(0)")
    A(f"v_add_f32 v{ST}, v{ST}, v{ST+1}"); A(f"v_add_f32 v{ST+2}, v{ST+2}, v{ST+3}"); A(f"v_add_f32 v{ST}, v{ST}, v{ST+2}")
    A(f"global_store_dword v{FA}, v{ST}, s[{S_C2}:{S_C2+1}] sc1")
    A.label(LF)
    set_flag(A, S_F, 0, 6, t, lanes=4)
    A.label(LE)
    adv(A, [(S_A, NZ << 15), (S_B, NZ * 44 * 1024), (S_C2, NZ << 12), (S_E, NZ << 11), (S_F, NZ << 14)])
    A(f"s_add_u32 s{S_SEG}, s{S_SEG}, {NZ}")
    A(f"s_cmp_lt_u32 s{S_SEG}, 64"); A(f"s_cbranch_scc1 {LOOP}")
```

```python
from asm import *
from layout import *
from flags import wait_flags, set_flag
import math

IDX, L16, MEMW, MR1, MR2, MR3, XW, XR0, XR1, OW, OR_, WL, SPARE, PST, QST, QLD = range(16)
JUNK2 = 20
S_KXR, S_MR1, S_BM = 56, 57, 54
RA, RB, RC, RD, RE, RF = 16, 48, 80, 96, 104, 120
LDS_MEM, LDS_KX, LDS_X, LDS_O, LDS_MISC, LDS_W = 0x0, 0x2000, 0x6000, 0x7000, 0x7A00, 0x8000
LDS_SEL = 0x7C00
OS = 288
S_WS, S_DBG, S_RANK, S_WAVE, S_STEP, S_TAG = 4, 6, 8, 9, 10, 11
S_P0, S_P1, S_PL0, S_PL1, S_Q0, S_Q1 = 12, 14, 16, 18, 20, 22
S_KX, S_VX, S_KM, S_VM, S_C, S_QMASK = 24, 26, 28, 30, 32, 34
S_KMF, S_KVF = 36, 38
S_T = 40
S_SPIN = 60
S_CKM = 58
S_VMI = 59
S_KXB = 61
S_T0 = 62

LDS_UNITS = [("m", 1), ("m", 2), ("o", 1, 0), ("o", 1, 1)]
REG_UNITS = [("m", i) for i in (0, 3, 4, 5, 6, 7)] + [("v", i) for i in range(8)] + [("o", 0, 0), ("o", 0, 1)]
def octet_reg(k):
    return ("v", 128 + 8 * k) if k < 16 else ("a", 8 * (k - 16))
OCT = {}
_k = 0
for p in REG_UNITS:
    for t in range(2 if p[0] == "v" else 4):
        OCT[(p, t)] = octet_reg(_k); _k += 1
assert _k == 48
LSLOT = {p: i for i, p in enumerate(LDS_UNITS)}
TRA = 32
TRV = 36

def tr_octet(A, dst, slot, areg):
    pre, b = dst
    for r in range(4):
        A(f"ds_read_b64_tr_b16 {rng(pre, b + 2 * r, 2)}, v{areg} offset:{slot * 8192 + (r & 1) * 256 + (r >> 1) * 4096}")

def gen_team(A, fail_label, done_label, standalone=True, nsteps=64, d1=0, d2=0, timing=False, nopub=0, nokv=False, tslot=0, vsplit=(2,2,8,0), qdepth=1, qgap=0, pdepth=1, d3=0, qmask=True, wov=1, confirm=None, stampw=None, depth=3, wnt='', early_l=None, pfe=False, stage=True, dA=4, bpos=(-1,), bwith=1, bwait=1):
    T = S_T
    NST = 8
    def stamp(k):
        if timing == 2: A(f"s_memtime s[{64+2*k}:{65+2*k}]")
    def accum():
        if timing == 2:
            for k in range(1, NST):
                A(f"s_sub_u32 s{96}, s{64+2*k}, s{64+2*(k-1)}")
                A(f"s_add_u32 s{80+k}, s{80+k}, s{96}")
            A(f"s_sub_u32 s96, s90, s{64+2*(NST-1)}"); A("s_add_u32 s88, s88, s96")
            A("s_mov_b64 s[64:65], s[90:91]")
    ln, n_, g_, t0, t1, t2, t3 = RA, RA + 1, RA + 2, RA + 3, RA + 4, RA + 5, RA + 6
    DSRC, DSRO = RA + 8, RA + 14
    A(f"v_and_b32 v{ln}, 63, v0")
    A(f"v_and_b32 v{n_}, 15, v{ln}")
    A(f"v_lshrrev_b32 v{g_}, 4, v{ln}")
    A(f"s_load_dwordx4 s[{T}:{T+3}], s[0:1], {KA['Wq']}")
    A(f"s_load_dwordx4 s[{T+4}:{T+7}], s[0:1], {KA['Wv']}")
    A(f"s_load_dwordx2 s[{T+8}:{T+9}], s[0:1], {KA['mem0']}")
    A(f"v_lshrrev_b32 v{t3}, 3, v{ln}")
    A(f"v_bfe_u32 v{t0}, v{ln}, 1, 2"); A(f"v_lshrrev_b32 v{t1}, 5, v{ln}"); A(f"v_xor_b32 v{t0}, v{t0}, v{t1}")
    A(f"v_lshlrev_b32 v{t0}, 5, v{t0}"); A(f"v_and_b32 v{t1}, 1, v{ln}"); A(f"v_lshl_add_u32 v{t0}, v{t1}, 4, v{t0}")
    A(f"v_lshl_add_u32 v{DSRC}, v{t3}, 13, v{t0}"); A(f"v_xor_b32 v{DSRC+1}, 64, v{DSRC}")
    A(f"v_lshl_add_u32 v{DSRO}, v{t3}, 10, v{t0}"); A(f"v_xor_b32 v{DSRO+1}, 64, v{DSRO}")
    A(f"v_bfe_u32 v{t0}, v{ln}, 5, 1"); A(f"v_lshlrev_b32 v{t0}, 11, v{t0}")
    A(f"v_bfe_u32 v{t1}, v{ln}, 3, 1"); A(f"v_lshl_add_u32 v{t0}, v{t1}, 10, v{t0}")
    A(f"v_bfe_u32 v{t2}, v{ln}, 4, 1"); A(f"v_lshl_add_u32 v{t0}, v{t2}, 9, v{t0}")
    A(f"v_lshl_add_u32 v{t2}, v{t1}, 1, v{t2}")
    A(f"v_bfe_u32 v{t1}, v{ln}, 2, 1"); A(f"v_lshl_add_u32 v{t0}, v{t1}, 7, v{t0}")
    A(f"v_and_b32 v{t1}, 3, v{ln}"); A(f"v_lshl_add_u32 v{t0}, v{t1}, 3, v{t0}")
    A(f"s_lshl_b32 s{T+10}, s{S_WAVE}, 15")
    A(f"s_add_u32 s{T+10}, s{T+10}, {LDS_W}")
    A(f"v_add_u32 v{t0}, s{T+10}, v{t0}")
    for t in range(4):
        A(f"v_xor_b32 v{t1}, {t}, v{t2}"); A(f"v_lshl_add_u32 v{TRA+t}, v{t1}, 5, v{t0}")
    A(f"s_and_b32 s{T+11}, s{S_WAVE}, 1"); A(f"s_lshl_b32 s{T+11}, s{T+11}, 6")
    A(f"v_xor_b32 v{TRV}, s{T+11}, v{TRA}"); A(f"v_xor_b32 v{TRV+1}, s{T+11}, v{TRA+1}")
    A("s_waitcnt lgkmcnt(0)")
    A(f"s_cmp_lt_u32 s{S_WAVE}, 2"); A(f"s_cselect_b64 s[{T}:{T+1}], s[{T}:{T+1}], s[{T+2}:{T+3}]")
    A(f"s_lshl_b32 s{T+12}, s{S_RANK}, 8"); A(f"s_lshl_b32 s{T+11}, s{T+11}, 1"); A(f"s_add_u32 s{T+11}, s{T+11}, s{T+12}")
    A(f"s_add_u32 s{T}, s{T}, s{T+11}"); A(f"s_addc_u32 s{T+1}, s{T+1}, 0")
    A(f"s_lshr_b32 s{T+11}, s{S_WAVE}, 1"); A(f"s_lshl_b32 s{T+11}, s{T+11}, 7"); A(f"s_add_u32 s{T+11}, s{T+11}, s{T+12}")
    A(f"s_add_u32 s{T+4}, s{T+4}, s{T+11}"); A(f"s_addc_u32 s{T+5}, s{T+5}, 0")
    A(f"s_lshl_b32 s{T+11}, s{S_RANK}, 17")
    A(f"s_lshl_b32 s{T+12}, s{S_WAVE}, 7")
    A(f"s_add_u32 s{T+11}, s{T+11}, s{T+12}")
    A(f"s_add_u32 s{T+6}, s{T+6}, s{T+11}")
    A(f"s_addc_u32 s{T+7}, s{T+7}, 0")
    for i in range(4):
        A(f"s_add_u32 s{T+12+i}, s{S_WAVE}, {i}")
        A(f"s_and_b32 s{T+12+i}, s{T+12+i}, 3")
        A(f"s_lshl_b32 s{T+12+i}, s{T+12+i}, 19")
    VT = RA + 10
    def dma_piece(p, slot):
        for i in range(8):
            A(f"s_add_u32 m0, s{T+10}, {slot * 8192 + i * 1024}")
            if p[0] in "mv":
                b = T if p[0] == "m" else T + 4; sl = p[1]
                A(f"s_add_u32 s{T+16}, s{T+12+(sl & 3)}, {(sl >> 2) * (4 << 19) + i * 8 * 8192}")
                A(f"v_add_u32 v{VT + (i & 1)}, s{T+16}, v{DSRC + (i & 1)}")
                A(f"global_load_lds_dwordx4 v{VT + (i & 1)}, s[{b}:{b+1}] {wnt}")
            else:
                _, u, j = p
                A(f"v_add_u32 v{VT + (i & 1)}, {(64 * j + 8 * i) * 1024 + u * 512}, v{DSRO + (i & 1)}")
                A(f"global_load_lds_dwordx4 v{VT + (i & 1)}, s[{T+6}:{T+7}] {wnt}")
    order = REG_UNITS + LDS_UNITS
    for i in range(depth): dma_piece(order[i], i)
    A(f"v_lshlrev_b32 v{L16}, 4, v{ln}")
    A(f"s_lshl_b32 s{T+16}, s{S_WAVE}, 10")
    A(f"v_add_u32 v{MEMW}, s{T+16}, v{L16}")
    for i in (1, 2, 3):
        A(f"s_lshr_b32 s{T+17}, s{T+12+i}, 9")
        A(f"v_add_u32 v{MR1+i-1}, s{T+17}, v{L16}")
    A(f"v_bfe_u32 v{t0}, v{ln}, 1, 1")
    A(f"v_mul_u32_u24 v{t0}, 0xAAAA, v{t0}")
    A(f"v_add_u32 v{IDX}, 0x4444, v{t0}")
    A(f"v_lshrrev_b32 v{t0}, 2, v{n_}")
    A(f"v_xor_b32 v{t0}, v{t0}, v{g_}")
    A(f"v_lshlrev_b32 v{t0}, 3, v{t0}")
    A(f"v_lshl_add_u32 v{t0}, v{n_}, 5, v{t0}")
    A(f"s_and_b32 s{T+17}, s{S_WAVE}, 1"); A(f"s_lshl_b32 s{T+17}, s{T+17}, 11"); A(f"s_add_u32 s{T+17}, s{T+17}, {LDS_X}")
    A(f"s_cmp_lt_u32 s{S_WAVE}, 2"); A(f"s_cselect_b32 s{T+18}, 4, 0"); A(f"s_add_u32 s{T+17}, s{T+17}, s{T+18}")
    A(f"v_add_u32 v{XW}, s{T+17}, v{t0}")
    A(f"v_bfe_u32 v{t0}, v{ln}, 5, 1")
    A(f"v_lshlrev_b32 v{t0}, 4, v{t0}")
    A(f"v_bfe_u32 v{t1}, v{ln}, 4, 1")
    A(f"v_lshl_add_u32 v{t0}, v{t1}, 2, v{t0}")
    A(f"v_lshrrev_b32 v{t2}, 2, v{n_}")
    A(f"v_add_u32 v{t0}, v{t0}, v{t2}")
    A(f"v_and_b32 v{t2}, 3, v{ln}")
    A(f"v_xor_b32 v{t2}, v{t2}, v{t1}")
    A(f"v_lshlrev_b32 v{t2}, 3, v{t2}")
    A(f"v_lshl_add_u32 v{t0}, v{t0}, 5, v{t2}")
    A(f"v_add_u32 v{XR0}, {LDS_X}, v{t0}")
    A(f"v_xor_b32 v{t0}, 16, v{t0}")
    A(f"v_add_u32 v{XR1}, {LDS_X + 256}, v{t0}")
    A(f"v_lshrrev_b32 v{t0}, 2, v{n_}")
    A(f"v_and_b32 v{t1}, 1, v{n_}")
    A(f"v_lshl_add_u32 v{t0}, v{t0}, 1, v{t1}")
    A(f"v_mul_u32_u24 v{t1}, {OS}, v{t0}")
    A(f"v_lshl_add_u32 v{t2}, v{g_}, 3, v{t1}")
    A(f"s_lshl_b32 s{T+17}, s{S_WAVE}, 6")
    A(f"s_add_u32 s{T+17}, s{T+17}, {LDS_O}")
    A(f"v_add_u32 v{OW}, s{T+17}, v{t2}")
    A(f"v_bfe_u32 v{t3}, v{ln}, 1, 1")
    A(f"v_cmp_eq_u32 vcc, 0, v{t3}")
    A(f"v_lshlrev_b32 v{t3}, 2, v{ln}")
    A(f"v_add_u32 v{t3}, {LDS_MISC + 64}, v{t3}")
    A(f"v_and_b32 v{t3}, -8, v{t3}")
    A(f"v_cndmask_b32 v{OW}, v{OW}, v{t3}, vcc")
    A(f"v_lshl_add_u32 v{t2}, v{g_}, 5, v{t1}")
    A(f"v_bfe_u32 v{t3}, v{ln}, 1, 1")
    A(f"v_lshl_add_u32 v{t2}, v{t3}, 4, v{t2}")
    A(f"v_add_u32 v{OR_}, {LDS_O}, v{t2}")
    M0A = RA + 12
    A(f"v_lshlrev_b32 v{t0}, 10, v{t0}")
    A(f"v_lshl_add_u32 v{t0}, v{g_}, 5, v{t0}")
    A(f"v_lshl_add_u32 v{t0}, v{t3}, 4, v{t0}")
    A(f"s_lshl_b32 s{T+17}, s{S_WAVE}, 7")
    A(f"v_add_u32 v{M0A}, s{T+17}, v{t0}")
    A(f"v_lshlrev_b32 v{t0}, 13, v{g_}")
    A(f"v_lshl_add_u32 v{t0}, v{n_}, 4, v{t0}")
    A(f"s_lshl_b32 s{T+17}, s{S_WAVE}, 15")
    A(f"s_lshl_b32 s{T+18}, s{S_RANK}, 8")
    A(f"s_add_u32 s{T+17}, s{T+17}, s{T+18}")
    A(f"v_add_u32 v{PST}, s{T+17}, v{t0}")
    A(f"v_and_b32 v{t0}, 7, v{ln}")
    A(f"v_lshlrev_b32 v{t0}, 5, v{t0}")
    A(f"v_lshl_add_u32 v{t0}, v{g_}, 3, v{t0}")
    A(f"s_lshl_b32 s{T+17}, s{S_RANK}, 8")
    A(f"v_add_u32 v{QST}, s{T+17}, v{t0}")
    A(f"v_lshrrev_b32 v{t0}, 2, v{n_}")
    A(f"v_lshlrev_b32 v{t0}, 8, v{t0}")
    A(f"v_lshl_add_u32 v{t0}, v{g_}, 6, v{t0}")
    A(f"v_and_b32 v{t1}, 1, v{ln}")
    A(f"v_lshl_add_u32 v{t0}, v{t1}, 5, v{t0}")
    A(f"v_bfe_u32 v{t1}, v{ln}, 1, 1")
    A(f"v_lshl_add_u32 v{t0}, v{t1}, 4, v{t0}")
    A(f"v_add_u32 v{QLD}, s{T+16}, v{t0}")
    def base(dst, off_const, sreg=None, shift=0):
        A(f"s_add_u32 s{dst}, s{S_WS}, {off_const}")
        A(f"s_addc_u32 s{dst+1}, s{S_WS+1}, 0")
        if sreg is not None:
            A(f"s_lshl_b32 s{T+17}, s{sreg}, {shift}")
            A(f"s_add_u32 s{dst}, s{dst}, s{T+17}")
            A(f"s_addc_u32 s{dst+1}, s{dst+1}, 0")
    base(S_P0, P_OFF); base(S_P1, P_OFF + 0x20000)
    base(S_PL0, P_OFF, S_RANK, 13); base(S_PL1, P_OFF + 4096, S_RANK, 13)
    base(S_Q0, Q_OFF); base(S_Q1, Q_OFF + 4096)
    base(S_KX, REC_OFF + R_KX, S_RANK, 21); base(S_VX, REC_OFF + R_VX, S_RANK, 21)
    base(S_KM, REC_OFF + R_KM, S_RANK, 21); base(S_VM, REC_OFF + R_VM, S_RANK, 21)
    A(f"s_lshl_b32 s{T+18}, s{S_RANK}, 9")
    A(f"s_add_u32 s{T+18}, s{T+18}, s{S_WAVE}")
    base(S_KMF, KMFLAG, T + 18, 2)
    base(S_KVF, QKVFLAG, S_RANK, 10)
    A(f"s_lshl_b32 s{T+17}, s{S_WAVE}, 11")
    for b in (S_KX, S_VX):
        A(f"s_add_u32 s{b}, s{b}, s{T+17}"); A(f"s_addc_u32 s{b+1}, s{b+1}, 0")
    A(f"s_lshl_b32 s{T+17}, s{S_WAVE}, 10")
    A(f"s_add_u32 s{S_KM}, s{S_KM}, s{T+17}"); A(f"s_addc_u32 s{S_KM+1}, s{S_KM+1}, 0")
    A(f"v_add_u32 v{WL}, s{T+10}, v{L16}")
    A(f"v_lshlrev_b32 v{SPARE}, 1, v{L16}")
    A(f"v_add_u32 v{SPARE}, {2*REC_SZ}, v{SPARE}")
    A(f"v_and_b32 v{t0}, 7, v{ln}")
    for i in range(4):
        A(f"v_cmp_eq_u32 vcc, {2*i}, v{t0}")
        A(f"v_mov_b32 v{t1}, 0x3f80")
        A(f"v_cndmask_b32 v{RB+4+i}, 0, v{t1}, vcc")
        A(f"v_cmp_eq_u32 vcc, {2*i+1}, v{t0}")
        A(f"v_mov_b32 v{t1}, 0x3f800000")
        A(f"v_cndmask_b32 v{RB+4+i}, v{RB+4+i}, v{t1}, vcc")
    A(f"ds_write_b128 v{L16}, v[{RB+4}:{RB+7}] offset:{LDS_SEL}")
    A(f"s_lshl_b32 s{T+17}, s{S_WAVE}, 10")
    A(f"s_add_u32 s{S_VM}, s{S_VM}, s{T+17}"); A(f"s_addc_u32 s{S_VM+1}, s{S_VM+1}, 0")
    cval = np_f32_bits(128 ** -0.5 * math.log2(math.e))
    A(f"s_mov_b32 s{S_C}, {cval:#x}"); A(f"s_mov_b32 s{S_C+1}, {cval:#x}")
    A(f"s_mov_b32 s{S_QMASK}, 0x00ff00ff"); A(f"s_mov_b32 s{S_QMASK+1}, 0x00ff00ff")
    Z = RB
    for i in range(4): A(f"v_mov_b32 v{Z+i}, 0")
    CI = 8
    for i in range(16):
        A(f"s_waitcnt vmcnt({8 * (depth - 1)})")
        p = order[i]
        nt = 2 if p[0] == "v" else 4
        for t in range(nt): tr_octet(A, OCT[(p, t)], i % 4, (TRV if p[0] == "v" else TRA) + t)
        if depth == 4: A("s_waitcnt lgkmcnt(0)")
        else: A(f"s_waitcnt lgkmcnt({min(15, 4 * nt)})")
        if i == CI:
            if confirm: confirm()
            A(f"global_store_dwordx4 v{MEMW}, v[{Z}:{Z+3}], s[{S_PL0}:{S_PL0+1}]")
            A(f"global_store_dwordx4 v{MEMW}, v[{Z}:{Z+3}], s[{S_PL1}:{S_PL1+1}]")
            A(f"global_store_dwordx2 v{QST}, v[{Z}:{Z+1}], s[{S_Q0}:{S_Q0+1}]")
        dma_piece(order[i + depth], (i + depth) % 4)
        if i == CI + depth:
            A(f"s_lshl_b32 s{T+17}, s{S_RANK}, 4"); A(f"s_lshl_b32 s{T+18}, s{S_WAVE}, 2"); A(f"s_add_u32 s{T+17}, s{T+17}, s{T+18}"); A(f"s_add_u32 s{T+17}, s{T+17}, {TINITF}")
            A(f"v_mov_b32 v{t1}, s{T+17}")
            set_flag(A, S_WS, 0, t1, t0, wait="s_nop 0")
    for i in range(4):
        A(f"s_waitcnt vmcnt({8*min(depth-1, 3-i)})")
        for t in range(4): tr_octet(A, ("v", RB + 8 * t), i, TRA + t)
        if 16 + i + depth < 20:
            A("s_waitcnt lgkmcnt(15)")
            dma_piece(order[16 + i + depth], (i + depth) % 4)
        A("s_waitcnt lgkmcnt(0)")
        for r in range(8): A(f"ds_write_b128 v{WL}, v[{RB+4*r}:{RB+4*r+3}] offset:{i*8192 + r*1024}")
    if stampw: stampw(1)
    if early_l: A(f"s_branch {early_l}")
    if not standalone:
        A(f"v_lshrrev_b32 v{t1}, 2, v{ln}"); A(f"v_lshlrev_b32 v{t1}, 8, v{t1}"); A(f"v_and_b32 v{t2}, 3, v{ln}"); A(f"v_lshl_add_u32 v{t1}, v{t2}, 2, v{t1}")
        wait_flags(A, S_KVF, t1, 8, fail_label, t0, sleep=0)
    A(f"s_lshl_b32 s{T+17}, s{S_WAVE}, 11")
    A(f"s_add_u32 s{S_KXB}, s{T+17}, {LDS_KX}")
    A(f"s_mov_b32 m0, s{S_KXB}")
    A("s_nop 0")
    A(f"global_load_lds_dwordx4 v{L16}, s[{S_KX}:{S_KX+1}] sc1")
    A(f"global_load_lds_dwordx4 v{L16}, s[{S_KX}:{S_KX+1}] offset:1024 sc1")
    A(f"global_load_dwordx4 v[{RF}:{RF+3}], v{L16}, s[{S_VX}:{S_VX+1}] sc1")
    A(f"global_load_dwordx4 v[{RF+4}:{RF+7}], v{L16}, s[{S_VX}:{S_VX+1}] offset:1024 sc1")
    A(f"global_load_dwordx4 v[{RC}:{RC+3}], v{M0A}, s[{T+8}:{T+9}]")
    A(f"global_load_dwordx4 v[{RC+4}:{RC+7}], v{M0A}, s[{T+8}:{T+9}] offset:512")
    A(f"v_lshrrev_b32 v{t1}, 2, v{L16}"); A(f"v_add_u32 v{t1}, {TINITF}, v{t1}")
    wait_flags(A, S_WS, t1, 64, fail_label, t0)
    A(f"v_add_u32 v{t1}, 256, v{t1}")
    wait_flags(A, S_WS, t1, 64, fail_label, t0)
    A("s_waitcnt vmcnt(0) lgkmcnt(0)")
    for i in range(4):
        A(f"v_mov_b32 v{RA+i}, v{RC+i}"); A(f"v_mov_b32 v{RA+16+i}, v{RC+4+i}")
    A(f"s_mov_b32 s{S_STEP}, 0")
    A(f"s_mov_b32 s{S_SPIN}, 0")
    A(f"s_mov_b32 s{S_TAG}, 0")
    A(f"s_mov_b32 s{S_CKM}, 0"); A(f"s_mov_b64 s[{S_BM}:{S_BM+1}], 0")
    A(f"s_mov_b32 s{S_KXR}, {LDS_KX}"); A(f"s_lshr_b32 s{S_MR1}, s{T+13}, 9")
    A(f"s_mov_b32 s{S_VMI}, 0")
    def wl(dst, p, t, r):
        return f"ds_read_b128 v[{dst+4*r}:{dst+4*r+3}], v{WL} offset:{LSLOT[p]*8192 + t*2048 + r*1024}"
    def wl2(dst, p, t): return [wl(dst, p, t, 0), wl(dst, p, t, 1)]
    def prefetch_qk():
        for d, p, t in ((RB, ("m", 1), 0), (RB + 8, ("m", 1), 1), (RB + 16, ("m", 2), 0), (RB + 24, ("m", 2), 1), (RE + 8, ("m", 1), 2), (RE, ("m", 1), 3)):
            for x in wl2(d, p, t): A(x)
    def zero_acc():
        for i in range(0, 16, 2): A(f"v_mov_b64 v[{RC+i}:{RC+i+1}], 0")
        for i in range(0, 8, 2): A(f"v_mov_b64 v[{RD+i}:{RD+i+1}], 0")
    prefetch_qk(); zero_acc()
    if stampw: A("s_waitcnt lgkmcnt(0)"); stampw(2)
    if timing:
        A(f"s_memtime s[{S_T0}:{S_T0+1}]"); A("s_waitcnt lgkmcnt(0)")
        for k in range(NST): A(f"s_mov_b32 s{80+k}, 0"); A(f"s_mov_b64 s[{64+2*k}:{65+2*k}], s[{S_T0}:{S_T0+1}]")
        A("s_mov_b32 s88, 0")
    A("s_barrier")
    LOOP = A.newlabel("Lteam"); FIN = A.newlabel("Lfin")
    ENTER = A.newlabel("Lent"); RETRY = A.newlabel("Lretry")
    CK, CK2 = RA + 12, RA + 13
    VP = RF
    A(f"s_branch {ENTER}")
    A.label(RETRY)
    A("s_nop 5")
    for r in (RC, RC + 2, RC + 4, RC + 6): A(f"v_mov_b64 v[{r}:{r+1}], 0")
    A(f"s_add_u32 s{S_SPIN}, s{S_SPIN}, 1"); A(f"s_cmp_gt_u32 s{S_SPIN}, 200000"); A(f"s_cbranch_scc1 {fail_label}")
    A.raw(".p2align 3")
    A.label(LOOP)
    A(f"global_load_dwordx4 v[{RA}:{RA+3}], v{QLD}, s[{S_Q0}:{S_Q0+1}] sc1")
    if bwith: A(f"global_load_dwordx4 v[{RA+16}:{RA+19}], v{QLD}, s[{S_Q1}:{S_Q1+1}] sc1")
    A(f"s_waitcnt vmcnt({qdepth-1+bwith})")
    A.label(ENTER)
    def wsrc(mat, slot, t):
        p = (mat, slot)
        if p in LSLOT:
            m = {(1, 0): RB, (1, 1): RB + 8, (2, 0): RB + 16, (2, 1): RB + 24, (1, 2): RE + 8, (1, 3): RE, (2, 2): RB, (2, 3): RB + 8}
            return v(m[(slot, t)], 8)
        pre, b = OCT[(p, t)]
        return rng(pre, b, 8)
    def smf(acc, slot, src):
        A(f"v_smfmac_f32_16x16x64_bf16 v[{acc}:{acc+3}], v[{RA+4*slot}:{RA+4*slot+3}], {src}, v{IDX}")
    def qk(t, slot, *extra):
        smf(RC + 4 * t, slot, wsrc("m", slot, t))
        for x in extra: A(x)
    vlist = [(sl, t) for sl in (0, 4, 1, 2, 3, 5, 6, 7) for t in range(2)]
    def vv(n, *extra):
        ex = list(extra)
        for _ in range(n):
            sl, t = vlist.pop(0)
            smf(RD + 4 * t, sl, wsrc("v", sl, t))
            if ex: A(ex.pop(0))
        for x in ex: A(x)
    def mr(i): return f"ds_read_b128 v[{RA+4*i}:{RA+4*i+3}], v{MR1+(i&3)-1} offset:{LDS_MEM + (i>>2)*4096}"
    def add(d, x, y): return f"v_add_f32 v{d}, v{x}, v{y}"
    def cvt(d, x): return f"v_cvt_pk_bf16_f32 v{d}, v{x}, v{x+1}"
    A(f"v_bitop3_b32 v{CK}, v{RA}, v{RA+2}, s{S_TAG} bitop3:0x7e")
    A(f"ds_write_b128 v{MEMW}, v[{RA}:{RA+3}] offset:{LDS_MEM}")
    qk(0, 0, f"v_and_b32 v{CK}, s{S_CKM}, v{CK}", f"v_cmp_ne_u32 vcc, 0, v{CK}")
    qk(1, 0, f"s_cbranch_vccnz {RETRY}")
    if timing == 2: A('s_memtime s[90:91]')
    if timing: A(f"s_lshl_b32 s96, s{S_SPIN}, 16"); A("s_add_u32 s80, s80, s96")
    A("s_waitcnt lgkmcnt(0)")
    accum()
    A("s_barrier")
    bl = f"global_load_dwordx4 v[{RA+16}:{RA+19}], v{QLD}, s[{S_Q1}:{S_Q1+1}] sc1"
    blm = f"s_mov_b64 exec, s[{S_BM}:{S_BM+1}]\n{bl}\ns_mov_b64 exec, -1"
    A(mr(1))
    if -1 in bpos: A(blm)
    qk(2, 0, mr(2)); qk(3, 0, mr(3))
    vv(2, f"s_add_u32 s{S_KX}, s{S_KX}, {REC_SZ}\ns_addc_u32 s{S_KX+1}, s{S_KX+1}, 0", "s_waitcnt lgkmcnt(2)")
    seqA = [(0, 1, [wl(RB, ("m", 2), 2, 0)]), (1, 1, [wl(RB, ("m", 2), 2, 1)]), (2, 1, [wl(RB + 8, ("m", 2), 3, 0)]), (3, 1, [wl(RB + 8, ("m", 2), 3, 1), "s_waitcnt lgkmcnt(5)"]),
            (0, 2, []), (1, 2, ["s_waitcnt lgkmcnt(4)"]), (0, 3, []), (1, 3, []), (2, 3, []), (3, 3, ["s_waitcnt lgkmcnt(0)"]), (2, 2, []), (3, 2, [])]
    for k, (t, sl, ex) in enumerate(seqA):
        qk(t, sl, *(ex + ([blm] if k in bpos else [])))
    CB = RA + 28
    RETB = A.newlabel("Lretb"); OKB = A.newlabel("Lokb")
    A(f"s_waitcnt vmcnt({bwait})")
    A.label(RETB)
    A(f"v_bitop3_b32 v{CB}, v{RA+16}, v{RA+18}, s{S_TAG} bitop3:0x7e")
    A(f"ds_write_b128 v{MEMW}, v[{RA+16}:{RA+19}] offset:{LDS_MEM + 4096}")
    A(f"v_and_b32 v{CB}, s{S_CKM}, v{CB}")
    A(f"v_cmp_ne_u32 vcc, 0, v{CB}")
    A(f"s_cbranch_vccz {OKB}")
    A(bl)
    if timing: A("s_add_u32 s80, s80, 0x100")
    A(f"s_add_u32 s{S_SPIN}, s{S_SPIN}, 1"); A(f"s_cmp_gt_u32 s{S_SPIN}, 200000"); A(f"s_cbranch_scc1 {fail_label}")
    A("s_waitcnt vmcnt(1)")
    A(f"s_branch {RETB}")
    A.label(OKB)
    qk(0, 4, f"s_xor_b32 s{S_TAG}, s{S_TAG}, 1", f"s_mov_b32 s{S_CKM}, 1", f"s_mov_b64 s[{S_BM}:{S_BM+1}], -1")
    qk(1, 4, "s_waitcnt lgkmcnt(0)")
    A("s_barrier")
    A(mr(5))
    qk(2, 4, mr(6), f"v_add_u32 v{MR1}, s{S_KXR}, v{L16}"); qk(3, 4, mr(7), f"s_xor_b32 m0, s{S_KXB}, 0x6000")
    KXA = MR1
    def kx(i): return f"ds_read_b128 v[{RB+4*i}:{RB+4*i+3}], v{KXA} offset:{i*1024}"
    kvops = [f"global_load_lds_dwordx4 v{L16}, s[{S_KX}:{S_KX+1}] sc1", f"global_load_lds_dwordx4 v{L16}, s[{S_KX}:{S_KX+1}] offset:1024 sc1",
             f"s_mov_b32 m0, {LDS_MISC + 64}\ns_nop 0\nglobal_load_lds_dword v{SPARE}, s[{S_VX}:{S_VX+1}] sc1"]
    vv(2, kvops[0], kvops[1] + "\ns_waitcnt lgkmcnt(2)")
    PK = RE
    qk(0, 5, kx(0)); qk(1, 5, kx(1), "s_waitcnt lgkmcnt(3)")
    qk(0, 6, kx(2)); qk(1, 6, kx(3), "s_waitcnt lgkmcnt(4)")
    qk(0, 7, kx(4)); qk(1, 7, kx(5))
    qk(2, 5, kvops[2]); qk(3, 5, kx(6), f"s_add_u32 s{S_VX}, s{S_VX}, {REC_SZ}", f"s_addc_u32 s{S_VX+1}, s{S_VX+1}, 0")
    qk(2, 6, kx(7), add(RC, RC, RC + 2))
    qk(3, 6, add(RC + 1, RC + 1, RC + 3), add(RC + 4, RC + 4, RC + 6))
    qk(2, 7, add(RC + 5, RC + 5, RC + 7), cvt(PK, RC))
    qk(3, 7, cvt(PK + 1, RC + 4), f"ds_write2st64_b32 v{XW}, v{PK}, v{PK+1} offset0:0 offset1:2")
    vv(vsplit[0])
    A(add(RC + 8, RC + 8, RC + 10)); A(add(RC + 9, RC + 9, RC + 11))
    A(add(RC + 12, RC + 12, RC + 14)); A(add(RC + 13, RC + 13, RC + 15))
    A(cvt(PK + 2, RC + 8)); A(cvt(PK + 3, RC + 12))
    A(f"ds_write2st64_b32 v{XW}, v{PK+2}, v{PK+3} offset0:4 offset1:6")
    ex = [f"global_store_dwordx4 v{L16}, v[{PK}:{PK+3}], s[{S_KM}:{S_KM+1}] sc1"]
    vv(vsplit[1], *ex)
    stamp(1)
    A("s_waitcnt lgkmcnt(0)")
    A("s_barrier")
    xr = []
    for kb in range(4):
        xr.append(f"ds_read_b64_tr_b16 v[{RE+4*kb}:{RE+4*kb+1}], v{XR0} offset:{kb*1024}")
        xr.append(f"ds_read_b64_tr_b16 v[{RE+4*kb+2}:{RE+4*kb+3}], v{XR1} offset:{kb*1024}")
    for x in xr: A(x)
    ex = []
    if not (nopub & 2): ex += [f"v_mov_b32 v{RC+15}, s{S_NONCE}", f"s_mov_b64 exec, 1\nglobal_store_dword v{L16}, v{RC+15}, s[{S_KMF}:{S_KMF+1}] sc1\ns_mov_b64 exec, -1"]
    vv(vsplit[2], *ex)
    A(f"s_cmp_eq_u32 s{S_STEP}, {nsteps-1}"); A(f"s_cbranch_scc1 {FIN}")
    vrest = list(vlist)
    S0, S1, S2 = RC, RC + 4, RC + 8
    def mf(d, a_, b_, first, *extra):
        A(f"v_mfma_f32_16x16x32_bf16 v[{d}:{d+3}], v[{a_}:{a_+3}], v[{b_}:{b_+3}], " + ("0" if first else f"v[{d}:{d+3}]"))
        for x in extra: A(x)
    for kb in range(4):
        A(f"s_waitcnt lgkmcnt({6-2*kb})")
        mf(S0, RE + 4 * kb, RE + 4 * kb, kb == 0)
    for kb in range(4): mf(S1, RB + 4 * kb, RE + 4 * kb, kb == 0)
    M_, T_, R_ = RC + 12, RC + 13, RC + 14
    ONES, SUM = RB, RB + 4
    def z2(r): return f"v_mov_b64 v[{r}:{r+1}], 0"
    g2 = [[f"v_mov_b32 v{ONES}, 0x3f803f80", f"v_mov_b32 v{ONES+1}, 0x3f803f80"], [f"v_mov_b32 v{ONES+2}, 0x3f803f80", f"v_mov_b32 v{ONES+3}, 0x3f803f80"],
          [z2(RB + 8), z2(RB + 10)], [z2(RB + 12), f"v_max3_f32 v{M_}, v{S0}, v{S0+1}, v{S1}"]]
    for kb in range(4): mf(S2, RB + 16 + 4 * kb, RE + 4 * kb, kb == 0, *g2[kb])
    stamp(2)
    vv(vsplit[3], f"v_max3_f32 v{M_}, v{M_}, v{S1+1}, v{S1+2}", z2(RB + 14), z2(RB + 16), z2(RB + 18))
    assert not vlist
    A(f"v_max3_f32 v{M_}, v{M_}, v{S1+3}, v{S2}")
    A(f"v_max3_f32 v{M_}, v{M_}, v{S2+1}, v{S2+2}")
    A(f"v_max_f32 v{T_}, v{M_}, v{S2+3}")
    A(f"v_max_f32 v{M_}, v{M_}, v{S2+3}")
    A(wl(RA, ("o", 1, 0), 0, 0)); A(wl(RA, ("o", 1, 0), 0, 1))
    A(f"v_permlane32_swap_b32 v{M_}, v{T_}")
    A(f"v_max_f32 v{R_}, v{M_}, v{T_}")
    A(f"v_max_f32 v{M_}, v{M_}, v{T_}")
    A(cvt(RD, RD)); A(cvt(RD + 1, RD + 2))
    A(f"v_permlane16_swap_b32 v{M_}, v{R_}")
    A(f"v_max_f32 v{M_}, v{M_}, v{R_}")
    A(f"v_mul_f32 v{M_}, s{S_C}, v{M_}")
    for r in (S1, S1 + 2, S2, S2 + 2, S0):
        A(f"v_pk_fma_f32 v[{r}:{r+1}], v[{r}:{r+1}], s[{S_C}:{S_C+1}], v[{M_}:{M_+1}] op_sel_hi:[1,0,0] neg_lo:[0,0,1] neg_hi:[0,0,1]")
    PX, PM = RE, RE + 4
    o10 = lambda t, r: wl(RA + 8 * t, ("o", 1, 0), t, r)
    early = [o10(1, 0), o10(1, 1), o10(2, 0), o10(2, 1), o10(3, 0), o10(3, 1)] if pfe else []
    for r in (S1, S1 + 1, S1 + 2, S1 + 3, S2, S2 + 1, S2 + 2, S2 + 3):
        A(f"v_exp_f32 v{r}, v{r}")
        if early: A(early.pop(0))
    if pfe: o10 = lambda t, r: "; -"
    A(cvt(PX, S1)); A(cvt(PX + 1, S1 + 2)); A(cvt(PX + 2, S2)); A(cvt(PX + 3, S2 + 2))
    OA = RE + 8
    A(f"v_exp_f32 v{S0}, v{S0}")
    A(f"v_exp_f32 v{S0+1}, v{S0+1}")
    mf(SUM, ONES, PX, True, cvt(RD + 2, RD + 4), cvt(PM, S0), o10(1, 0))
    mf(OA, RF, PX, True, cvt(PM + 1, S0), f"v_mov_b32 v{ONES+1}, 0", o10(1, 1))
    mf(OA + 4, RF + 4, PX, True, cvt(RD + 3, RD + 6), o10(2, 0))
    def mf16(d, a_, *extra):
        A(f"v_mfma_f32_16x16x16_bf16 v[{d}:{d+3}], v[{a_}:{a_+1}], v[{PM}:{PM+1}], v[{d}:{d+3}]")
        for x in extra: A(x)
    mf16(SUM, ONES, o10(2, 1), z2(RB + 20))
    mf16(OA, RD, wl(RC, ("o", 1, 1), 2, 0), z2(RB + 22))
    mf16(OA + 4, RD + 2, wl(RC, ("o", 1, 1), 2, 1))
    if not (nopub & 1): A(f"global_store_dwordx4 v{L16}, v[{RD}:{RD+3}], s[{S_VM}:{S_VM+1}] sc1")
    A(o10(3, 0)); A(o10(3, 1))
    A(f"v_rcp_f32 v{SUM}, v{SUM}")
    if not nokv:
        A(f"global_load_dwordx4 v[{RF}:{RF+3}], v{L16}, s[{S_VX}:{S_VX+1}] sc1")
        A(f"global_load_dwordx4 v[{RF+4}:{RF+7}], v{L16}, s[{S_VX}:{S_VX+1}] offset:1024 sc1")
    for i in range(0, 4, 2):
        A(f"v_pk_mul_f32 v[{OA+i}:{OA+i+1}], v[{OA+i}:{OA+i+1}], v[{SUM}:{SUM+1}] op_sel_hi:[1,0]")
    A(cvt(OA, OA)); A(cvt(OA + 1, OA + 2))
    A(f"ds_write_b64 v{OW}, v[{OA}:{OA+1}]")
    for i in range(4, 8, 2):
        A(f"v_pk_mul_f32 v[{OA+i}:{OA+i+1}], v[{OA+i}:{OA+i+1}], v[{SUM}:{SUM+1}] op_sel_hi:[1,0]")
    A(cvt(OA + 2, OA + 4)); A(cvt(OA + 3, OA + 6))
    A(f"ds_write_b64 v{OW}, v[{OA+2}:{OA+3}] offset:32")
    stamp(3)
    for r in (RB, RB + 2, RB + 4, RB + 6): A(z2(r))
    A("s_waitcnt lgkmcnt(0)")
    A("s_barrier")
    OP = RE
    A(f"ds_read_b128 v[{OP}:{OP+3}], v{OR_}")
    A(f"ds_read_b128 v[{OP+4}:{OP+7}], v{OR_} offset:128")
    for i in range(24, 32, 2): A(f"v_mov_b64 v[{RB+i}:{RB+i+1}], 0")
    def osrc(u, j, i):
        p = ("o", u, j)
        if p in LSLOT:
            m = {(0, 0): RA, (0, 1): RA + 8, (0, 2): RA + 16, (0, 3): RA + 24, (1, 2): RC, (1, 3): RC + 8, (1, 0): RD, (1, 1): RA + 16}
            return v(m[(j, i)], 8)
        pre, b = OCT[(p, i)]
        return rng(pre, b, 8)
    def wo(u, j, i, *extra):
        acc = RB + 16 * u + 4 * i
        A(f"v_smfmac_f32_16x16x64_bf16 v[{acc}:{acc+3}], v[{OP+4*j}:{OP+4*j+3}], {osrc(u, j, i)}, v{IDX}")
        for x in extra: A(x)
    PS = RE + 8
    def f0(u, i): acc = RB + 16 * u + 4 * i; return add(acc, acc, acc + 2)
    def f1(u, i): acc = RB + 16 * u + 4 * i; return add(acc + 1, acc + 1, acc + 3)
    def pack(u, i): return cvt(PS + 4 * u + i, RB + 16 * u + 4 * i)
    tag0 = f"v_and_or_b32 v{PS}, v{PS}, -2, s{S_TAG}"; tag1 = f"v_and_or_b32 v{PS+4}, v{PS+4}, -2, s{S_TAG}"
    st0 = f"global_store_dwordx4 v{PST}, v[{PS}:{PS+3}], s[{S_P0}:{S_P0+1}]"; st1 = f"global_store_dwordx4 v{PST}, v[{PS+4}:{PS+7}], s[{S_P1}:{S_P1+1}]"
    o11 = lambda d, t, r: wl(d, ("o", 1, 1), t, r)
    A("s_waitcnt lgkmcnt(1)")
    wo(0, 0, 0, "s_waitcnt lgkmcnt(0)"); wo(0, 1, 0, o11(RC + 8, 3, 0)); wo(0, 0, 1, o11(RC + 8, 3, 1)); wo(0, 1, 1, o11(RD, 0, 0)); wo(0, 0, 2, o11(RD, 0, 1)); wo(0, 1, 2)
    wo(0, 0, 3, f0(0, 0), f1(0, 0)); wo(0, 1, 3, pack(0, 0), f0(0, 1))
    wo(1, 0, 2, f1(0, 1), o11(RA + 16, 1, 0), pack(0, 1)); wo(1, 1, 2, f0(0, 2), o11(RA + 16, 1, 1), f1(0, 2))
    wo(1, 0, 3, pack(0, 2), f0(0, 3), "s_waitcnt lgkmcnt(2)"); wo(1, 1, 3, f1(0, 3), tag0)
    wo(1, 0, 0, pack(0, 3), st0); wo(1, 1, 0, f0(1, 2), f1(1, 2))
    wo(1, 0, 1, f0(1, 3), f1(1, 3), "s_waitcnt lgkmcnt(0)"); wo(1, 1, 1, pack(1, 2), pack(1, 3))
    for x in (f0(1, 0), f1(1, 0), pack(1, 0), tag1, f0(1, 1), f1(1, 1), pack(1, 1)): A(x)
    A(st1)
    stamp(4)
    NOTRED = A.newlabel("Lnr")
    A(f"s_cmp_lg_u32 s{S_WAVE}, 0"); A(f"s_cbranch_scc1 {NOTRED}")
    SEL, DR = RA + 4, RA + 8
    A(f"ds_read_b128 v[{SEL}:{SEL+3}], v{L16} offset:{LDS_SEL}")
    def rdelay(na, nb):
        lo, hi = min(na, nb), max(na, nb)
        for i in range(lo): A("s_nop 7")
        if hi > lo:
            L = A.newlabel("Lrd")
            A(f"s_cmp_lt_u32 s{S_RANK}, 16"); A(f"s_cbranch_scc{1 if na < nb else 0} {L}")
            for i in range(hi - lo): A("s_nop 7")
            A.label(L)
    rdelay(d1 - dA, d1)
    A(f"s_mov_b32 s{S_SPIN}, 0")
    def ploads():
        for u in range(8):
            b = S_PL0 if u < 4 else S_PL1
            A(f"global_load_dwordx4 v[{RB+4*u}:{RB+4*u+3}], v{L16}, s[{b}:{b+1}] offset:{(u%4)*1024} sc1")
    for _ in range(pdepth - 1): ploads()
    PP = A.newlabel("Lp")
    A.label(PP)
    stamp(5)
    ploads()
    A(f"s_add_u32 s{S_SPIN}, s{S_SPIN}, 1"); A(f"s_cmp_gt_u32 s{S_SPIN}, 200000"); A(f"s_cbranch_scc1 {fail_label}")
    A("s_waitcnt lgkmcnt(0)")
    for u in range(0, 8, 2):
        A(f"s_waitcnt vmcnt({8*pdepth-2-u})")
        A(f"v_bitop3_b32 v{CK2 if u > 1 else CK}, v{RB+4*u}, v{RB+4*u+4}, s{S_TAG} bitop3:0x7e")
        mf(DR, RB + 4 * u, SEL, u == 0)
        if u > 1: A(f"v_or_b32 v{CK}, v{CK}, v{CK2}")
        mf(DR, RB + 4 * u + 4, SEL, False)
    A(f"v_and_b32 v{CK}, 1, v{CK}")
    A(f"v_cmp_ne_u32 vcc, 0, v{CK}")
    A(f"s_cbranch_vccnz {PP}")
    if timing: A(f"s_add_u32 s80, s80, s{S_SPIN}")
    A(cvt(DR, DR)); A(cvt(DR + 1, DR + 2))
    A(f"v_and_or_b32 v{DR}, v{DR}, -2, s{S_TAG}")
    if qmask: A(f"s_mov_b64 exec, s[{S_QMASK}:{S_QMASK+1}]")
    A(f"global_store_dwordx2 v{QST}, v[{DR}:{DR+1}], s[{S_Q0}:{S_Q0+1}]")
    if qmask: A("s_mov_b64 exec, -1")
    stamp(6)
    A("s_barrier")
    def tailwork():
        prefetch_qk()
        zero_acc()
        A(f"s_xor_b32 s{S_KXB}, s{S_KXB}, 0x6000"); A(f"s_xor_b32 s{S_KXR}, s{S_KXR}, 0x6000")
        A(f"v_add_u32 v{MR1}, s{S_MR1}, v{L16}")
        A(f"s_add_u32 s{S_STEP}, s{S_STEP}, 1")
        A(f"s_add_u32 s{S_KM}, s{S_KM}, {REC_SZ}"); A(f"s_addc_u32 s{S_KM+1}, s{S_KM+1}, 0")
        A(f"s_add_u32 s{S_KMF}, s{S_KMF}, 16"); A(f"s_addc_u32 s{S_KMF+1}, s{S_KMF+1}, 0")
        A(f"s_add_u32 s{S_VM}, s{S_VM}, {REC_SZ}"); A(f"s_addc_u32 s{S_VM+1}, s{S_VM+1}, 0")
        A(f"s_mov_b32 s{S_SPIN}, 0")
    def qpre():
        for _ in range(qdepth - 1):
            A(f"global_load_dwordx4 v[{RA}:{RA+3}], v{QLD}, s[{S_Q0}:{S_Q0+1}] sc1")
            for _ in range(qgap): A("s_nop 7")
    if pdepth > 1: A("s_waitcnt vmcnt(1)")
    tailwork()
    rdelay(d3, max(0, d3 - dA))
    stamp(7)
    qpre()
    A(f"s_branch {LOOP}")
    A.label(NOTRED)
    stamp(5)
    tailwork()
    if stampw:
        LS = A.newlabel("Lss")
        A(f"s_cmp_lg_u32 s{S_RANK}, 0"); A(f"s_cbranch_scc1 {LS}"); A(f"s_cmp_lg_u32 s{S_WAVE}, 1"); A(f"s_cbranch_scc1 {LS}")
        A("s_memrealtime s[92:93]"); A("s_memtime s[94:95]"); A("s_waitcnt lgkmcnt(0)")
        A(f"s_lshl_b32 s93, s{S_STEP}, 3"); A(f"s_add_u32 s93, s93, {TST_OFF + 0x4000}")
        A(f"v_mov_b32 v{RA+4}, s92"); A(f"v_mov_b32 v{RA+5}, s94"); A(f"v_mov_b32 v{RA+6}, s93"); A("s_mov_b64 exec, 1")
        A(f"global_store_dwordx2 v{RA+6}, v[{RA+4}:{RA+5}], s[{S_WS}:{S_WS+1}]"); A("s_mov_b64 exec, -1")
        A.label(LS)
    if not standalone:
        A(f"s_add_u32 s{T}, s{S_STEP}, 2"); A(f"s_min_u32 s{T}, s{T}, 63"); A(f"s_lshl_b32 s{T}, s{T}, 2")
        A(f"v_lshlrev_b32 v{RA+4}, 4, v{L16}"); A(f"v_add_u32 v{RA+4}, s{T}, v{RA+4}")
        wait_flags(A, S_KVF, RA + 4, 2, fail_label, RA + 5)
        A(f"s_mov_b32 s{S_SPIN}, 0")
    A("s_barrier")
    stamp(6)
    rdelay(d2, max(0, d2 - dA))
    stamp(7)
    qpre()
    A(f"s_branch {LOOP}")
    A.label(FIN)
    vlist.extend(vrest); vv(len(vrest))
    A("s_nop 7")
    for x in (cvt(RD, RD), cvt(RD + 1, RD + 2), cvt(RD + 2, RD + 4), cvt(RD + 3, RD + 6)): A(x)
    A(f"global_store_dwordx4 v{L16}, v[{RD}:{RD+3}], s[{S_VM}:{S_VM+1}] sc1")
    A("s_waitcnt vmcnt(0)")
    A("s_mov_b64 exec, 1")
    A(f"v_mov_b32 v{RC+15}, s{S_NONCE}")
    A(f"global_store_dword v{L16}, v{RC+15}, s[{S_KMF}:{S_KMF+1}] offset:16 sc1")
    A("s_mov_b64 exec, -1")
    if timing:
        A(f"s_memtime s[{T}:{T+1}]"); A("s_waitcnt lgkmcnt(0)")
        A(f"s_sub_u32 s{T}, s{T}, s{S_T0}")
        A(f"s_mov_b32 s89, s{T}")
        A("s_mov_b64 exec, 1")
        LT = A.newlabel("Lt")
        A(f"s_cmp_lg_u32 s{S_RANK}, 5"); A(f"s_cbranch_scc1 {LT}")
        for k in range(12): A(f"v_mov_b32 v{RB+k}, s{80+k}")
        A(f"s_lshl_b32 s{T+2}, s{S_WAVE}, 6")
        A(f"s_add_u32 s{T+2}, s{T+2}, {TST_OFF + tslot*256}")
        A(f"v_mov_b32 v{RD+1}, s{T+2}")
        A(f"global_store_dwordx4 v{RD+1}, v[{RB}:{RB+3}], s[{S_WS}:{S_WS+1}]")
        A(f"global_store_dwordx4 v{RD+1}, v[{RB+4}:{RB+7}], s[{S_WS}:{S_WS+1}] offset:16")
        A(f"global_store_dwordx4 v{RD+1}, v[{RB+8}:{RB+11}], s[{S_WS}:{S_WS+1}] offset:32")
        A.label(LT)
        A("s_mov_b64 exec, -1")
    A("s_waitcnt vmcnt(0)")
    A(f"s_branch {done_label}")

def np_f32_bits(x):
    import struct
    return struct.unpack("<I", struct.pack("<f", x))[0]

def gen_wait_flag(A, sbase, off, expect, fail_label, t0, t1):
    L = A.newlabel("Lw")
    A(f"s_mov_b32 s{S_SPIN}, 0")
    A(f"v_mov_b32 v{t1}, {off}")
    A.label(L)
    A(f"global_load_dword v{t0}, v{t1}, s[{sbase}:{sbase+1}] sc1")
    A(f"s_add_u32 s{S_SPIN}, s{S_SPIN}, 1"); A(f"s_cmp_gt_u32 s{S_SPIN}, 400000"); A(f"s_cbranch_scc1 {fail_label}")
    A("s_waitcnt vmcnt(0)")
    A(f"v_cmp_gt_u32 vcc, {expect}, v{t0}") if expect <= 64 else (A(f"v_cmp_gt_u32 vcc, {expect:#x}, v{t0}"))
    A(f"s_cbranch_vccnz {L}")
```

```python
import sys
from asm import *
from layout import *
from team import gen_team, S_WS, S_DBG, S_RANK, S_WAVE, S_T, S_SPIN
from common import *
from pre import gen_mod, gen_ln1
from flags import wait_flags
from qkv import gen_qkv_setup, gen_unit
from attn import gen_attn
from rz import gen_red, gen_z
from go import gen_g, gen_o, gen_o_weights
NAME = "adaLN_cond__memory_aug_recurrent_mem_tr__mixer_gmlp__prompt_kernel"
def build(timing=0, stamps=False, depth=3, wnt='', tail=False, diag=None, hold=4, tk={}):
    A = Asm()
    F, D = "Lfail", "Ldone"
    T = S_T
    S_W, S_B, S_NEXT = 96, 3, 94
    def stampw(k, r=254):
        if stamps:
            L = A.newlabel("Lst")
            A(f"s_cmp_lg_u32 s{S_WAVE}, 0"); A(f"s_cbranch_scc1 {L}")
            A("s_memrealtime s[92:93]"); A("s_waitcnt lgkmcnt(0)")
            A(f"s_lshl_b32 s93, s{S_WIDX}, 5"); A(f"s_add_u32 s93, s93, {TST_OFF + 4*k}")
            A(f"v_mov_b32 v{r}, s92"); A(f"v_mov_b32 v{r+1}, s93"); A("s_mov_b64 exec, 1")
            A(f"global_store_dword v{r+1}, v{r}, s[{S_WS}:{S_WS+1}]"); A("s_mov_b64 exec, -1")
            A.label(L)
    gen_entry(A, 256, D)
    if stamps: A("s_memrealtime s[90:91]"); A("s_waitcnt lgkmcnt(0)"); A("s_mov_b32 s101, s90")
    gen_register(A)
    A.label("Lstart")
    restore_tid(A)
    def conf(tv, lf=0x27FF0):
        def f():
            gen_confirm(A, "Lstart", F, tv, lf); stampw(5, tv)
        return f
    A(f"s_cmp_ge_u32 s{S_WIDX}, 32"); A("s_cbranch_scc1 Lworker")
    A(f"s_mov_b32 s{S_RANK}, s{S_WIDX}")
    gen_team(A, F, "Lteamdone", standalone=False, tslot=96, **{**dict(d1=11, d2=4, d3=0, dA=3, qdepth=3, qgap=2), **tk}, confirm=conf(56, 0x7A00), depth=depth, wnt=wnt, timing=timing, early_l=('Lend' if diag == 'teamonly' else None), stampw=(lambda k: stampw(k, 20)) if stamps else None)
    A.label("Lteamdone")
    restore_tid(A)
    stampw(3)
    if diag == "exit": A(f"s_branch Lend")
    A("s_branch Low")
    A.label("Lworker")
    if diag == "teamonly": A(f"s_branch Lend")
    A(f"s_sub_u32 s{S_W}, s{S_WIDX}, 32")
    S_R, S_N = 95, 94
    A(f"s_mul_i32 s{T}, s{S_W}, 9363"); A(f"s_lshr_b32 s{T}, s{T}, 16")
    A(f"s_mul_i32 s{T+1}, s{T}, 7"); A(f"s_sub_u32 s{T+1}, s{S_W}, s{T+1}"); A(f"s_lshl_b32 s{T+1}, s{T+1}, 5"); A(f"s_add_u32 s{T}, s{T}, s{T+1}")
    A(f"s_mul_i32 s{S_RANK}, s{T}, 9363"); A(f"s_lshr_b32 s{S_RANK}, s{S_RANK}, 16")
    A(f"s_mul_i32 s{T+1}, s{S_RANK}, 7"); A(f"s_sub_u32 s{S_W}, s{T}, s{T+1}")
    A(f"s_cmp_lt_u32 s{S_W}, 2"); A("s_cbranch_scc1 Lp1")
    A(f"s_mul_i32 s{S_B}, s{S_RANK}, 5"); A(f"s_add_u32 s{S_B}, s{S_B}, s{S_W}"); A(f"s_sub_u32 s{S_B}, s{S_B}, 2")
    A(f"s_cmp_lt_u32 s{S_B}, 96"); A("s_cbranch_scc0 Lln1")
    gen_mod(A, S_B, confirm=conf(24), flag=True)
    A("s_branch Lp1")
    A.label("Lln1")
    A(f"s_sub_u32 s{S_B}, s{S_B}, 96"); A(f"s_lshl_b32 s{S_B}, s{S_B}, 2"); A(f"s_add_u32 s{S_B}, s{S_B}, s{S_WAVE}")
    def wm():
        conf(12)()
        A("v_and_b32 v12, 63, v0"); A("v_lshlrev_b32 v12, 6, v12"); A(f"v_add_u32 v12, {MOD_OFF + 32}, v12")
        wait_flags(A, S_WS, 12, 64, F, 13)
        stampw(6, 14)
    gen_ln1(A, S_B, wait_mod=wm, flag=True)
    A.label("Lp1")
    stampw(1)
    gen_qkv_setup(A)
    if hold:
        A(f"s_cmp_lt_u32 s{S_W}, {hold}"); A("s_cbranch_scc1 Lnohold")
        A(f"s_lshl_b32 s{T}, s{S_RANK}, 10"); A(f"s_add_u32 s{T}, s{T}, {QKVFLAG}")
        A("v_and_b32 v2, 3, v0"); A("v_lshlrev_b32 v2, 2, v2"); A(f"v_add_u32 v2, s{T}, v2")
        wait_flags(A, S_WS, 2, 4, F, 3, drain=True)
        A.label("Lnohold")
    A(f"s_cmp_lt_u32 s{S_W}, 4"); A("s_cbranch_scc0 Lp3a")
    A(f"s_lshr_b32 s{S_B}, s{S_W}, 1")
    A(f"s_bitcmp1_b32 s{S_W}, 0"); A("s_cbranch_scc1 Lp2")
    gen_unit(A, S_B, S_RANK, mats=("k", "q"), flags=True, fail=F, confirm=conf(20), split=True)
    A(f"s_cmp_lg_u32 s{S_W}, 0"); A("s_cbranch_scc1 Lp4")
    A(f"s_mov_b32 s{S_B}, 5"); A("s_branch Lp3")
    A.label("Lp2")
    gen_unit(A, S_B, S_RANK, mats=("v",), flags=True, fail=F, confirm=conf(20), split=True, st=(stampw if diag == "exit" else (lambda k, r: None)))
    stampw(6)
    A(f"s_add_u32 s{S_B}, s{S_B}, 6"); A("s_branch Lp3")
    A.label("Lp3a")
    A(f"s_sub_u32 s{S_B}, s{S_W}, 2")
    A.label("Lp3")
    gen_unit(A, S_B, S_RANK, mats=("k", "v", "q"), flags=True, fail=F, wfirst=False)
    A.label("Lp4")
    stampw(2)
    if diag == "exit": A(f"s_branch Lend")
    A(f"s_cmp_eq_u32 s{S_W}, 2"); A(f"s_cselect_b32 s{T}, 3, s{S_W}")
    A(f"s_cmp_eq_u32 s{S_W}, 3"); A(f"s_cselect_b32 s{T}, 2, s{T}")
    A(f"s_cmp_lt_u32 s{T}, 3"); A("s_cbranch_scc1 Llate")
    A(f"s_lshl_b32 s{S_W}, s{S_RANK}, 2"); A(f"s_add_u32 s{S_W}, s{S_W}, s{T}"); A(f"s_sub_u32 s{S_W}, s{S_W}, 3")
    A(f"s_cmp_lt_u32 s{S_W}, 64"); A("s_cbranch_scc0 Lnota")
    A(f"s_lshr_b32 s{S_RANK}, s{S_W}, 2"); A(f"s_and_b32 s{S_B}, s{S_W}, 3")
    gen_attn(A, S_RANK, S_B, 4, F, st=(stampw if tail else (lambda k, r=254: None)))
    stampw(3)
    A.label("Low")
    gen_o_weights(A, S_WIDX)
    A("s_branch Lout")
    A.label("Llate")
    A(f"s_mul_i32 s{S_W}, s{S_RANK}, 3"); A(f"s_add_u32 s{S_W}, s{S_W}, s{T}"); A(f"s_add_u32 s{S_W}, s{S_W}, 128")
    A.label("Lnota")
    gen_o_weights(A, S_WIDX)
    A(f"s_cmp_ge_u32 s{S_W}, 204"); A("s_cbranch_scc1 Lout")
    A(f"s_cmp_lt_u32 s{S_W}, 108"); A("s_cbranch_scc1 Lnotr")
    A(f"s_cmp_ge_u32 s{S_W}, 140"); A("s_cbranch_scc1 Lg1")
    A(f"s_sub_u32 s{S_B}, s{S_W}, 108"); A(f"s_and_b32 s{S_RANK}, s{S_B}, 7"); A(f"s_lshr_b32 s{S_B}, s{S_B}, 3")
    gen_red(A, S_RANK, S_B, 4, F, st=(stampw if tail else (lambda k, r=254: None)))
    stampw(3)
    A("s_branch Lout")
    A.label("Lnotr")
    A(f"s_sub_u32 s{S_RANK}, s{S_W}, 64"); A(f"s_cmp_ge_u32 s{S_RANK}, 22"); A(f"s_cselect_b32 s{S_B}, 1, 0"); A(f"s_cselect_b32 s{T}, 22, 0"); A(f"s_sub_u32 s{S_RANK}, s{S_RANK}, s{T}")
    gen_z(A, S_RANK, S_B, 2, F, st=(stampw if tail else (lambda k, r=254: None)))
    stampw(3)
    A("s_branch Lout")
    A.label("Lg1")
    A(f"s_sub_u32 s{S_W}, s{S_W}, 140")
    A(f"s_and_b32 s{S_RANK}, s{S_W}, 3"); A(f"s_lshr_b32 s{S_B}, s{S_W}, 2")
    gen_g(A, S_B, S_RANK, F, st=(stampw if tail else (lambda k, r=254: None)))
    stampw(3)
    A.label("Lout")
    gen_o(A, S_WIDX, F, st=(stampw if tail else (lambda k, r=254: None)))
    stampw(4)
    A.label("Lend")
    if stamps:
        A("s_mov_b32 s92, s101"); A(f"s_lshl_b32 s93, s{S_WIDX}, 5"); A(f"s_add_u32 s93, s93, {TST_OFF}")
        A("v_mov_b32 v254, s92"); A("v_mov_b32 v255, s93"); A("s_mov_b64 exec, 1")
        A(f"global_store_dword v255, v254, s[{S_WS}:{S_WS+1}]"); A("s_mov_b64 exec, -1")
    A(f"s_branch {D}")
    gen_fail(A, F)
    A.label(D); A("s_waitcnt vmcnt(0)"); A("s_endpgm")
    A.fix_hazards()
    hdr = f"; @launch kernel={NAME} grid=(256,1,1) block=(256,1,1) lds=163840\n"
    return hdr + '.amdgcn_target "amdgcn-amd-amdhsa--gfx950"\n.text\n' + kernel_header(NAME) + A.text() + '.section .rodata,"a"\n' + kernel_desc(NAME, nsgpr=102)
if __name__ == "__main__":
    open("../dev/mega.s", "w").write(build(stamps=True))
    open("../dev/mega_ns.s", "w").write(build(stamps=False))
    import json
    V = eval(sys.argv[1]) if len(sys.argv) > 1 else []
    for i, kw in enumerate(V):
        open(f"../dev/mega_v{i}.s", "w").write(build(**{**dict(stamps=True), **kw}))
```

```python
from asm import *
from layout import *
from team import S_WS, S_DBG, S_RANK, S_WAVE, S_T, S_SPIN, np_f32_bits
from pre import unpack
import math
L16, XW, XR0, XR1, OW, ORD, FA = 1, 2, 3, 4, 5, 6, 7
MK = 8
QF, KF, VF, KM, VM, XO = 16, 32, 64, 96, 112, 128
S0, S1, S2 = 144, 148, 152
M_, T_, R_ = 156, 157, 158
PX, PM = 160, 164
OA = 168
OB = 200
ACC = 64
PK = 216
LDS_X, LDS_O = 0x0, 0x4000
OSTR = 528
S_REC, S_PART, S_SEG, S_C, S_PF, S_KF, S_QF = 64, 66, 68, 70, 72, 74, 76

from flags import wait_flags, set_flag

def load_w32(A, sw, pitch_log2, nrows, dst_fn, lds_base_sreg, tmp):
    ln, a0, a1, src = tmp, tmp + 1, tmp + 2, tmp + 3
    TR = tmp + 4
    A(f"v_and_b32 v{ln}, 63, v0")
    A(f"v_lshrrev_b32 v{a0}, 5, v{ln}"); A(f"v_lshlrev_b32 v{a0}, 11, v{a0}")
    A(f"v_bfe_u32 v{a1}, v{ln}, 2, 2"); A(f"v_lshl_add_u32 v{a0}, v{a1}, 8, v{a0}")
    A(f"v_bfe_u32 v{src}, v{ln}, 4, 1"); A(f"v_lshl_add_u32 v{a0}, v{src}, 5, v{a0}")
    A(f"v_and_b32 v{src}, 3, v{ln}"); A(f"v_lshl_add_u32 v{a0}, v{src}, 3, v{a0}")
    A(f"v_add_u32 v{a0}, s{lds_base_sreg}, v{a0}")
    for nt in range(4):
        A(f"v_xor_b32 v{src}, {nt}, v{a1}"); A(f"v_lshl_add_u32 v{TR+nt}, v{src}, 6, v{a0}")
    A(f"v_lshrrev_b32 v{a0}, 4, v{ln}"); A(f"v_xor_b32 v{a1}, v{a1}, v{a0}")
    A(f"v_lshlrev_b32 v{a0}, {pitch_log2}, v{a0}"); A(f"v_lshl_add_u32 v{a0}, v{a1}, 6, v{a0}")
    A(f"v_and_b32 v{a1}, 3, v{ln}"); A(f"v_lshl_add_u32 v{src}, v{a1}, 4, v{a0}")
    for rnd in range(nrows // 128):
        for i in range(32):
            A(f"s_add_u32 m0, s{lds_base_sreg}, {i*1024}")
            A(f"v_add_u32 v{a0+(i&1)}, {(rnd*128 + 4*i) << pitch_log2}, v{src}")
            A(f"global_load_lds_dwordx4 v{a0+(i&1)}, s[{sw}:{sw+1}]")
        for ks in range(8):
            A(f"s_waitcnt vmcnt({28-4*ks})")
            for nt in range(4):
                pre, b = dst_fn(nt, rnd * 8 + ks)
                A(f"ds_read_b64_tr_b16 {rng(pre, b, 2)}, v{TR+nt} offset:{ks*4096}")
                A(f"ds_read_b64_tr_b16 {rng(pre, b+2, 2)}, v{TR+nt} offset:{ks*4096+1024}")
        A("s_waitcnt lgkmcnt(0)")

def gen_attn(A, s_pair, s_phase, NA, fail, check=True, st=lambda k, r=254: None, NARROW=56):
    T = S_T
    A(f"s_load_dwordx2 s[{T}:{T+1}], s[0:1], {KA['Wo']}")
    A(f"s_lshl_b32 s{T+2}, s{s_pair}, 18"); A(f"s_lshl_b32 s{T+3}, s{S_WAVE}, 8"); A(f"s_add_u32 s{T+2}, s{T+2}, s{T+3}")
    A(f"s_lshl_b32 s{T+4}, s{S_WAVE}, 15")
    A("s_waitcnt lgkmcnt(0)")
    A(f"s_add_u32 s{T}, s{T}, s{T+2}"); A(f"s_addc_u32 s{T+1}, s{T+1}, 0")
    A("s_barrier")
    load_w32(A, T, 10, 256, lambda nt, ks: ("a", (ks * 4 + nt) * 4), T + 4, 16)
    A("s_barrier")
    ln, n_, g_, t0, t1, t2 = 16, 17, 18, 19, 20, 21
    A(f"v_and_b32 v{ln}, 63, v0"); A(f"v_and_b32 v{n_}, 15, v{ln}"); A(f"v_lshrrev_b32 v{g_}, 4, v{ln}")
    A(f"v_lshlrev_b32 v{L16}, 4, v{ln}")
    A(f"s_lshl_b32 s{T+5}, s{S_WAVE}, 12")
    A(f"v_lshrrev_b32 v{t0}, 2, v{n_}"); A(f"v_xor_b32 v{t0}, v{t0}, v{g_}"); A(f"v_lshlrev_b32 v{t0}, 3, v{t0}")
    A(f"v_lshl_add_u32 v{t0}, v{n_}, 5, v{t0}"); A(f"v_add_u32 v{XW}, s{T+5}, v{t0}")
    A(f"v_bfe_u32 v{t0}, v{ln}, 5, 1"); A(f"v_lshlrev_b32 v{t0}, 4, v{t0}")
    A(f"v_bfe_u32 v{t1}, v{ln}, 4, 1"); A(f"v_lshl_add_u32 v{t0}, v{t1}, 2, v{t0}")
    A(f"v_mov_b32 v{FA}, v{t0}")
    A(f"v_lshrrev_b32 v{t2}, 2, v{n_}"); A(f"v_add_u32 v{t0}, v{t0}, v{t2}")
    A(f"v_and_b32 v{t2}, 3, v{ln}"); A(f"v_xor_b32 v{t2}, v{t2}, v{t1}"); A(f"v_lshlrev_b32 v{t2}, 3, v{t2}")
    A(f"v_lshl_add_u32 v{t0}, v{t0}, 5, v{t2}")
    A(f"v_add_u32 v{XR0}, s{T+5}, v{t0}"); A(f"v_xor_b32 v{t0}, 16, v{t0}"); A(f"v_add_u32 v{t0}, 256, v{t0}"); A(f"v_add_u32 v{XR1}, s{T+5}, v{t0}")
    A(f"s_and_b32 s{T+6}, s{S_WAVE}, 1"); A(f"s_lshl_b32 s{T+7}, s{T+6}, 4")
    A(f"v_add_u32 v{t0}, s{T+7}, v{n_}")
    A(f"v_sub_u32 v{t0}, v{t0}, v{FA}")
    A(f"v_mov_b32 v{t1}, {np_f32_bits(-1e30):#x}")
    for kt in range(2):
        for r in range(4):
            A(f"v_cmp_gt_i32 vcc, {r + 8*kt}, v{t0}")
            A(f"v_cndmask_b32 v{MK+4*kt+r}, 0, v{t1}, vcc")
    A(f"v_add_u32 v{t0}, s{T+7}, v{n_}"); A(f"v_mul_u32_u24 v{t0}, {OSTR}, v{t0}"); A(f"v_lshl_add_u32 v{t0}, v{g_}, 3, v{t0}")
    A(f"s_lshr_b32 s{T+8}, s{S_WAVE}, 1"); A(f"s_lshl_b32 s{T+9}, s{T+8}, 8"); A(f"s_add_u32 s{T+9}, s{T+9}, {LDS_O}")
    A(f"v_add_u32 v{OW}, s{T+9}, v{t0}")
    A(f"v_and_b32 v{t0}, 31, v{ln}"); A(f"v_mul_u32_u24 v{t0}, {OSTR}, v{t0}"); A(f"v_lshrrev_b32 v{t1}, 5, v{ln}"); A(f"v_lshl_add_u32 v{t0}, v{t1}, 4, v{t0}")
    A(f"v_add_u32 v{ORD}, {LDS_O}, v{t0}")
    A(f"v_lshlrev_b32 v{FA}, 2, v{ln}")
    A(f"s_lshl_b32 s{T+10}, s{s_pair}, 1"); A(f"s_add_u32 s{T+10}, s{T+10}, s{T+8}")
    def base(dst, const, parts):
        A(f"s_add_u32 s{dst}, s{S_WS}, {const}"); A(f"s_addc_u32 s{dst+1}, s{S_WS+1}, 0")
        for sr, sh in parts:
            A(f"s_lshl_b32 s{T+11}, s{sr}, {sh}"); A(f"s_add_u32 s{dst}, s{dst}, s{T+11}"); A(f"s_addc_u32 s{dst+1}, s{dst+1}, 0")
    base(S_REC, REC_OFF, [(T + 10, 21), (s_phase, 15)])
    A(f"s_mul_i32 s{T+13}, s{s_pair}, {PSTR}"); A(f"s_mul_i32 s{T+14}, s{s_phase}, {PSEG}")
    base(S_PART, PART_OFF, [(T + 13, 0), (S_WAVE, 13), (T + 14, 0)])
    base(S_PF, PARTFLAG, [(s_pair, 8), (S_WAVE, 12), (s_phase, 14)])
    base(S_KF, KMFLAG + 16, [(T + 10, 11), (s_phase, 4)])
    base(S_QF, QKVFLAG, [(T + 10, 10)])
    A(f"s_lshl_b32 s{T+12}, s{T+6}, 12")
    cval = np_f32_bits(128 ** -0.5 * math.log2(math.e))
    A(f"s_mov_b32 s{S_C}, {cval:#x}"); A(f"s_mov_b32 s{S_C+1}, {cval:#x}")
    A(f"s_mov_b32 s{S_SEG}, s{s_phase}")
    LOOP = A.newlabel("Lat"); END = A.newlabel("Late")
    AD = OA
    def ld(dst, areg, off): A(f"global_load_dwordx4 v[{dst}:{dst+3}], v{areg}, s[{S_REC}:{S_REC+1}] offset:{off} sc1")
    def qkvcheck():
        A(f"s_lshr_b32 s{T}, s{S_SEG}, 3"); A(f"s_lshl_b32 s{T}, s{T}, 5")
        A(f"v_and_b32 v22, 28, v{FA}"); A(f"v_lshrrev_b32 v23, 5, v{FA}"); A("v_lshl_add_u32 v22, v23, 8, v22")
        A(f"v_add_u32 v22, s{T}, v22")
        wait_flags(A, S_QF, 22, 24, fail, 23)
    def qkvloads():
        for i in range(7): A(f"v_add_u32 v{AD+i}, {i*4096}, v{L16}")
        A(f"v_add_u32 v{AD+4}, s{T+12}, v{AD+4}")
        for i in range(4): ld(QF + 4 * i, AD + 4, i * 1024)
        for i in range(8): ld(KF + 4 * i, AD + (i >> 2), (i & 3) * 1024)
        for i in range(8): ld(VF + 4 * i, AD + 2 + (i >> 2), (i & 3) * 1024)
        A(f"v_add_u32 v{AD+5}, {7*4096}, v{L16}")
    if check: qkvcheck()
    qkvloads()
    A.label(LOOP)
    if check: wait_flags(A, S_KF, FA, 4, fail, AD + 7)
    st(5)
    for i in range(2): ld(KM + 4 * i, AD + 6, 2048 + i * 1024)
    for i in range(4): ld(VM + 4 * i, AD + 5, i * 1024)
    def mf(d, a_, b_, c, *extra):
        A(f"v_mfma_f32_16x16x32_bf16 v[{d}:{d+3}], v[{a_}:{a_+3}], v[{b_}:{b_+3}], {c}")
        for x in extra: A(x)
    A("s_waitcnt vmcnt(14)")
    for kb in range(4): mf(S1, KF + 4 * kb, QF + 4 * kb, f"v[{MK}:{MK+3}]" if kb == 0 else f"v[{S1}:{S1+3}]")
    for kb in range(4): mf(S2, KF + 16 + 4 * kb, QF + 4 * kb, f"v[{MK+4}:{MK+7}]" if kb == 0 else f"v[{S2}:{S2+3}]")
    for i in range(2):
        A(f"s_waitcnt vmcnt({5-i})")
        A(f"ds_write2st64_b32 v{XW}, v{KM+4*i}, v{KM+4*i+1} offset0:{8*i} offset1:{8*i+2}")
        A(f"ds_write2st64_b32 v{XW}, v{KM+4*i+2}, v{KM+4*i+3} offset0:{8*i+4} offset1:{8*i+6}")
    A("s_waitcnt lgkmcnt(0)")
    for kb in range(4):
        A(f"ds_read_b64_tr_b16 v[{XO+4*kb}:{XO+4*kb+1}], v{XR0} offset:{kb*1024}")
        A(f"ds_read_b64_tr_b16 v[{XO+4*kb+2}:{XO+4*kb+3}], v{XR1} offset:{kb*1024}")
    A(f"v_max3_f32 v{M_}, v{S1}, v{S1+1}, v{S1+2}")
    A(f"v_max3_f32 v{M_}, v{M_}, v{S1+3}, v{S2}")
    A(f"v_max3_f32 v{M_}, v{M_}, v{S2+1}, v{S2+2}")
    A(f"v_max_f32 v{M_}, v{M_}, v{S2+3}")
    for kb in range(4):
        A(f"s_waitcnt lgkmcnt({6-2*kb})")
        mf(S0, XO + 4 * kb, QF + 4 * kb, "0" if kb == 0 else f"v[{S0}:{S0+3}]")
    A(f"v_max3_f32 v{T_}, v{M_}, v{S0}, v{S0+1}")
    A(f"v_max3_f32 v{M_}, v{M_}, v{S0}, v{S0+1}")
    def xred(op):
        A(f"v_permlane32_swap_b32 v{M_}, v{T_}")
        A(f"{op} v{R_}, v{M_}, v{T_}"); A(f"{op} v{M_}, v{M_}, v{T_}")
        A(f"v_permlane16_swap_b32 v{M_}, v{R_}")
        A(f"{op} v{M_}, v{M_}, v{R_}")
    xred("v_max_f32")
    A(f"v_mul_f32 v{M_}, s{S_C}, v{M_}")
    for r in (S1, S1 + 2, S2, S2 + 2, S0):
        A(f"v_pk_fma_f32 v[{r}:{r+1}], v[{r}:{r+1}], s[{S_C}:{S_C+1}], v[{M_}:{M_+1}] op_sel_hi:[1,0,0] neg_lo:[0,0,1] neg_hi:[0,0,1]")
    vals = [S1, S1 + 1, S1 + 2, S1 + 3, S2, S2 + 1, S2 + 2, S2 + 3, S0, S0 + 1]
    for r in vals: A(f"v_exp_f32 v{r}, v{r}")
    A(f"v_pk_add_f32 v[{PX}:{PX+1}], v[{S1}:{S1+1}], v[{S1+2}:{S1+3}]")
    A(f"v_pk_add_f32 v[{PX+2}:{PX+3}], v[{S2}:{S2+1}], v[{S2+2}:{S2+3}]")
    A(f"v_pk_add_f32 v[{PX}:{PX+1}], v[{PX}:{PX+1}], v[{S0}:{S0+1}]")
    A(f"v_pk_add_f32 v[{PX}:{PX+1}], v[{PX}:{PX+1}], v[{PX+2}:{PX+3}]")
    A(f"v_add_f32 v{M_}, v{PX}, v{PX+1}"); A(f"v_add_f32 v{T_}, v{PX}, v{PX+1}")
    xred("v_add_f32")
    A(f"v_rcp_f32 v{M_}, v{M_}")
    for r in (S1, S1 + 2, S2, S2 + 2, S0):
        A(f"v_pk_mul_f32 v[{r}:{r+1}], v[{r}:{r+1}], v[{M_}:{M_+1}] op_sel_hi:[1,0]")
    for i, r in enumerate((S1, S1 + 2, S2, S2 + 2, S0, S0)): A(f"v_cvt_pk_bf16_f32 v{PX+i}, v{r}, v{r+1}")
    A("s_waitcnt vmcnt(0)")
    for dt in range(8): mf(OA + 4 * dt, VF + 4 * dt, PX, "0")
    A("s_barrier")
    for dt in range(8):
        A(f"v_mfma_f32_16x16x16_bf16 v[{OA+4*dt}:{OA+4*dt+3}], v[{VM+2*dt}:{VM+2*dt+1}], v[{PM}:{PM+1}], v[{OA+4*dt}:{OA+4*dt+3}]")
        if dt >= 3:
            d = dt - 3
            A(f"v_cvt_pk_bf16_f32 v{PK+2*(d&1)}, v{OA+4*d}, v{OA+4*d+1}"); A(f"v_cvt_pk_bf16_f32 v{PK+2*(d&1)+1}, v{OA+4*d+2}, v{OA+4*d+3}")
            A(f"ds_write_b64 v{OW}, v[{PK+2*(d&1)}:{PK+2*(d&1)+1}] offset:{d*32}")
    for d in range(5, 8):
        A(f"v_cvt_pk_bf16_f32 v{PK+2*(d&1)}, v{OA+4*d}, v{OA+4*d+1}"); A(f"v_cvt_pk_bf16_f32 v{PK+2*(d&1)+1}, v{OA+4*d+2}, v{OA+4*d+3}")
        A(f"ds_write_b64 v{OW}, v[{PK+2*(d&1)}:{PK+2*(d&1)+1}] offset:{d*32}")
    A("s_waitcnt lgkmcnt(0)")
    A("s_barrier")
    st(6)
    LN = A.newlabel("Lan"); LE = A.newlabel("Lae")
    for ks in range(3): A(f"ds_read_b128 v[{OB+4*ks}:{OB+4*ks+3}], v{ORD} offset:{ks*32}")
    A(f"v_add_u32 v{AD}, 4096, v{L16}")
    A(f"s_cmp_ge_u32 s{S_SEG}, {NARROW}"); A(f"s_cbranch_scc1 {LN}")
    def wo(nts, accs):
        for ks in range(16):
            A(f"s_waitcnt lgkmcnt({min(2, 15-ks)})")
            for k, nt in enumerate(nts):
                acc = accs(ks, nt)
                A(f"v_mfma_f32_32x32x16_bf16 v[{acc}:{acc+15}], {a((ks*4+nt)*4, 4)}, v[{OB+4*(ks&3)}:{OB+4*(ks&3)+3}], " + ("0" if ks < (1 if len(nts) > 1 else 1) else f"v[{acc}:{acc+15}]"))
                if k == 0 and ks + 3 < 16: A(f"ds_read_b128 v[{OB+4*((ks+3)&3)}:{OB+4*((ks+3)&3)+3}], v{ORD} offset:{(ks+3)*32}")
    def out(nt, acc):
        pk = PK + 8 * (nt & 1)
        for e in range(8): A(f"v_cvt_pk_bf16_f32 v{pk+e}, v{acc+2*e}, v{acc+2*e+1}")
        ar = L16 if nt < 2 else AD
        A(f"global_store_dwordx4 v{ar}, v[{pk}:{pk+3}], s[{S_PART}:{S_PART+1}] offset:{(nt&1)*2048} sc1")
        A(f"global_store_dwordx4 v{ar}, v[{pk+4}:{pk+7}], s[{S_PART}:{S_PART+1}] offset:{(nt&1)*2048+1024} sc1")
    wo([0, 1, 2, 3], lambda ks, nt: ACC + 16 * nt)
    for nt in range(4): out(nt, ACC + 16 * nt)
    st(7)
    A(f"v_lshlrev_b32 v{PK+17}, 3, v{L16}")
    set_flag(A, S_PF, 0, PK + 17, PK + 16, lanes=2)
    def advance(which):
        for b, sh in which:
            A(f"s_lshl_b32 s{T+1}, s{T}, {sh}") if sh < 32 else A(f"s_mul_i32 s{T+1}, s{T}, {sh}")
            A(f"s_add_u32 s{b}, s{b}, s{T+1}"); A(f"s_addc_u32 s{b+1}, s{b+1}, 0")
    A(f"s_lshr_b32 s{T+1}, s{s_phase}, 1"); A(f"s_add_u32 s{T+1}, s{T+1}, {NARROW}")
    A(f"s_add_u32 s{T}, s{S_SEG}, {NA}"); A(f"s_cmp_ge_u32 s{T}, {NARROW}"); A(f"s_cselect_b32 s{T}, s{T+1}, s{T}"); A(f"s_sub_u32 s{T}, s{T}, s{S_SEG}")
    advance(((S_REC, 15), (S_PART, PSEG), (S_PF, 14), (S_KF, 4)))
    A(f"s_add_u32 s{S_SEG}, s{S_SEG}, s{T}")
    if check: qkvcheck()
    qkvloads()
    A(f"s_branch {LOOP}")
    A.label(LN)
    LD = A.newlabel("Lad")
    A(f"s_mov_b32 s{T}, 2")
    for hf in range(2):
        LX = A.newlabel("Lax")
        if hf == 0: A(f"s_bitcmp1_b32 s{s_phase}, 0"); A(f"s_cbranch_scc1 {LX}")
        wo([2 * hf, 2 * hf + 1], lambda ks, nt: ACC + 16 * nt)
        out(2 * hf, ACC + 32 * hf); out(2 * hf + 1, ACC + 32 * hf + 16)
        st(7)
        LL = A.newlabel("Lal"); LM = A.newlabel("Lam")
        A(f"s_cmp_ge_u32 s{S_SEG}, 62"); A(f"s_cbranch_scc1 {LL}")
        advance(((S_REC, 15),))
        qkvloads()
        set_flag(A, S_PF, 128 * hf, L16, PK + 16, wait="s_waitcnt vmcnt(20)")
        A(f"s_branch {LM}")
        A.label(LL)
        set_flag(A, S_PF, 128 * hf, L16, PK + 16)
        A.label(LM)
        if hf == 0: A(f"s_branch {LD}"); A.label(LX)
    A.label(LD)
    advance(((S_PART, PSEG), (S_PF, 14), (S_KF, 4)))
    A(f"s_add_u32 s{S_SEG}, s{S_SEG}, 2")
    A(f"s_cmp_lt_u32 s{S_SEG}, 64"); A(f"s_cbranch_scc1 {LOOP}")
    A("s_waitcnt vmcnt(0)")
```

```python
from asm import *
from layout import *
from team import S_WS, S_DBG, S_RANK, S_WAVE, S_T, S_SPIN, np_f32_bits
from pre import unpack
from attn import wait_flags, set_flag
from rz import wait_mod, mkbase, adv, load_w16, S_A, S_B, S_C2, S_D, S_E, S_F, S_SEG
S_G, S_H = 78, 80

def gen_g(A, s_tb, s_fg, fail, check=True, st=lambda k, r=254: None):
    T = S_T
    L16, FA, WA0, WA1, STA, UW, PW, PR = 1, 2, 3, 4, 5, 6, 7, 8
    t = 10
    UL, STL, RS, WS, UB, UN = 16, 28, 40, 56, 72, 120
    AC = 128
    Z1 = 16
    LDS_U, LDS_P = 0, 0x6000
    A(f"s_load_dwordx4 s[{T}:{T+3}], s[0:1], {KA['w_sp']}")
    ln, n_, g_, t0, t1 = 16, 17, 18, 19, 20
    A(f"v_and_b32 v{ln}, 63, v0"); A(f"v_and_b32 v{n_}, 15, v{ln}"); A(f"v_lshrrev_b32 v{g_}, 4, v{ln}")
    A(f"v_lshlrev_b32 v{L16}, 4, v{ln}"); A(f"v_min_u32 v{FA}, 11, v{ln}"); A(f"v_lshlrev_b32 v{FA}, 7, v{FA}")
    A(f"v_lshrrev_b32 v{t0}, 2, v{n_}"); A(f"v_lshlrev_b32 v{t0}, 3, v{t0}"); A(f"v_and_b32 v{t1}, 3, v{n_}"); A(f"v_add_u32 v{t0}, v{t0}, v{t1}")
    A(f"v_lshlrev_b32 v{t+4}, 1, v{t0}")
    A(f"v_lshlrev_b32 v{WA0}, 12, v{t0}"); A(f"v_lshl_add_u32 v{WA0}, v{g_}, 4, v{WA0}"); A(f"v_add_u32 v{WA1}, {4*4096}, v{WA0}")
    A(f"v_and_b32 v{t0}, 31, v{ln}"); A(f"v_lshlrev_b32 v{t0}, 3, v{t0}")
    A(f"v_lshrrev_b32 v{t1}, 5, v{ln}"); A(f"v_mul_u32_u24 v{t1}, {6*256}, v{t1}"); A(f"v_add_u32 v{STA}, v{t0}, v{t1}")
    A(f"s_mul_i32 s{T+4}, s{S_WAVE}, 3072"); A(f"v_add_u32 v{UW}, s{T+4}, v{L16}")
    A(f"s_lshl_b32 s{T+5}, s{S_WAVE}, 8"); A(f"s_add_u32 s{T+5}, s{T+5}, {LDS_P}")
    A(f"v_add_u32 v{PW}, s{T+5}, v{t0}")
    A(f"v_lshlrev_b32 v{t1}, 6, v{g_}"); A(f"v_add_u32 v{PR}, s{T+5}, v{t1}")
    A(f"s_lshl_b32 s{T+6}, s{s_tb}, 2"); A(f"s_add_u32 s{T+6}, s{T+6}, s{S_WAVE}")
    A(f"s_mul_i32 s{T+7}, s{s_fg}, 12"); A(f"s_cmp_eq_u32 s{s_fg}, 3"); A(f"s_cselect_b32 s{T+7}, 34, s{T+7}")
    A("s_waitcnt lgkmcnt(0)")
    mkbase(A, S_A, 0, [(T + 6, 17)], src=T)
    mkbase(A, S_B, UF_OFF, [(T + 7, 10)])
    mkbase(A, S_C2, STAT_OFF, [])
    mkbase(A, S_E, ZFLAG + 10 * 128, [(S_WAVE, 12)])
    mkbase(A, S_G, 0, [(T + 6, 6)], src=T + 2)
    A(f"global_load_ushort v{t+2}, v{t+4}, s[{S_G}:{S_G+1}]")
    A(f"global_load_ushort v{t+3}, v{t+4}, s[{S_G}:{S_G+1}] offset:8")
    A("s_waitcnt vmcnt(0)")
    A(f"v_lshlrev_b32 v{t+2}, 16, v{t+2}"); A(f"v_lshlrev_b32 v{t+3}, 16, v{t+3}")
    for i in range(96): A(f"v_mov_b32 v{AC+i}, v{t+2+((i>>2)&1)}")
    A(f"global_load_dwordx4 v[{WS}:{WS+3}], v{WA0}, s[{S_A}:{S_A+1}]")
    A(f"global_load_dwordx4 v[{WS+4}:{WS+7}], v{WA1}, s[{S_A}:{S_A+1}]")
    A(f"s_mov_b32 s{S_SEG}, 0")
    A(f"s_mul_i32 s{T+8}, s{T+6}, {44*1024}")
    mkbase(A, S_D, Z1F_OFF, [(T + 7, 10), (T + 8, 0)])
    mkbase(A, S_F, ZFLAG, [(T + 6, 14), (S_WAVE, 12)])
    A("s_barrier")
    def loads():
        for k in range(3): A(f"global_load_dwordx4 v[{UL+4*k}:{UL+4*k+3}], v{UW}, s[{S_B}:{S_B+1}] offset:{k*1024} sc1")
        for k in range(6): A(f"global_load_dwordx2 v[{STL+2*k}:{STL+2*k+1}], v{STA}, s[{S_C2}:{S_C2+1}] offset:{k*256} sc1")
    def z1loads():
        if check: wait_flags(A, S_F, FA, 11, fail, 9)
        A(f"v_add_u32 v{t}, 4096, v{L16}"); A(f"v_add_u32 v{t+1}, 8192, v{L16}")
        for j in range(12): A(f"global_load_dwordx4 a[{176+4*j}:{179+4*j}], v{(L16, t, t+1)[j>>2]}, s[{S_D}:{S_D+1}] offset:{(j&3)*1024} sc1")
    if check: wait_flags(A, S_E, FA, 12, fail, 9)
    loads()
    LOOP = A.newlabel("Lg")
    A.label(LOOP)
    for par in range(2):
        wc, wn = WS + 8 * par, WS + 8 * (par ^ 1)
        if par == 1:
            LZ3 = A.newlabel("Lgz3")
            A(f"s_cmp_lg_u32 s{S_SEG}, 62"); A(f"s_cbranch_scc1 {LZ3}")
            A(f"s_cmp_lg_u32 s{s_tb}, 15"); A(f"s_cbranch_scc1 {LZ3}")
            z1loads()
            A.label(LZ3)
        adv(A, [(S_B, 44 * 1024), (S_C2, 4096), (S_E, 16384)])
        A(f"global_load_dword v{t+5}, v{FA}, s[{S_E}:{S_E+1}] sc1")
        A(f"s_add_u32 s{T}, s{S_SEG}, {par+1}"); A(f"s_and_b32 s{T}, s{T}, 63"); A(f"s_lshl_b32 s{T}, s{T}, 6")
        A(f"v_add_u32 v{t}, s{T}, v{WA0}"); A(f"v_add_u32 v{t+1}, s{T}, v{WA1}")
        A(f"global_load_dwordx4 v[{wn}:{wn+3}], v{t}, s[{S_A}:{S_A+1}]")
        A(f"global_load_dwordx4 v[{wn+4}:{wn+7}], v{t+1}, s[{S_A}:{S_A+1}]")
        A("s_waitcnt vmcnt(3)")
        for k in range(1, 6): A(f"v_add_f32 v{STL}, v{STL}, v{STL+2*k}"); A(f"v_add_f32 v{STL+1}, v{STL+1}, v{STL+2*k+1}")
        A(f"v_mov_b32 v{STL+2}, v{STL}"); A(f"v_mov_b32 v{STL+3}, v{STL+1}")
        A(f"v_permlane32_swap_b32 v{STL}, v{STL+2}"); A(f"v_permlane32_swap_b32 v{STL+1}, v{STL+3}")
        A(f"v_add_f32 v{STL}, v{STL}, v{STL+2}"); A(f"v_add_f32 v{STL+1}, v{STL+1}, v{STL+3}")
        A(f"v_mul_f32 v{STL}, {np_f32_bits(1.0/688):#x}, v{STL}")
        A(f"v_mul_f32 v{STL+1}, {np_f32_bits(1.0/688):#x}, v{STL+1}")
        A(f"v_fma_f32 v{STL+1}, -v{STL}, v{STL}, v{STL+1}")
        A(f"v_max_f32 v{STL+1}, 0, v{STL+1}")
        A(f"v_add_f32 v{STL+1}, {np_f32_bits(1e-5):#x}, v{STL+1}")
        A(f"v_rsq_f32 v{STL+2}, v{STL+1}")
        A(f"v_mul_f32_e64 v{STL+3}, -v{STL}, v{STL+2}")
        A(f"ds_write_b64 v{PW}, v[{STL+2}:{STL+3}]")
        A("s_waitcnt lgkmcnt(0)")
        for k in range(4): A(f"ds_read_b128 v[{RS+4*k}:{RS+4*k+3}], v{PR} offset:{16*k}")
        for k in range(3):
            unpack(A, UN, UL + 4 * k, 4)
            if k == 0: A("s_waitcnt lgkmcnt(0)")
            for e in range(8): A(f"v_fma_f32 v{UN+e}, v{UN+e}, v{RS+2*e}, v{RS+2*e+1}")
            for e in range(4): A(f"v_cvt_pk_bf16_f32 v{UL+4*k+e}, v{UN+2*e}, v{UN+2*e+1}")
            A(f"ds_write_b128 v{UW}, v[{UL+4*k}:{UL+4*k+3}] offset:{LDS_U + par*12288 + k*1024}")
        LNP = A.newlabel("Lgn"); LB = A.newlabel("Lgb")
        A("s_waitcnt vmcnt(2) lgkmcnt(0)")
        A(f"v_cmp_ne_u32 vcc, s{S_NONCE}, v{t+5}")
        A(f"s_and_b32 s{T+1}, vcc_lo, 0xfff")
        if not check: A(f"s_mov_b32 s{T+1}, 0")
        if par == 1:
            A(f"s_cmp_eq_u32 s{S_SEG}, 62"); A(f"s_cselect_b32 s{T+1}, 0, s{T+1}")
        A(f"s_cmp_lg_u32 s{T+1}, 0"); A(f"s_cbranch_scc1 {LNP}")
        loads()
        A.label(LNP)
        A("s_barrier")
        for j in range(12): A(f"ds_read_b128 v[{UB+4*j}:{UB+4*j+3}], v{L16} offset:{LDS_U + par*12288 + j*1024}")
        for j in range(12):
            A(f"s_waitcnt lgkmcnt({11-j})")
            for mt in range(2):
                ac = AC + 8 * j + 4 * mt
                A(f"v_mfma_f32_16x16x32_bf16 v[{ac}:{ac+3}], v[{UB+4*j}:{UB+4*j+3}], v[{wc+4*mt}:{wc+4*mt+3}], v[{ac}:{ac+3}]")
        if par == 1:
            LZ1 = A.newlabel("Lgz1")
            A(f"s_cmp_lg_u32 s{S_SEG}, 60"); A(f"s_cbranch_scc1 {LZ1}")
            A(f"s_cmp_eq_u32 s{s_tb}, 15"); A(f"s_cbranch_scc1 {LZ1}")
            z1loads()
            A.label(LZ1)
        A(f"s_cmp_eq_u32 s{T+1}, 0"); A(f"s_cbranch_scc1 {LB}")
        wait_flags(A, S_E, FA, 12, fail, 9)
        st(5)
        loads()
        A.label(LB)
    A(f"s_add_u32 s{S_SEG}, s{S_SEG}, 2")
    A(f"s_cmp_lt_u32 s{S_SEG}, 64"); A(f"s_cbranch_scc1 {LOOP}")
    st(6)
    A(f"v_add_u32 v{t}, 4096, v{L16}")
    A(f"s_mov_b32 s{T}, s{T+8}")
    A(f"s_lshr_b32 s{T+1}, s{T+7}, 1")
    mkbase(A, S_H, YF_OFF, [(T, 0), (T + 1, 10)])
    mkbase(A, S_F, YFLAG, [(T + 6, 9), (s_fg, 7)])
    A(f"v_add_u32 v{WA0}, {22*1024}, v{L16}"); A(f"v_add_u32 v{WA1}, {22*1024+4096}, v{L16}")
    YP = 72
    LSK = A.newlabel("Lgs")
    for jj in range(6):
        if jj == 5: A(f"s_cmp_ge_u32 s{s_fg}, 2"); A(f"s_cbranch_scc1 {LSK}")
        if jj == 0: A("s_waitcnt vmcnt(0)")
        yp = YP + 8 * (jj & 1)
        for h in range(2):
            j = 2 * jj + h
            for e in range(4): A(f"v_accvgpr_read_b32 v{Z1+e}, a{176+4*j+e}")
            unpack(A, UN, Z1, 4)
            for mt in range(2):
                ac = AC + 8 * j + 4 * mt
                for r in (0, 2): A(f"v_pk_mul_f32 v[{ac+r}:{ac+r+1}], v[{ac+r}:{ac+r+1}], v[{UN+4*mt+r}:{UN+4*mt+r+1}]")
                A(f"v_cvt_pk_bf16_f32 v{yp+4*mt+2*h}, v{ac}, v{ac+1}"); A(f"v_cvt_pk_bf16_f32 v{yp+4*mt+2*h+1}, v{ac+2}, v{ac+3}")
        if jj == 4:
            LZ = A.newlabel("Lgz")
            A(f"s_cmp_lg_u32 s{s_fg}, 3"); A(f"s_cbranch_scc1 {LZ}")
            A(f"v_mov_b64 v[{yp+2}:{yp+3}], 0"); A(f"v_mov_b64 v[{yp+6}:{yp+7}], 0")
            A.label(LZ)
        A(f"global_store_dwordx4 v{L16 if jj < 4 else t}, v[{yp}:{yp+3}], s[{S_H}:{S_H+1}] offset:{(jj&3)*1024} sc1")
        A(f"global_store_dwordx4 v{WA0 if jj < 4 else WA1}, v[{yp+4}:{yp+7}], s[{S_H}:{S_H+1}] offset:{(jj&3)*1024} sc1")
    A.label(LSK)
    st(7)
    set_flag(A, S_F, 0, L16, t)

def gen_o_weights(A, s_cq):
    T = S_T
    A(f"s_load_dwordx2 s[{T}:{T+1}], s[0:1], {KA['w_out']}")
    A(f"s_lshl_b32 s{T+6}, s{s_cq}, 8"); A(f"s_lshl_b32 s{T+7}, s{S_WAVE}, 6"); A(f"s_add_u32 s{T+6}, s{T+6}, s{T+7}")
    A(f"s_lshl_b32 s{T+8}, s{S_WAVE}, 15")
    A("s_waitcnt lgkmcnt(0)")
    A(f"s_add_u32 s{T}, s{T}, s{T+6}"); A(f"s_addc_u32 s{T+1}, s{T+1}, 0")
    A("s_barrier")
    load_w16(A, T, 1024, 22, lambda g, e: 4 * g + (e % 4) + 16 * (e // 4), 2, lambda nt, ks: ("a", (ks * 2 + nt) * 4), T + 8, 16, rowmax=687, inter=True)
    A("s_barrier")

def gen_o(A, s_S, s_cq, NS, fail, check=True, st=lambda k, r=254: None):
    T = S_T
    L16, FA, YW, XA = 1, 2, 3, 4
    t = 8
    YL, YB, AC, XV, GB, XR = 16, 104, 136, 152, 160, 176
    A(f"s_load_dwordx2 s[{T+2}:{T+3}], s[0:1], {KA['out']}")
    A(f"s_lshl_b32 s{T+6}, s{s_cq}, 8"); A(f"s_lshl_b32 s{T+7}, s{S_WAVE}, 6"); A(f"s_add_u32 s{T+6}, s{T+6}, s{T+7}")
    A("s_waitcnt lgkmcnt(0)")
    A("s_barrier")
    if check: wait_mod(A, fail, 16, 17, 80, 16)
    ln, n_, g_, t0, t1 = 16, 17, 18, 19, 20
    A(f"v_and_b32 v{ln}, 63, v0"); A(f"v_and_b32 v{n_}, 15, v{ln}"); A(f"v_lshrrev_b32 v{g_}, 4, v{ln}")
    A(f"v_lshlrev_b32 v{L16}, 4, v{ln}"); A(f"v_lshlrev_b32 v{FA}, 2, v{ln}")
    A(f"s_mul_i32 s{T+9}, s{S_WAVE}, {11*1024}"); A(f"v_add_u32 v{YW}, s{T+9}, v{L16}")
    A(f"v_lshrrev_b32 v{t0}, 2, v{n_}"); A(f"v_lshlrev_b32 v{t0}, 3, v{t0}"); A(f"v_and_b32 v{t1}, 3, v{n_}"); A(f"v_add_u32 v{t0}, v{t0}, v{t1}")
    A(f"v_lshlrev_b32 v{XA}, 10, v{t0}"); A(f"v_lshl_add_u32 v{XA}, v{g_}, 4, v{XA}"); A(f"v_add_u32 v{XA}, s{T+6}, v{XA}")
    A(f"v_add_u32 v{XA+1}, 4096, v{XA}"); A(f"v_add_u32 v{t+4}, 32768, v{XA}"); A(f"v_add_u32 v{t+5}, {32768+4096}, v{XA}")
    xa = [XA, XA + 1, t + 4, t + 5]
    A(f"v_lshlrev_b32 v{t0}, 4, v{g_}"); A(f"v_and_b32 v{t1}, 32, v{t0}"); A(f"v_add_u32 v{t0}, v{t0}, v{t1}"); A(f"s_lshl_b32 s{T+9}, s{T+6}, 1"); A(f"v_add_u32 v{t0}, s{T+9}, v{t0}"); A(f"v_add_u32 v{t0}, {MOD_OFF + 80*128}, v{t0}")
    A(f"global_load_dwordx4 v[{GB+8}:{GB+11}], v{t0}, s[{S_WS}:{S_WS+1}] sc1")
    A(f"s_mul_i32 s{T+9}, s{s_S}, {44*1024}")
    mkbase(A, S_A, YF_OFF, [(T + 9, 0)])
    mkbase(A, S_B, X1_OFF, [(s_S, 15)])
    mkbase(A, S_C2, 0, [(s_S, 15)], src=T + 2)
    mkbase(A, S_E, YFLAG, [(s_S, 9)])
    A(f"v_lshlrev_b32 v7, 3, v{L16}")
    A(f"v_lshlrev_b32 v{t0}, 4, v{n_}"); A(f"v_lshrrev_b32 v{t1}, 1, v{g_}"); A(f"v_lshl_add_u32 v{t0}, v{t1}, 9, v{t0}")
    A(f"v_and_b32 v{t1}, 1, v{g_}"); A(f"v_lshl_add_u32 v{t0}, v{t1}, 3, v{t0}"); A(f"s_lshl_b32 s{T+9}, s{T+6}, 4")
    for k in range(2 * NS): A(f"v_add_u32 v{224+k}, s{T+9}, v{t0}"); A(f"v_add_u32 v{224+k}, {16384*k}, v{224+k}")
    NY = 11 * NS
    for k in range(1, 3 * NS): A(f"v_add_u32 v{200+k}, {4096*(k%3) + 44*1024*(k//3)}, v{YW}")
    A(f"v_mov_b32 v200, v{YW}")
    if check: wait_flags(A, S_E, 7, 4 * NS, fail, t + 2)
    st(1)
    for i in range(NY): A(f"global_load_dwordx4 v[{YL+4*i}:{YL+4*i+3}], v{200 + 3*(i//11) + ((i%11) >> 2)}, s[{S_A}:{S_A+1}] offset:{((i%11)&3)*1024} sc1")
    for k in range(2 * NS):
        for b in range(2): A(f"global_load_dwordx2 v[{XR+4*k+2*b}:{XR+4*k+2*b+1}], v{224+k}, s[{S_B}:{S_B+1}] offset:{256*b} sc1")
    NX = 4 * NS
    def ywr(i): return f"s_waitcnt vmcnt({NY-1-i+NX})\nds_write_b128 v{200 + 3*(i//11)}, v[{YL+4*i}:{YL+4*i+3}] offset:{(i%11)*1024}"
    A(f"v_add_u32 v{t}, {44*1024}, v{L16}")
    unpack(A, GB, GB + 8, 4)
    for i in range(11): A(ywr(i))
    A("s_waitcnt lgkmcnt(0)"); A("s_barrier")
    st(2)
    fr = [(q, mt, j) for q in range(NS) for j in range(22) for mt in range(2)]
    def rd(i): q, mt, j = fr[i]; return f"ds_read_b128 v[{YB+4*(i&7)}:{YB+4*(i&7)+3}], v{L16 if q == 0 else t} offset:{(mt*22+j)*1024}"
    def epi(q):
        if q == 0: A("s_waitcnt vmcnt(0)")
        for mt in range(2):
            unpack(A, XV, XR + 8 * q + 4 * mt, 4)
            for e in range(8): A(f"v_fmac_f32 v{XV+e}, v{ACQ[q]+8*mt+e}, v{GB+e}")
            for e in range(4): A(f"v_cvt_pk_bf16_f32 v{YL+8*q+4*mt+e}, v{XV+2*e}, v{XV+2*e+1}")
            A(f"global_store_dwordx4 v{xa[2*q+mt]}, v[{YL+8*q+4*mt}:{YL+8*q+4*mt+3}], s[{S_C2}:{S_C2+1}]")
    ACQ = [AC, 208]
    for q in range(NS):
        base = 44 * q
        for i in range(7): A(rd(base + i))
        for i in range(base, base + 44):
            _, mt, j = fr[i]
            k = i - base
            A(f"s_waitcnt lgkmcnt({min(6, 43-k)})") if not (NS == 2 and q == 0 and 20 <= k < 33) else A("s_waitcnt lgkmcnt(6)" if k == 20 else "s_waitcnt lgkmcnt(7)")
            for nt in range(2):
                ac = ACQ[q] + 8 * mt + 4 * nt
                A(f"v_mfma_f32_16x16x32_bf16 v[{ac}:{ac+3}], {a((j*2+nt)*4, 4)}, v[{YB+4*(i&7)}:{YB+4*(i&7)+3}], " + ("0" if j == 0 else f"v[{ac}:{ac+3}]"))
                if nt == 0 and k + 7 < 44: A(rd(i + 7))
                if nt == 1 and NS == 2 and q == 0 and 20 <= k < 31: A(ywr(11 + k - 20))
            if NS == 2 and q == 1 and k == 6: epi(0)
        if NS == 2 and q == 0: A("s_waitcnt lgkmcnt(0)"); A("s_barrier")
    epi(NS - 1)
```

```python
P_OFF   = 0x0000000
Q_OFF   = 0x0040000
FLAG_OFF= 0x0050000
KMFLAG  = FLAG_OFF + 0x0000

MOD_OFF = 0x0078000
H1F_OFF = 0x0100000
REC_OFF = 0x0400000
REC_SZ  = 0x8000
R_KX, R_VX, R_QX, R_KM, R_VM = 0x0, 0x2000, 0x4000, 0x6000, 0x7000
TST_OFF = 0x00E0000
KA = dict(x=0, mem0=8, Wq=16, Wk=24, Wv=32, Wo=40, seglen=48, Bx=56, w_in=64, w_sp=72, b_sp=80, w_out=88, c=96, w_mod=104, out=112, dbg=120, ws=128)
DBG_XCNT = 0
DBG_TEAM = 16
DBG_TINIT= 17
DBG_WCNT = 18
DBG_FAIL = 20
DBG_TIME = 24
PARTFLAG= 0x7A00000
H2FLAG  = 0x7B00000
ZFLAG   = 0x7C00000
YFLAG   = 0x7980000
X1FLAG  = 0x7990000
H1FLAG  = 0x79B0000
TINITF  = FLAG_OFF + 0x1A800
FAILW   = FLAG_OFF + 0x1AC00
QKVFLAG = 0x79A0000
FLAG_END= FLAG_OFF + 0x20000
PART_OFF= 0x4800000
X1_OFF  = 0x6880000
H2F_OFF = 0x6A80000
Z1F_OFF = 0x6C80000
UF_OFF  = 0x7000000
STAT_OFF= 0x7400000
YF_OFF  = 0x7500000
S_NONCE, S_CONF, S_WIDX, S_XCC = 97, 98, 99, 100
PSTR = 0x8100
PSEG = 16 * PSTR
```

```python
from asm import *
from layout import *
from team import S_WS, S_DBG, S_RANK, S_WAVE, S_T, S_SPIN, np_f32_bits
from pre import unpack, xreduce8, LOG2E
from attn import wait_flags, set_flag
S_A, S_B, S_C2, S_D, S_E, S_F, S_SEG = 64, 66, 68, 70, 72, 74, 76

def mkbase(A, dst, const, parts, src=S_WS):
    T = S_T
    A(f"s_add_u32 s{dst}, s{src}, {const}"); A(f"s_addc_u32 s{dst+1}, s{src+1}, 0")
    for sr, sh in parts:
        A(f"s_lshl_b32 s{T+11}, s{sr}, {sh}"); A(f"s_add_u32 s{dst}, s{dst}, s{T+11}"); A(f"s_addc_u32 s{dst+1}, s{dst+1}, 0")
def adv(A, lst):
    for b, inc in lst: A(f"s_add_u32 s{b}, s{b}, {inc}"); A(f"s_addc_u32 s{b+1}, s{b+1}, 0")

TOUCH = False
def wait_mod(A, fail, t0, t1, first=0, n=64):
    A(f"v_and_b32 v{t0}, 63, v0"); A(f"v_lshlrev_b32 v{t0}, 6, v{t0}"); A(f"v_add_u32 v{t0}, {MOD_OFF + 32 + first * 128}, v{t0}")
    n *= 2
    while n > 0:
        wait_flags(A, S_WS, t0, min(n, 64), fail, t1, drain=True)
        n -= 64
        if n > 0: A(f"v_add_u32 v{t0}, 4096, v{t0}")

def gen_red(A, s_gam, s_phase, NR, fail, check=True, st=lambda k, r=254: None):
    T = S_T
    PA, XA, HA, FA, LW, LR, X1A = 1, 2, 3, 4, 5, 6, 7
    GA, SB, CB, XV, AC, RAW, t = 16, 24, 32, 40, 48, 96, 8
    XR = 56
    C10, C01 = 12, 13
    A(f"s_load_dwordx2 s[{T}:{T+1}], s[0:1], {KA['x']}")
    ln, r4, c, t0, t1 = 96, 97, 98, 99, 100
    A(f"v_and_b32 v{ln}, 63, v0"); A(f"v_and_b32 v{r4}, 3, v{ln}"); A(f"v_lshrrev_b32 v{c}, 2, v{ln}")
    A(f"v_lshlrev_b32 v{PA}, 9, v{c}"); A(f"v_lshl_add_u32 v{PA}, v{r4}, 4, v{PA}")
    A(f"v_lshrrev_b32 v{t0}, 2, v{c}"); A(f"v_lshlrev_b32 v{t0}, 6, v{t0}")
    A(f"v_bfe_u32 v{t1}, v{c}, 1, 1"); A(f"v_lshl_add_u32 v{t0}, v{t1}, 5, v{t0}")
    A(f"v_and_b32 v{t1}, 1, v{c}"); A(f"v_lshl_add_u32 v{t0}, v{t1}, 3, v{t0}")
    A(f"s_lshl_b32 s{T+2}, s{S_WAVE}, 8"); A(f"v_add_u32 v{t0}, s{T+2}, v{t0}")
    A(f"v_lshl_add_u32 v{XA}, v{r4}, 10, v{t0}")
    A(f"v_and_b32 v{t1}, 0xffe0, v{t0}"); A(f"v_add_u32 v{t0}, v{t0}, v{t1}")
    A(f"v_add_u32 v{t0}, {MOD_OFF + 4096}, v{t0}")
    if check: wait_mod(A, fail, t1, t1 + 1, 32, 48)
    A(f"v_add_u32 v{t1}, 4096, v{t0}")
    for k in range(3):
        for hf in range(2):
            A(f"global_load_dwordx2 v[{RAW+8+4*k+2*hf}:{RAW+9+4*k+2*hf}], v{t0 if k < 2 else t1}, s[{S_WS}:{S_WS+1}] offset:{(k&1)*2048 + hf*16} sc1")
    A(f"v_lshrrev_b32 v{t1}, 2, v{c}"); A(f"v_lshlrev_b32 v{HA}, 10, v{t1}")
    A(f"v_and_b32 v{t1}, 3, v{c}"); A(f"v_lshl_add_u32 v{HA}, v{t1}, 8, v{HA}")
    A(f"v_lshl_add_u32 v{HA}, v{r4}, 4, v{HA}")
    A(f"v_lshlrev_b32 v{FA}, 2, v{ln}")
    A(f"v_lshlrev_b32 v{X1A}, 7, v{ln}")
    A(f"v_lshlrev_b32 v{LR}, 4, v{r4}")
    A(f"s_lshl_b32 s{T+3}, s{S_WAVE}, 2"); A(f"v_lshl_add_u32 v{LW}, v{r4}, 4, s{T+3}")
    A(f"v_mov_b32 v{C10}, 0x3f80"); A(f"v_mov_b32 v{C01}, 0x3f800000")
    A(f"s_and_b32 s{T+4}, s{s_gam}, 1"); A(f"s_lshr_b32 s{T+5}, s{s_gam}, 1")
    A("s_waitcnt lgkmcnt(0)")
    A(f"s_mul_i32 s{T+6}, s{s_phase}, {PSEG}")
    mkbase(A, S_A, PART_OFF, [(T + 6, 0), (S_WAVE, 13), (s_gam, 6)])
    mkbase(A, S_B, 0, [(s_phase, 15), (s_gam, 12)], src=T)
    mkbase(A, S_C2, X1_OFF, [(s_phase, 15), (S_WAVE, 12), (T + 4, 14), (T + 5, 6)])
    mkbase(A, S_D, H2F_OFF, [(s_phase, 15), (S_WAVE, 12), (T + 4, 14), (T + 5, 6)])
    mkbase(A, S_E, PARTFLAG, [(s_phase, 14), (S_WAVE, 12)])
    mkbase(A, S_F, H2FLAG, [(s_phase, 11), (s_gam, 7)])
    A(f"v_lshlrev_b32 v14, 10, v{ln}")
    A("s_waitcnt vmcnt(0)")
    for k, dst in enumerate((GA, SB, CB)): unpack(A, dst, RAW + 8 + 4 * k, 4)
    A(f"s_mov_b32 s{S_SEG}, s{s_phase}")
    LOOP = A.newlabel("Lr")
    A.label(LOOP)
    for hf in range(2): A(f"global_load_dwordx2 v[{XR+2*hf}:{XR+2*hf+1}], v{XA}, s[{S_B}:{S_B+1}] offset:{hf*16}")
    for i in range(8): A(f"v_mov_b32 v{AC+i}, 0")
    if TOUCH:
        A(f"v_lshlrev_b32 v{t}, 13, v{FA}")
        A("s_mov_b64 exec, 0xffff")
        A(f"global_load_dword v{t+2}, v{t}, s[{S_A}:{S_A+1}] sc1")
        A("s_mov_b64 exec, -1")
    if check: wait_flags(A, S_E, X1A, 32, fail, t + 3)
    st(5)
    A(f"v_mov_b32 v{t}, v{PA}")
    for p in range(16):
        A(f"global_load_dwordx4 v[{RAW+4*p}:{RAW+4*p+3}], v{t+(p&1)}, s[{S_A}:{S_A+1}] sc1")
        if p < 15: A(f"v_add_u32 v{t+((p+1)&1)}, {PSTR*(p+1)}, v{PA}")
    A("s_waitcnt vmcnt(16)")
    unpack(A, XV, XR, 4)
    for p in range(16):
        A(f"s_waitcnt vmcnt({15-p})")
        for e in range(4):
            A(f"v_dot2c_f32_bf16 v{AC+2*e}, v{RAW+4*p+e}, v{C10}")
            A(f"v_dot2c_f32_bf16 v{AC+2*e+1}, v{RAW+4*p+e}, v{C01}")
    st(6)
    for i in range(8): A(f"v_fmac_f32 v{XV+i}, v{AC+i}, v{GA+i}")
    for i in range(4): A(f"v_cvt_pk_bf16_f32 v{XR+i}, v{XV+2*i}, v{XV+2*i+1}")
    unpack(A, XV, XR, 4)
    A(f"global_store_dwordx4 v{HA}, v[{XR}:{XR+3}], s[{S_C2}:{S_C2+1}] sc1")
    def wgsum(off):
        A(f"v_add_f32_dpp v{t}, v{t}, v{t} row_ror:4 row_mask:0xf bank_mask:0xf")
        xreduce8(A, t, t + 1)
        A(f"ds_write_b32 v{LW}, v{t} offset:{off}")
        A("s_waitcnt lgkmcnt(0)"); A("s_barrier")
        A(f"ds_read_b128 v[{AC}:{AC+3}], v{LR} offset:{off}")
        A("s_waitcnt lgkmcnt(0)")
        A(f"v_add_f32 v{t}, v{AC}, v{AC+1}"); A(f"v_add_f32 v{t+1}, v{AC+2}, v{AC+3}"); A(f"v_add_f32 v{t}, v{t}, v{t+1}")
    A(f"v_add_f32 v{t}, v{XV}, v{XV+1}"); A(f"v_add_f32 v{t+1}, v{XV+2}, v{XV+3}")
    for i in range(4, 8, 2): A(f"v_add_f32 v{t}, v{t}, v{XV+i}"); A(f"v_add_f32 v{t+1}, v{t+1}, v{XV+i+1}")
    A(f"v_add_f32 v{t}, v{t}, v{t+1}")
    wgsum(0)
    A(f"v_mul_f32 v{t}, {np_f32_bits(1.0/512):#x}, v{t}")
    for i in range(8): A(f"v_sub_f32 v{XV+i}, v{XV+i}, v{t}")
    A(f"v_mul_f32 v{t}, v{XV}, v{XV}"); A(f"v_mul_f32 v{t+1}, v{XV+1}, v{XV+1}")
    for i in range(2, 8, 2): A(f"v_fmac_f32 v{t}, v{XV+i}, v{XV+i}"); A(f"v_fmac_f32 v{t+1}, v{XV+i+1}, v{XV+i+1}")
    A(f"v_add_f32 v{t}, v{t}, v{t+1}")
    wgsum(128)
    A(f"v_mov_b32 v{t+1}, {np_f32_bits(1e-5):#x}")
    A(f"v_fmac_f32 v{t+1}, {np_f32_bits(1.0/512):#x}, v{t}")
    A(f"v_rsq_f32 v{t}, v{t+1}")
    for i in range(8): A(f"v_mul_f32 v{XV+i}, v{XV+i}, v{t}")
    for i in range(8): A(f"v_fma_f32 v{XV+i}, v{XV+i}, v{CB+i}, v{SB+i}")
    for i in range(4): A(f"v_cvt_pk_bf16_f32 v{AC+i}, v{XV+2*i}, v{XV+2*i+1}")
    A(f"global_store_dwordx4 v{HA}, v[{AC}:{AC+3}], s[{S_D}:{S_D+1}] sc1")
    st(7)
    LW0 = A.newlabel("Lrw")
    A("s_waitcnt vmcnt(0)"); A("s_barrier")
    A(f"s_cmp_lg_u32 s{S_WAVE}, 0"); A(f"s_cbranch_scc1 {LW0}")
    set_flag(A, S_F, 0, 14, t, lanes=2, wait="s_nop 0")
    A.label(LW0)
    adv(A, [(S_A, NR * PSEG), (S_B, NR << 15), (S_C2, NR << 15), (S_D, NR << 15), (S_E, NR << 14), (S_F, NR << 11)])
    A(f"s_add_u32 s{S_SEG}, s{S_SEG}, {NR}")
    A(f"s_cmp_lt_u32 s{S_SEG}, 64"); A(f"s_cbranch_scc1 {LOOP}")

def load_w16(A, sw, pitch, nks, rows_fn, ntile, dst_fn, lds_base_sreg, tmp, rowmax=None, inter=False):
    ln, a0, a1, src, TR0 = tmp, tmp + 1, tmp + 2, tmp + 3, tmp + 4
    rb = 32 * ntile
    upr = rb // 16
    rpi = 64 // upr
    A(f"v_and_b32 v{ln}, 63, v0")
    d1 = rows_fn(1, 0) - rows_fn(0, 0); d2 = rows_fn(2, 0) - rows_fn(0, 0); sec = rows_fn(0, 4) - rows_fn(0, 0)
    assert rows_fn(3, 0) == d1 + d2
    A(f"v_bfe_u32 v{a0}, v{ln}, 4, 1"); A(f"v_mul_u32_u24 v{a0}, {d1}, v{a0}")
    A(f"v_bfe_u32 v{a1}, v{ln}, 5, 1"); A(f"v_mul_u32_u24 v{a1}, {d2}, v{a1}"); A(f"v_add_u32 v{a0}, v{a0}, v{a1}")
    A(f"v_bfe_u32 v{a1}, v{ln}, 2, 2"); A(f"v_add_u32 v{a0}, v{a0}, v{a1}")
    A(f"v_mul_u32_u24 v{a0}, {rb}, v{a0}")
    A(f"v_and_b32 v{a1}, 3, v{ln}"); A(f"v_lshl_add_u32 v{a0}, v{a1}, {4 if inter else 3}, v{a0}")
    A(f"v_add_u32 v{TR0}, s{lds_base_sreg}, v{a0}")
    A(f"v_lshrrev_b32 v{a0}, {upr.bit_length()-1}, v{ln}")
    A(f"v_and_b32 v{a1}, {upr-1}, v{ln}"); A(f"v_lshlrev_b32 v{src}, 4, v{a1}")
    A(f"s_mov_b32 s{S_T+12}, {pitch}")
    ninstr = 32 * nks // rpi
    CH = 32
    done = 0
    while done < ninstr:
        n = min(CH, ninstr - done)
        for i in range(n):
            A(f"s_add_u32 m0, s{lds_base_sreg}, {i*1024}")
            A(f"v_add_u32 v{a1}, {(done+i)*rpi}, v{a0}")
            if rowmax is not None: A(f"v_min_u32 v{a1}, {rowmax}, v{a1}")
            A(f"v_mad_u32_u24 v{a1}, v{a1}, s{S_T+12}, v{src}")
            A(f"global_load_lds_dwordx4 v{a1}, s[{sw}:{sw+1}]")
        A("s_waitcnt vmcnt(0)")
        ks0 = done * rpi // 32
        for ks in range(n * rpi // 32):
            for nt in range(ntile):
                pre, b = dst_fn(nt, ks0 + ks)
                o = ks * 32 * rb + nt * (8 if inter else 32)
                A(f"ds_read_b64_tr_b16 {rng(pre, b, 2)}, v{TR0} offset:{o}")
                A(f"ds_read_b64_tr_b16 {rng(pre, b+2, 2)}, v{TR0} offset:{o + sec*rb}")
        A("s_waitcnt lgkmcnt(0)")
        done += n

def sigma(g, e): return 16 * (g // 2) + 4 * (g % 2) + (e % 4) + 8 * (e // 4)

def gelu(A, x, t, n):
    k0 = 2 * 0.7978845608028654 * LOG2E; k1 = k0 * 0.044715
    for i in range(n): A(f"v_mul_f32 v{t+i}, v{x+i}, v{x+i}")
    for i in range(n): A(f"v_fma_f32 v{t+i}, v{t+i}, s{S_T+14}, v{t+n}")
    for i in range(n): A(f"v_mul_f32 v{t+i}, v{t+i}, v{x+i}")
    for i in range(n): A(f"v_exp_f32 v{t+i}, -v{t+i}")
    for i in range(n): A(f"v_add_f32 v{t+i}, 1.0, v{t+i}")
    for i in range(n): A(f"v_rcp_f32 v{t+i}, v{t+i}")
    for i in range(n): A(f"v_mul_f32 v{x+i}, v{x+i}, v{t+i}")
    return k0, k1

def gen_z(A, s_zi, s_phase, NZ, fail, check=True, st=lambda k, r=254: None):
    T = S_T
    L16, FA, HW, SW, SR = 1, 2, 3, 4, 5
    WF, HB, AC, t, ST, HL = 64, 128, 16, 24, 40, 160
    LDS_H, LDS_S = 0, 0x8000
    A(f"s_load_dwordx2 s[{T}:{T+1}], s[0:1], {KA['w_in']}")
    A(f"s_lshl_b32 s{T+2}, s{s_zi}, 2"); A(f"s_add_u32 s{T+2}, s{T+2}, s{S_WAVE}")
    A(f"s_min_u32 s{T+3}, s{T+2}, 85"); A(f"s_lshl_b32 s{T+3}, s{T+3}, 5")
    A(f"s_lshl_b32 s{T+4}, s{S_WAVE}, 15")
    A("s_waitcnt lgkmcnt(0)")
    A(f"s_add_u32 s{T}, s{T}, s{T+3}"); A(f"s_addc_u32 s{T+1}, s{T+1}, 0")
    A("s_barrier")
    load_w16(A, T, 2752, 16, sigma, 1, lambda nt, ks: ("v", WF + 4 * ks), T + 4, 16)
    A("s_barrier")
    A("v_and_b32 v16, 63, v0")
    A(f"v_lshlrev_b32 v{L16}, 4, v16"); A(f"v_lshlrev_b32 v{FA}, 2, v16")
    A(f"s_lshl_b32 s{T+5}, s{S_WAVE}, 13"); A(f"v_add_u32 v{HW}, s{T+5}, v{L16}")
    A(f"v_lshrrev_b32 v17, 4, v16"); A(f"v_lshlrev_b32 v17, 6, v17"); A(f"s_lshl_b32 s{T+6}, s{S_WAVE}, 8"); A(f"s_add_u32 s{T+6}, s{T+6}, {LDS_S}")
    A(f"v_add_u32 v{SW}, s{T+6}, v17")
    A(f"v_add_u32 v{SR}, {LDS_S}, v{FA}")
    mkbase(A, S_A, H2F_OFF, [(s_phase, 15)])
    A(f"s_mov_b32 s{T+7}, {UF_OFF - 43*1024}")
    A(f"s_cmp_lt_u32 s{T+2}, 43")
    A(f"s_cselect_b32 s{T+7}, {Z1F_OFF}, s{T+7}")
    A(f"s_cselect_b32 s{T+13}, 1, 0")
    A(f"s_min_u32 s{T+8}, s{T+2}, 86"); A(f"s_lshl_b32 s{T+8}, s{T+8}, 10"); A(f"s_add_u32 s{T+7}, s{T+7}, s{T+8}")
    A(f"s_mul_i32 s{T+8}, s{s_phase}, {44*1024}"); A(f"s_add_u32 s{T+7}, s{T+7}, s{T+8}")
    A(f"s_add_u32 s{S_B}, s{S_WS}, s{T+7}"); A(f"s_addc_u32 s{S_B+1}, s{S_WS+1}, 0")
    mkbase(A, S_C2, STAT_OFF - 10 * 256, [(s_phase, 12), (s_zi, 8)])
    A(f"s_and_b32 s{T+9}, s{s_zi}, 1")
    mkbase(A, S_E, H2FLAG, [(s_phase, 11), (T + 9, 10)])
    mkbase(A, S_F, ZFLAG, [(s_phase, 14), (s_zi, 7)])
    A(f"v_lshlrev_b32 v6, 12, v16"); A("v_lshlrev_b32 v7, 7, v16")
    k0 = 2 * 0.7978845608028654 * LOG2E; k1 = k0 * 0.044715
    A(f"s_mov_b32 s{T+14}, {np_f32_bits(k1):#x}")
    A(f"v_mov_b32 v{t+8}, {np_f32_bits(k0):#x}")
    A(f"s_cmp_lt_u32 s{T+2}, 86"); A(f"s_cselect_b32 s{T+15}, 0, 1"); A(f"s_or_b32 s{T+15}, s{T+15}, s{T+13}")
    A(f"s_mov_b32 s{S_SEG}, s{s_phase}")
    LOOP = A.newlabel("Lz")
    A.label(LOOP)
    if check: wait_flags(A, S_E, 7, 8, fail, t + 1)
    st(5)
    A(f"v_add_u32 v{t}, 4096, v{HW}")
    for i in range(8): A(f"global_load_dwordx4 v[{HL+4*i}:{HL+4*i+3}], v{HW if i < 4 else t}, s[{S_A}:{S_A+1}] offset:{(i&3)*1024} sc1")
    for i in range(8):
        A(f"s_waitcnt vmcnt({7-i})")
        A(f"ds_write_b128 v{HW}, v[{HL+4*i}:{HL+4*i+3}] offset:{i*1024}")
    A("s_waitcnt lgkmcnt(0)"); A("s_barrier")
    st(6)
    LZ2 = A.newlabel("Lz2"); LG = A.newlabel("Lzg")
    def mm(z1):
        fr = [(mt, ks) for ks in range(16) for mt in range(2)]
        def rd(i): mt, ks = fr[i]; return f"ds_read_b128 v[{HB+4*(i&7)}:{HB+4*(i&7)+3}], v{L16} offset:{mt*16384 + ks*1024}"
        for i in range(7): A(rd(i))
        for i, (mt, ks) in enumerate(fr):
            A(f"s_waitcnt lgkmcnt({min(6, 31-i)})")
            h = v(HB + 4 * (i & 7), 4); w = v(WF + 4 * ks, 4)
            ops = (w, h) if z1 else (h, w)
            A(f"v_mfma_f32_16x16x32_bf16 v[{AC+4*mt}:{AC+4*mt+3}], {ops[0]}, {ops[1]}, " + ("0" if ks == 0 else f"v[{AC+4*mt}:{AC+4*mt+3}]"))
            if i + 7 < 32: A(rd(i + 7))
    A(f"s_cmp_eq_u32 s{T+13}, 0"); A(f"s_cbranch_scc1 {LZ2}")
    mm(True); A(f"s_branch {LG}")
    A.label(LZ2); mm(False)
    A.label(LG)
    A("s_nop 7")
    for i in range(4): A(f"v_cvt_pk_bf16_f32 v{ST+i}, v{AC+2*i}, v{AC+2*i+1}")
    unpack(A, AC, ST, 4)
    gelu(A, AC, t, 8)
    for i in range(4): A(f"v_cvt_pk_bf16_f32 v{HL+i}, v{AC+2*i}, v{AC+2*i+1}")
    A(f"global_store_dwordx4 v{L16}, v[{HL}:{HL+3}], s[{S_B}:{S_B+1}] sc1")
    for i in range(8): A(f"v_mov_b32 v{ST+2*i}, v{AC+i}"); A(f"v_mul_f32 v{ST+2*i+1}, v{AC+i}, v{AC+i}")
    for sh in (8, 4, 2, 1):
        for i in range(16): A(f"v_add_f32_dpp v{ST+i}, v{ST+i}, v{ST+i} row_ror:{sh} row_mask:0xf bank_mask:0xf")
    LN = A.newlabel("Lzn")
    A(f"s_cmp_eq_u32 s{T+15}, 0"); A(f"s_cbranch_scc1 {LN}")
    A.skip_begin()
    for i in range(0, 16, 2): A(f"v_mov_b64 v[{ST+i}:{ST+i+1}], 0")
    A.skip_end()
    A.label(LN)
    for i in range(4): A(f"ds_write_b128 v{SW}, v[{ST+4*i}:{ST+4*i+3}] offset:{16*i}")
    st(7)
    A("s_waitcnt vmcnt(0) lgkmcnt(0)"); A("s_barrier")
    LE = A.newlabel("Lze")
    A(f"s_cmp_lg_u32 s{S_WAVE}, 0"); A(f"s_cbranch_scc1 {LE}")
    LF = A.newlabel("Lzf")
    A(f"s_cmp_lt_u32 s{s_zi}, 10"); A(f"s_cbranch_scc1 {LF}")
    for i in range(4): A(f"ds_read_b32 v{ST+i}, v{SR} offset:{256*i}")
    A("s_waitcnt lgkmcnt(0)")
    A(f"v_add_f32 v{ST}, v{ST}, v{ST+1}"); A(f"v_add_f32 v{ST+2}, v{ST+2}, v{ST+3}"); A(f"v_add_f32 v{ST}, v{ST}, v{ST+2}")
    A(f"global_store_dword v{FA}, v{ST}, s[{S_C2}:{S_C2+1}] sc1")
    A.label(LF)
    set_flag(A, S_F, 0, 6, t, lanes=4)
    A.label(LE)
    adv(A, [(S_A, NZ << 15), (S_B, NZ * 44 * 1024), (S_C2, NZ << 12), (S_E, NZ << 11), (S_F, NZ << 14)])
    A(f"s_add_u32 s{S_SEG}, s{S_SEG}, {NZ}")
    A(f"s_cmp_lt_u32 s{S_SEG}, 64"); A(f"s_cbranch_scc1 {LOOP}")
```

```python
from asm import *
from layout import *
from flags import wait_flags, set_flag
import math

IDX, L16, MEMW, MR1, MR2, MR3, XW, XR0, XR1, OW, OR_, WL, SPARE, PST, QST, QLD = range(16)
JUNK2 = 20
S_KXR, S_MR1, S_BM = 56, 57, 54
RA, RB, RC, RD, RE, RF = 16, 48, 80, 96, 104, 120
LDS_MEM, LDS_KX, LDS_X, LDS_O, LDS_MISC, LDS_W = 0x0, 0x2000, 0x6000, 0x7000, 0x7A00, 0x8000
LDS_SEL = 0x7C00
OS = 288
S_WS, S_DBG, S_RANK, S_WAVE, S_STEP, S_TAG = 4, 6, 8, 9, 10, 11
S_P0, S_P1, S_PL0, S_PL1, S_Q0, S_Q1 = 12, 14, 16, 18, 20, 22
S_KX, S_VX, S_KM, S_VM, S_C, S_QMASK = 24, 26, 28, 30, 32, 34
S_KMF, S_KVF = 36, 38
S_T = 40
S_SPIN = 60
S_CKM = 58
S_VMI = 59
S_KXB = 61
S_T0 = 62

LDS_UNITS = [("m", 1), ("m", 2), ("o", 1, 0), ("o", 1, 1)]
REG_UNITS = [("m", i) for i in (0, 3, 4, 5, 6, 7)] + [("v", i) for i in range(8)] + [("o", 0, 0), ("o", 0, 1)]
def octet_reg(k):
    return ("v", 128 + 8 * k) if k < 16 else ("a", 8 * (k - 16))
OCT = {}
_k = 0
for p in REG_UNITS:
    for t in range(2 if p[0] == "v" else 4):
        OCT[(p, t)] = octet_reg(_k); _k += 1
assert _k == 48
LSLOT = {p: i for i, p in enumerate(LDS_UNITS)}
TRA = 32
TRV = 36

def tr_octet(A, dst, slot, areg):
    pre, b = dst
    for r in range(4):
        A(f"ds_read_b64_tr_b16 {rng(pre, b + 2 * r, 2)}, v{areg} offset:{slot * 8192 + (r & 1) * 256 + (r >> 1) * 4096}")

def gen_team(A, fail_label, done_label, standalone=True, nsteps=64, d1=0, d2=0, timing=False, nopub=0, nokv=False, tslot=0, vsplit=(2,2,8,0), qdepth=1, qgap=0, pdepth=1, d3=0, qmask=True, wov=1, confirm=None, stampw=None, depth=3, wnt='', early_l=None, pfe=False, stage=True, dA=4, bpos=(-1,), bwith=1, bwait=1):
    T = S_T
    NST = 8
    def stamp(k):
        if timing == 2: A(f"s_memtime s[{64+2*k}:{65+2*k}]")
    def accum():
        if timing == 2:
            for k in range(1, NST):
                A(f"s_sub_u32 s{96}, s{64+2*k}, s{64+2*(k-1)}")
                A(f"s_add_u32 s{80+k}, s{80+k}, s{96}")
            A(f"s_sub_u32 s96, s90, s{64+2*(NST-1)}"); A("s_add_u32 s88, s88, s96")
            A("s_mov_b64 s[64:65], s[90:91]")
    ln, n_, g_, t0, t1, t2, t3 = RA, RA + 1, RA + 2, RA + 3, RA + 4, RA + 5, RA + 6
    DSRC, DSRO = RA + 8, RA + 14
    A(f"v_and_b32 v{ln}, 63, v0")
    A(f"v_and_b32 v{n_}, 15, v{ln}")
    A(f"v_lshrrev_b32 v{g_}, 4, v{ln}")
    A(f"s_load_dwordx4 s[{T}:{T+3}], s[0:1], {KA['Wq']}")
    A(f"s_load_dwordx4 s[{T+4}:{T+7}], s[0:1], {KA['Wv']}")
    A(f"s_load_dwordx2 s[{T+8}:{T+9}], s[0:1], {KA['mem0']}")
    A(f"v_lshrrev_b32 v{t3}, 3, v{ln}")
    A(f"v_bfe_u32 v{t0}, v{ln}, 1, 2"); A(f"v_lshrrev_b32 v{t1}, 5, v{ln}"); A(f"v_xor_b32 v{t0}, v{t0}, v{t1}")
    A(f"v_lshlrev_b32 v{t0}, 5, v{t0}"); A(f"v_and_b32 v{t1}, 1, v{ln}"); A(f"v_lshl_add_u32 v{t0}, v{t1}, 4, v{t0}")
    A(f"v_lshl_add_u32 v{DSRC}, v{t3}, 13, v{t0}"); A(f"v_xor_b32 v{DSRC+1}, 64, v{DSRC}")
    A(f"v_lshl_add_u32 v{DSRO}, v{t3}, 10, v{t0}"); A(f"v_xor_b32 v{DSRO+1}, 64, v{DSRO}")
    A(f"v_bfe_u32 v{t0}, v{ln}, 5, 1"); A(f"v_lshlrev_b32 v{t0}, 11, v{t0}")
    A(f"v_bfe_u32 v{t1}, v{ln}, 3, 1"); A(f"v_lshl_add_u32 v{t0}, v{t1}, 10, v{t0}")
    A(f"v_bfe_u32 v{t2}, v{ln}, 4, 1"); A(f"v_lshl_add_u32 v{t0}, v{t2}, 9, v{t0}")
    A(f"v_lshl_add_u32 v{t2}, v{t1}, 1, v{t2}")
    A(f"v_bfe_u32 v{t1}, v{ln}, 2, 1"); A(f"v_lshl_add_u32 v{t0}, v{t1}, 7, v{t0}")
    A(f"v_and_b32 v{t1}, 3, v{ln}"); A(f"v_lshl_add_u32 v{t0}, v{t1}, 3, v{t0}")
    A(f"s_lshl_b32 s{T+10}, s{S_WAVE}, 15")
    A(f"s_add_u32 s{T+10}, s{T+10}, {LDS_W}")
    A(f"v_add_u32 v{t0}, s{T+10}, v{t0}")
    for t in range(4):
        A(f"v_xor_b32 v{t1}, {t}, v{t2}"); A(f"v_lshl_add_u32 v{TRA+t}, v{t1}, 5, v{t0}")
    A(f"s_and_b32 s{T+11}, s{S_WAVE}, 1"); A(f"s_lshl_b32 s{T+11}, s{T+11}, 6")
    A(f"v_xor_b32 v{TRV}, s{T+11}, v{TRA}"); A(f"v_xor_b32 v{TRV+1}, s{T+11}, v{TRA+1}")
    A("s_waitcnt lgkmcnt(0)")
    A(f"s_cmp_lt_u32 s{S_WAVE}, 2"); A(f"s_cselect_b64 s[{T}:{T+1}], s[{T}:{T+1}], s[{T+2}:{T+3}]")
    A(f"s_lshl_b32 s{T+12}, s{S_RANK}, 8"); A(f"s_lshl_b32 s{T+11}, s{T+11}, 1"); A(f"s_add_u32 s{T+11}, s{T+11}, s{T+12}")
    A(f"s_add_u32 s{T}, s{T}, s{T+11}"); A(f"s_addc_u32 s{T+1}, s{T+1}, 0")
    A(f"s_lshr_b32 s{T+11}, s{S_WAVE}, 1"); A(f"s_lshl_b32 s{T+11}, s{T+11}, 7"); A(f"s_add_u32 s{T+11}, s{T+11}, s{T+12}")
    A(f"s_add_u32 s{T+4}, s{T+4}, s{T+11}"); A(f"s_addc_u32 s{T+5}, s{T+5}, 0")
    A(f"s_lshl_b32 s{T+11}, s{S_RANK}, 17")
    A(f"s_lshl_b32 s{T+12}, s{S_WAVE}, 7")
    A(f"s_add_u32 s{T+11}, s{T+11}, s{T+12}")
    A(f"s_add_u32 s{T+6}, s{T+6}, s{T+11}")
    A(f"s_addc_u32 s{T+7}, s{T+7}, 0")
    for i in range(4):
        A(f"s_add_u32 s{T+12+i}, s{S_WAVE}, {i}")
        A(f"s_and_b32 s{T+12+i}, s{T+12+i}, 3")
        A(f"s_lshl_b32 s{T+12+i}, s{T+12+i}, 19")
    VT = RA + 10
    def dma_piece(p, slot):
        for i in range(8):
            A(f"s_add_u32 m0, s{T+10}, {slot * 8192 + i * 1024}")
            if p[0] in "mv":
                b = T if p[0] == "m" else T + 4; sl = p[1]
                A(f"s_add_u32 s{T+16}, s{T+12+(sl & 3)}, {(sl >> 2) * (4 << 19) + i * 8 * 8192}")
                A(f"v_add_u32 v{VT + (i & 1)}, s{T+16}, v{DSRC + (i & 1)}")
                A(f"global_load_lds_dwordx4 v{VT + (i & 1)}, s[{b}:{b+1}] {wnt}")
            else:
                _, u, j = p
                A(f"v_add_u32 v{VT + (i & 1)}, {(64 * j + 8 * i) * 1024 + u * 512}, v{DSRO + (i & 1)}")
                A(f"global_load_lds_dwordx4 v{VT + (i & 1)}, s[{T+6}:{T+7}] {wnt}")
    order = REG_UNITS + LDS_UNITS
    for i in range(depth): dma_piece(order[i], i)
    A(f"v_lshlrev_b32 v{L16}, 4, v{ln}")
    A(f"s_lshl_b32 s{T+16}, s{S_WAVE}, 10")
    A(f"v_add_u32 v{MEMW}, s{T+16}, v{L16}")
    for i in (1, 2, 3):
        A(f"s_lshr_b32 s{T+17}, s{T+12+i}, 9")
        A(f"v_add_u32 v{MR1+i-1}, s{T+17}, v{L16}")
    A(f"v_bfe_u32 v{t0}, v{ln}, 1, 1")
    A(f"v_mul_u32_u24 v{t0}, 0xAAAA, v{t0}")
    A(f"v_add_u32 v{IDX}, 0x4444, v{t0}")
    A(f"v_lshrrev_b32 v{t0}, 2, v{n_}")
    A(f"v_xor_b32 v{t0}, v{t0}, v{g_}")
    A(f"v_lshlrev_b32 v{t0}, 3, v{t0}")
    A(f"v_lshl_add_u32 v{t0}, v{n_}, 5, v{t0}")
    A(f"s_and_b32 s{T+17}, s{S_WAVE}, 1"); A(f"s_lshl_b32 s{T+17}, s{T+17}, 11"); A(f"s_add_u32 s{T+17}, s{T+17}, {LDS_X}")
    A(f"s_cmp_lt_u32 s{S_WAVE}, 2"); A(f"s_cselect_b32 s{T+18}, 4, 0"); A(f"s_add_u32 s{T+17}, s{T+17}, s{T+18}")
    A(f"v_add_u32 v{XW}, s{T+17}, v{t0}")
    A(f"v_bfe_u32 v{t0}, v{ln}, 5, 1")
    A(f"v_lshlrev_b32 v{t0}, 4, v{t0}")
    A(f"v_bfe_u32 v{t1}, v{ln}, 4, 1")
    A(f"v_lshl_add_u32 v{t0}, v{t1}, 2, v{t0}")
    A(f"v_lshrrev_b32 v{t2}, 2, v{n_}")
    A(f"v_add_u32 v{t0}, v{t0}, v{t2}")
    A(f"v_and_b32 v{t2}, 3, v{ln}")
    A(f"v_xor_b32 v{t2}, v{t2}, v{t1}")
    A(f"v_lshlrev_b32 v{t2}, 3, v{t2}")
    A(f"v_lshl_add_u32 v{t0}, v{t0}, 5, v{t2}")
    A(f"v_add_u32 v{XR0}, {LDS_X}, v{t0}")
    A(f"v_xor_b32 v{t0}, 16, v{t0}")
    A(f"v_add_u32 v{XR1}, {LDS_X + 256}, v{t0}")
    A(f"v_lshrrev_b32 v{t0}, 2, v{n_}")
    A(f"v_and_b32 v{t1}, 1, v{n_}")
    A(f"v_lshl_add_u32 v{t0}, v{t0}, 1, v{t1}")
    A(f"v_mul_u32_u24 v{t1}, {OS}, v{t0}")
    A(f"v_lshl_add_u32 v{t2}, v{g_}, 3, v{t1}")
    A(f"s_lshl_b32 s{T+17}, s{S_WAVE}, 6")
    A(f"s_add_u32 s{T+17}, s{T+17}, {LDS_O}")
    A(f"v_add_u32 v{OW}, s{T+17}, v{t2}")
    A(f"v_bfe_u32 v{t3}, v{ln}, 1, 1")
    A(f"v_cmp_eq_u32 vcc, 0, v{t3}")
    A(f"v_lshlrev_b32 v{t3}, 2, v{ln}")
    A(f"v_add_u32 v{t3}, {LDS_MISC + 64}, v{t3}")
    A(f"v_and_b32 v{t3}, -8, v{t3}")
    A(f"v_cndmask_b32 v{OW}, v{OW}, v{t3}, vcc")
    A(f"v_lshl_add_u32 v{t2}, v{g_}, 5, v{t1}")
    A(f"v_bfe_u32 v{t3}, v{ln}, 1, 1")
    A(f"v_lshl_add_u32 v{t2}, v{t3}, 4, v{t2}")
    A(f"v_add_u32 v{OR_}, {LDS_O}, v{t2}")
    M0A = RA + 12
    A(f"v_lshlrev_b32 v{t0}, 10, v{t0}")
    A(f"v_lshl_add_u32 v{t0}, v{g_}, 5, v{t0}")
    A(f"v_lshl_add_u32 v{t0}, v{t3}, 4, v{t0}")
    A(f"s_lshl_b32 s{T+17}, s{S_WAVE}, 7")
    A(f"v_add_u32 v{M0A}, s{T+17}, v{t0}")
    A(f"v_lshlrev_b32 v{t0}, 13, v{g_}")
    A(f"v_lshl_add_u32 v{t0}, v{n_}, 4, v{t0}")
    A(f"s_lshl_b32 s{T+17}, s{S_WAVE}, 15")
    A(f"s_lshl_b32 s{T+18}, s{S_RANK}, 8")
    A(f"s_add_u32 s{T+17}, s{T+17}, s{T+18}")
    A(f"v_add_u32 v{PST}, s{T+17}, v{t0}")
    A(f"v_and_b32 v{t0}, 7, v{ln}")
    A(f"v_lshlrev_b32 v{t0}, 5, v{t0}")
    A(f"v_lshl_add_u32 v{t0}, v{g_}, 3, v{t0}")
    A(f"s_lshl_b32 s{T+17}, s{S_RANK}, 8")
    A(f"v_add_u32 v{QST}, s{T+17}, v{t0}")
    A(f"v_lshrrev_b32 v{t0}, 2, v{n_}")
    A(f"v_lshlrev_b32 v{t0}, 8, v{t0}")
    A(f"v_lshl_add_u32 v{t0}, v{g_}, 6, v{t0}")
    A(f"v_and_b32 v{t1}, 1, v{ln}")
    A(f"v_lshl_add_u32 v{t0}, v{t1}, 5, v{t0}")
    A(f"v_bfe_u32 v{t1}, v{ln}, 1, 1")
    A(f"v_lshl_add_u32 v{t0}, v{t1}, 4, v{t0}")
    A(f"v_add_u32 v{QLD}, s{T+16}, v{t0}")
    def base(dst, off_const, sreg=None, shift=0):
        A(f"s_add_u32 s{dst}, s{S_WS}, {off_const}")
        A(f"s_addc_u32 s{dst+1}, s{S_WS+1}, 0")
        if sreg is not None:
            A(f"s_lshl_b32 s{T+17}, s{sreg}, {shift}")
            A(f"s_add_u32 s{dst}, s{dst}, s{T+17}")
            A(f"s_addc_u32 s{dst+1}, s{dst+1}, 0")
    base(S_P0, P_OFF); base(S_P1, P_OFF + 0x20000)
    base(S_PL0, P_OFF, S_RANK, 13); base(S_PL1, P_OFF + 4096, S_RANK, 13)
    base(S_Q0, Q_OFF); base(S_Q1, Q_OFF + 4096)
    base(S_KX, REC_OFF + R_KX, S_RANK, 21); base(S_VX, REC_OFF + R_VX, S_RANK, 21)
    base(S_KM, REC_OFF + R_KM, S_RANK, 21); base(S_VM, REC_OFF + R_VM, S_RANK, 21)
    A(f"s_lshl_b32 s{T+18}, s{S_RANK}, 9")
    A(f"s_add_u32 s{T+18}, s{T+18}, s{S_WAVE}")
    base(S_KMF, KMFLAG, T + 18, 2)
    base(S_KVF, QKVFLAG, S_RANK, 10)
    A(f"s_lshl_b32 s{T+17}, s{S_WAVE}, 11")
    for b in (S_KX, S_VX):
        A(f"s_add_u32 s{b}, s{b}, s{T+17}"); A(f"s_addc_u32 s{b+1}, s{b+1}, 0")
    A(f"s_lshl_b32 s{T+17}, s{S_WAVE}, 10")
    A(f"s_add_u32 s{S_KM}, s{S_KM}, s{T+17}"); A(f"s_addc_u32 s{S_KM+1}, s{S_KM+1}, 0")
    A(f"v_add_u32 v{WL}, s{T+10}, v{L16}")
    A(f"v_lshlrev_b32 v{SPARE}, 1, v{L16}")
    A(f"v_add_u32 v{SPARE}, {2*REC_SZ}, v{SPARE}")
    A(f"v_and_b32 v{t0}, 7, v{ln}")
    for i in range(4):
        A(f"v_cmp_eq_u32 vcc, {2*i}, v{t0}")
        A(f"v_mov_b32 v{t1}, 0x3f80")
        A(f"v_cndmask_b32 v{RB+4+i}, 0, v{t1}, vcc")
        A(f"v_cmp_eq_u32 vcc, {2*i+1}, v{t0}")
        A(f"v_mov_b32 v{t1}, 0x3f800000")
        A(f"v_cndmask_b32 v{RB+4+i}, v{RB+4+i}, v{t1}, vcc")
    A(f"ds_write_b128 v{L16}, v[{RB+4}:{RB+7}] offset:{LDS_SEL}")
    A(f"s_lshl_b32 s{T+17}, s{S_WAVE}, 10")
    A(f"s_add_u32 s{S_VM}, s{S_VM}, s{T+17}"); A(f"s_addc_u32 s{S_VM+1}, s{S_VM+1}, 0")
    cval = np_f32_bits(128 ** -0.5 * math.log2(math.e))
    A(f"s_mov_b32 s{S_C}, {cval:#x}"); A(f"s_mov_b32 s{S_C+1}, {cval:#x}")
    A(f"s_mov_b32 s{S_QMASK}, 0x00ff00ff"); A(f"s_mov_b32 s{S_QMASK+1}, 0x00ff00ff")
    Z = RB
    for i in range(4): A(f"v_mov_b32 v{Z+i}, 0")
    CI = 8
    for i in range(16):
        A(f"s_waitcnt vmcnt({8 * (depth - 1)})")
        p = order[i]
        nt = 2 if p[0] == "v" else 4
        for t in range(nt): tr_octet(A, OCT[(p, t)], i % 4, (TRV if p[0] == "v" else TRA) + t)
        if depth == 4: A("s_waitcnt lgkmcnt(0)")
        else: A(f"s_waitcnt lgkmcnt({min(15, 4 * nt)})")
        if i == CI:
            if confirm: confirm()
            A(f"global_store_dwordx4 v{MEMW}, v[{Z}:{Z+3}], s[{S_PL0}:{S_PL0+1}]")
            A(f"global_store_dwordx4 v{MEMW}, v[{Z}:{Z+3}], s[{S_PL1}:{S_PL1+1}]")
            A(f"global_store_dwordx2 v{QST}, v[{Z}:{Z+1}], s[{S_Q0}:{S_Q0+1}]")
        dma_piece(order[i + depth], (i + depth) % 4)
        if i == CI + depth:
            A(f"s_lshl_b32 s{T+17}, s{S_RANK}, 4"); A(f"s_lshl_b32 s{T+18}, s{S_WAVE}, 2"); A(f"s_add_u32 s{T+17}, s{T+17}, s{T+18}"); A(f"s_add_u32 s{T+17}, s{T+17}, {TINITF}")
            A(f"v_mov_b32 v{t1}, s{T+17}")
            set_flag(A, S_WS, 0, t1, t0, wait="s_nop 0")
    for i in range(4):
        A(f"s_waitcnt vmcnt({8*min(depth-1, 3-i)})")
        for t in range(4): tr_octet(A, ("v", RB + 8 * t), i, TRA + t)
        if 16 + i + depth < 20:
            A("s_waitcnt lgkmcnt(15)")
            dma_piece(order[16 + i + depth], (i + depth) % 4)
        A("s_waitcnt lgkmcnt(0)")
        for r in range(8): A(f"ds_write_b128 v{WL}, v[{RB+4*r}:{RB+4*r+3}] offset:{i*8192 + r*1024}")
    if stampw: stampw(1)
    if early_l: A(f"s_branch {early_l}")
    if not standalone:
        A(f"v_lshrrev_b32 v{t1}, 2, v{ln}"); A(f"v_lshlrev_b32 v{t1}, 8, v{t1}"); A(f"v_and_b32 v{t2}, 3, v{ln}"); A(f"v_lshl_add_u32 v{t1}, v{t2}, 2, v{t1}")
        wait_flags(A, S_KVF, t1, 8, fail_label, t0, sleep=0)
    A(f"s_lshl_b32 s{T+17}, s{S_WAVE}, 11")
    A(f"s_add_u32 s{S_KXB}, s{T+17}, {LDS_KX}")
    A(f"s_mov_b32 m0, s{S_KXB}")
    A("s_nop 0")
    A(f"global_load_lds_dwordx4 v{L16}, s[{S_KX}:{S_KX+1}] sc1")
    A(f"global_load_lds_dwordx4 v{L16}, s[{S_KX}:{S_KX+1}] offset:1024 sc1")
    A(f"global_load_dwordx4 v[{RF}:{RF+3}], v{L16}, s[{S_VX}:{S_VX+1}] sc1")
    A(f"global_load_dwordx4 v[{RF+4}:{RF+7}], v{L16}, s[{S_VX}:{S_VX+1}] offset:1024 sc1")
    A(f"global_load_dwordx4 v[{RC}:{RC+3}], v{M0A}, s[{T+8}:{T+9}]")
    A(f"global_load_dwordx4 v[{RC+4}:{RC+7}], v{M0A}, s[{T+8}:{T+9}] offset:512")
    A(f"v_lshrrev_b32 v{t1}, 2, v{L16}"); A(f"v_add_u32 v{t1}, {TINITF}, v{t1}")
    wait_flags(A, S_WS, t1, 64, fail_label, t0)
    A(f"v_add_u32 v{t1}, 256, v{t1}")
    wait_flags(A, S_WS, t1, 64, fail_label, t0)
    A("s_waitcnt vmcnt(0) lgkmcnt(0)")
    for i in range(4):
        A(f"v_mov_b32 v{RA+i}, v{RC+i}"); A(f"v_mov_b32 v{RA+16+i}, v{RC+4+i}")
    A(f"s_mov_b32 s{S_STEP}, 0")
    A(f"s_mov_b32 s{S_SPIN}, 0")
    A(f"s_mov_b32 s{S_TAG}, 0")
    A(f"s_mov_b32 s{S_CKM}, 0"); A(f"s_mov_b64 s[{S_BM}:{S_BM+1}], 0")
    A(f"s_mov_b32 s{S_KXR}, {LDS_KX}"); A(f"s_lshr_b32 s{S_MR1}, s{T+13}, 9")
    A(f"s_mov_b32 s{S_VMI}, 0")
    def wl(dst, p, t, r):
        return f"ds_read_b128 v[{dst+4*r}:{dst+4*r+3}], v{WL} offset:{LSLOT[p]*8192 + t*2048 + r*1024}"
    def wl2(dst, p, t): return [wl(dst, p, t, 0), wl(dst, p, t, 1)]
    def prefetch_qk():
        for d, p, t in ((RB, ("m", 1), 0), (RB + 8, ("m", 1), 1), (RB + 16, ("m", 2), 0), (RB + 24, ("m", 2), 1), (RE + 8, ("m", 1), 2), (RE, ("m", 1), 3)):
            for x in wl2(d, p, t): A(x)
    def zero_acc():
        for i in range(0, 16, 2): A(f"v_mov_b64 v[{RC+i}:{RC+i+1}], 0")
        for i in range(0, 8, 2): A(f"v_mov_b64 v[{RD+i}:{RD+i+1}], 0")
    prefetch_qk(); zero_acc()
    if stampw: A("s_waitcnt lgkmcnt(0)"); stampw(2)
    if timing:
        A(f"s_memtime s[{S_T0}:{S_T0+1}]"); A("s_waitcnt lgkmcnt(0)")
        for k in range(NST): A(f"s_mov_b32 s{80+k}, 0"); A(f"s_mov_b64 s[{64+2*k}:{65+2*k}], s[{S_T0}:{S_T0+1}]")
        A("s_mov_b32 s88, 0")
    A("s_barrier")
    LOOP = A.newlabel("Lteam"); FIN = A.newlabel("Lfin")
    ENTER = A.newlabel("Lent"); RETRY = A.newlabel("Lretry")
    CK, CK2 = RA + 12, RA + 13
    VP = RF
    A(f"s_branch {ENTER}")
    A.label(RETRY)
    A("s_nop 5")
    for r in (RC, RC + 2, RC + 4, RC + 6): A(f"v_mov_b64 v[{r}:{r+1}], 0")
    A(f"s_add_u32 s{S_SPIN}, s{S_SPIN}, 1"); A(f"s_cmp_gt_u32 s{S_SPIN}, 200000"); A(f"s_cbranch_scc1 {fail_label}")
    A.raw(".p2align 3")
    A.label(LOOP)
    A(f"global_load_dwordx4 v[{RA}:{RA+3}], v{QLD}, s[{S_Q0}:{S_Q0+1}] sc1")
    if bwith: A(f"global_load_dwordx4 v[{RA+16}:{RA+19}], v{QLD}, s[{S_Q1}:{S_Q1+1}] sc1")
    A(f"s_waitcnt vmcnt({qdepth-1+bwith})")
    A.label(ENTER)
    def wsrc(mat, slot, t):
        p = (mat, slot)
        if p in LSLOT:
            m = {(1, 0): RB, (1, 1): RB + 8, (2, 0): RB + 16, (2, 1): RB + 24, (1, 2): RE + 8, (1, 3): RE, (2, 2): RB, (2, 3): RB + 8}
            return v(m[(slot, t)], 8)
        pre, b = OCT[(p, t)]
        return rng(pre, b, 8)
    def smf(acc, slot, src):
        A(f"v_smfmac_f32_16x16x64_bf16 v[{acc}:{acc+3}], v[{RA+4*slot}:{RA+4*slot+3}], {src}, v{IDX}")
    def qk(t, slot, *extra):
        smf(RC + 4 * t, slot, wsrc("m", slot, t))
        for x in extra: A(x)
    vlist = [(sl, t) for sl in (0, 4, 1, 2, 3, 5, 6, 7) for t in range(2)]
    def vv(n, *extra):
        ex = list(extra)
        for _ in range(n):
            sl, t = vlist.pop(0)
            smf(RD + 4 * t, sl, wsrc("v", sl, t))
            if ex: A(ex.pop(0))
        for x in ex: A(x)
    def mr(i): return f"ds_read_b128 v[{RA+4*i}:{RA+4*i+3}], v{MR1+(i&3)-1} offset:{LDS_MEM + (i>>2)*4096}"
    def add(d, x, y): return f"v_add_f32 v{d}, v{x}, v{y}"
    def cvt(d, x): return f"v_cvt_pk_bf16_f32 v{d}, v{x}, v{x+1}"
    A(f"v_bitop3_b32 v{CK}, v{RA}, v{RA+2}, s{S_TAG} bitop3:0x7e")
    A(f"ds_write_b128 v{MEMW}, v[{RA}:{RA+3}] offset:{LDS_MEM}")
    qk(0, 0, f"v_and_b32 v{CK}, s{S_CKM}, v{CK}", f"v_cmp_ne_u32 vcc, 0, v{CK}")
    qk(1, 0, f"s_cbranch_vccnz {RETRY}")
    if timing == 2: A('s_memtime s[90:91]')
    if timing: A(f"s_lshl_b32 s96, s{S_SPIN}, 16"); A("s_add_u32 s80, s80, s96")
    A("s_waitcnt lgkmcnt(0)")
    accum()
    A("s_barrier")
    bl = f"global_load_dwordx4 v[{RA+16}:{RA+19}], v{QLD}, s[{S_Q1}:{S_Q1+1}] sc1"
    blm = f"s_mov_b64 exec, s[{S_BM}:{S_BM+1}]\n{bl}\ns_mov_b64 exec, -1"
    A(mr(1))
    if -1 in bpos: A(blm)
    qk(2, 0, mr(2)); qk(3, 0, mr(3))
    vv(2, f"s_add_u32 s{S_KX}, s{S_KX}, {REC_SZ}\ns_addc_u32 s{S_KX+1}, s{S_KX+1}, 0", "s_waitcnt lgkmcnt(2)")
    seqA = [(0, 1, [wl(RB, ("m", 2), 2, 0)]), (1, 1, [wl(RB, ("m", 2), 2, 1)]), (2, 1, [wl(RB + 8, ("m", 2), 3, 0)]), (3, 1, [wl(RB + 8, ("m", 2), 3, 1), "s_waitcnt lgkmcnt(5)"]),
            (0, 2, []), (1, 2, ["s_waitcnt lgkmcnt(4)"]), (0, 3, []), (1, 3, []), (2, 3, []), (3, 3, ["s_waitcnt lgkmcnt(0)"]), (2, 2, []), (3, 2, [])]
    for k, (t, sl, ex) in enumerate(seqA):
        qk(t, sl, *(ex + ([blm] if k in bpos else [])))
    CB = RA + 28
    RETB = A.newlabel("Lretb"); OKB = A.newlabel("Lokb")
    A(f"s_waitcnt vmcnt({bwait})")
    A.label(RETB)
    A(f"v_bitop3_b32 v{CB}, v{RA+16}, v{RA+18}, s{S_TAG} bitop3:0x7e")
    A(f"ds_write_b128 v{MEMW}, v[{RA+16}:{RA+19}] offset:{LDS_MEM + 4096}")
    A(f"v_and_b32 v{CB}, s{S_CKM}, v{CB}")
    A(f"v_cmp_ne_u32 vcc, 0, v{CB}")
    A(f"s_cbranch_vccz {OKB}")
    A(bl)
    if timing: A("s_add_u32 s80, s80, 0x100")
    A(f"s_add_u32 s{S_SPIN}, s{S_SPIN}, 1"); A(f"s_cmp_gt_u32 s{S_SPIN}, 200000"); A(f"s_cbranch_scc1 {fail_label}")
    A("s_waitcnt vmcnt(1)")
    A(f"s_branch {RETB}")
    A.label(OKB)
    qk(0, 4, f"s_xor_b32 s{S_TAG}, s{S_TAG}, 1", f"s_mov_b32 s{S_CKM}, 1", f"s_mov_b64 s[{S_BM}:{S_BM+1}], -1")
    qk(1, 4, "s_waitcnt lgkmcnt(0)")
    A("s_barrier")
    A(mr(5))
    qk(2, 4, mr(6), f"v_add_u32 v{MR1}, s{S_KXR}, v{L16}"); qk(3, 4, mr(7), f"s_xor_b32 m0, s{S_KXB}, 0x6000")
    KXA = MR1
    def kx(i): return f"ds_read_b128 v[{RB+4*i}:{RB+4*i+3}], v{KXA} offset:{i*1024}"
    kvops = [f"global_load_lds_dwordx4 v{L16}, s[{S_KX}:{S_KX+1}] sc1", f"global_load_lds_dwordx4 v{L16}, s[{S_KX}:{S_KX+1}] offset:1024 sc1",
             f"s_mov_b32 m0, {LDS_MISC + 64}\ns_nop 0\nglobal_load_lds_dword v{SPARE}, s[{S_VX}:{S_VX+1}] sc1"]
    vv(2, kvops[0], kvops[1] + "\ns_waitcnt lgkmcnt(2)")
    PK = RE
    qk(0, 5, kx(0)); qk(1, 5, kx(1), "s_waitcnt lgkmcnt(3)")
    qk(0, 6, kx(2)); qk(1, 6, kx(3), "s_waitcnt lgkmcnt(4)")
    qk(0, 7, kx(4)); qk(1, 7, kx(5))
    qk(2, 5, kvops[2]); qk(3, 5, kx(6), f"s_add_u32 s{S_VX}, s{S_VX}, {REC_SZ}", f"s_addc_u32 s{S_VX+1}, s{S_VX+1}, 0")
    qk(2, 6, kx(7), add(RC, RC, RC + 2))
    qk(3, 6, add(RC + 1, RC + 1, RC + 3), add(RC + 4, RC + 4, RC + 6))
    qk(2, 7, add(RC + 5, RC + 5, RC + 7), cvt(PK, RC))
    qk(3, 7, cvt(PK + 1, RC + 4), f"ds_write2st64_b32 v{XW}, v{PK}, v{PK+1} offset0:0 offset1:2")
    vv(vsplit[0])
    A(add(RC + 8, RC + 8, RC + 10)); A(add(RC + 9, RC + 9, RC + 11))
    A(add(RC + 12, RC + 12, RC + 14)); A(add(RC + 13, RC + 13, RC + 15))
    A(cvt(PK + 2, RC + 8)); A(cvt(PK + 3, RC + 12))
    A(f"ds_write2st64_b32 v{XW}, v{PK+2}, v{PK+3} offset0:4 offset1:6")
    ex = [f"global_store_dwordx4 v{L16}, v[{PK}:{PK+3}], s[{S_KM}:{S_KM+1}] sc1"]
    vv(vsplit[1], *ex)
    stamp(1)
    A("s_waitcnt lgkmcnt(0)")
    A("s_barrier")
    xr = []
    for kb in range(4):
        xr.append(f"ds_read_b64_tr_b16 v[{RE+4*kb}:{RE+4*kb+1}], v{XR0} offset:{kb*1024}")
        xr.append(f"ds_read_b64_tr_b16 v[{RE+4*kb+2}:{RE+4*kb+3}], v{XR1} offset:{kb*1024}")
    for x in xr: A(x)
    ex = []
    if not (nopub & 2): ex += [f"v_mov_b32 v{RC+15}, s{S_NONCE}", f"s_mov_b64 exec, 1\nglobal_store_dword v{L16}, v{RC+15}, s[{S_KMF}:{S_KMF+1}] sc1\ns_mov_b64 exec, -1"]
    vv(vsplit[2], *ex)
    A(f"s_cmp_eq_u32 s{S_STEP}, {nsteps-1}"); A(f"s_cbranch_scc1 {FIN}")
    vrest = list(vlist)
    S0, S1, S2 = RC, RC + 4, RC + 8
    def mf(d, a_, b_, first, *extra):
        A(f"v_mfma_f32_16x16x32_bf16 v[{d}:{d+3}], v[{a_}:{a_+3}], v[{b_}:{b_+3}], " + ("0" if first else f"v[{d}:{d+3}]"))
        for x in extra: A(x)
    for kb in range(4):
        A(f"s_waitcnt lgkmcnt({6-2*kb})")
        mf(S0, RE + 4 * kb, RE + 4 * kb, kb == 0)
    for kb in range(4): mf(S1, RB + 4 * kb, RE + 4 * kb, kb == 0)
    M_, T_, R_ = RC + 12, RC + 13, RC + 14
    ONES, SUM = RB, RB + 4
    def z2(r): return f"v_mov_b64 v[{r}:{r+1}], 0"
    g2 = [[f"v_mov_b32 v{ONES}, 0x3f803f80", f"v_mov_b32 v{ONES+1}, 0x3f803f80"], [f"v_mov_b32 v{ONES+2}, 0x3f803f80", f"v_mov_b32 v{ONES+3}, 0x3f803f80"],
          [z2(RB + 8), z2(RB + 10)], [z2(RB + 12), f"v_max3_f32 v{M_}, v{S0}, v{S0+1}, v{S1}"]]
    for kb in range(4): mf(S2, RB + 16 + 4 * kb, RE + 4 * kb, kb == 0, *g2[kb])
    stamp(2)
    vv(vsplit[3], f"v_max3_f32 v{M_}, v{M_}, v{S1+1}, v{S1+2}", z2(RB + 14), z2(RB + 16), z2(RB + 18))
    assert not vlist
    A(f"v_max3_f32 v{M_}, v{M_}, v{S1+3}, v{S2}")
    A(f"v_max3_f32 v{M_}, v{M_}, v{S2+1}, v{S2+2}")
    A(f"v_max_f32 v{T_}, v{M_}, v{S2+3}")
    A(f"v_max_f32 v{M_}, v{M_}, v{S2+3}")
    A(wl(RA, ("o", 1, 0), 0, 0)); A(wl(RA, ("o", 1, 0), 0, 1))
    A(f"v_permlane32_swap_b32 v{M_}, v{T_}")
    A(f"v_max_f32 v{R_}, v{M_}, v{T_}")
    A(f"v_max_f32 v{M_}, v{M_}, v{T_}")
    A(cvt(RD, RD)); A(cvt(RD + 1, RD + 2))
    A(f"v_permlane16_swap_b32 v{M_}, v{R_}")
    A(f"v_max_f32 v{M_}, v{M_}, v{R_}")
    A(f"v_mul_f32 v{M_}, s{S_C}, v{M_}")
    for r in (S1, S1 + 2, S2, S2 + 2, S0):
        A(f"v_pk_fma_f32 v[{r}:{r+1}], v[{r}:{r+1}], s[{S_C}:{S_C+1}], v[{M_}:{M_+1}] op_sel_hi:[1,0,0] neg_lo:[0,0,1] neg_hi:[0,0,1]")
    PX, PM = RE, RE + 4
    o10 = lambda t, r: wl(RA + 8 * t, ("o", 1, 0), t, r)
    early = [o10(1, 0), o10(1, 1), o10(2, 0), o10(2, 1), o10(3, 0), o10(3, 1)] if pfe else []
    for r in (S1, S1 + 1, S1 + 2, S1 + 3, S2, S2 + 1, S2 + 2, S2 + 3):
        A(f"v_exp_f32 v{r}, v{r}")
        if early: A(early.pop(0))
    if pfe: o10 = lambda t, r: "; -"
    A(cvt(PX, S1)); A(cvt(PX + 1, S1 + 2)); A(cvt(PX + 2, S2)); A(cvt(PX + 3, S2 + 2))
    OA = RE + 8
    A(f"v_exp_f32 v{S0}, v{S0}")
    A(f"v_exp_f32 v{S0+1}, v{S0+1}")
    mf(SUM, ONES, PX, True, cvt(RD + 2, RD + 4), cvt(PM, S0), o10(1, 0))
    mf(OA, RF, PX, True, cvt(PM + 1, S0), f"v_mov_b32 v{ONES+1}, 0", o10(1, 1))
    mf(OA + 4, RF + 4, PX, True, cvt(RD + 3, RD + 6), o10(2, 0))
    def mf16(d, a_, *extra):
        A(f"v_mfma_f32_16x16x16_bf16 v[{d}:{d+3}], v[{a_}:{a_+1}], v[{PM}:{PM+1}], v[{d}:{d+3}]")
        for x in extra: A(x)
    mf16(SUM, ONES, o10(2, 1), z2(RB + 20))
    mf16(OA, RD, wl(RC, ("o", 1, 1), 2, 0), z2(RB + 22))
    mf16(OA + 4, RD + 2, wl(RC, ("o", 1, 1), 2, 1))
    if not (nopub & 1): A(f"global_store_dwordx4 v{L16}, v[{RD}:{RD+3}], s[{S_VM}:{S_VM+1}] sc1")
    A(o10(3, 0)); A(o10(3, 1))
    A(f"v_rcp_f32 v{SUM}, v{SUM}")
    if not nokv:
        A(f"global_load_dwordx4 v[{RF}:{RF+3}], v{L16}, s[{S_VX}:{S_VX+1}] sc1")
        A(f"global_load_dwordx4 v[{RF+4}:{RF+7}], v{L16}, s[{S_VX}:{S_VX+1}] offset:1024 sc1")
    for i in range(0, 4, 2):
        A(f"v_pk_mul_f32 v[{OA+i}:{OA+i+1}], v[{OA+i}:{OA+i+1}], v[{SUM}:{SUM+1}] op_sel_hi:[1,0]")
    A(cvt(OA, OA)); A(cvt(OA + 1, OA + 2))
    A(f"ds_write_b64 v{OW}, v[{OA}:{OA+1}]")
    for i in range(4, 8, 2):
        A(f"v_pk_mul_f32 v[{OA+i}:{OA+i+1}], v[{OA+i}:{OA+i+1}], v[{SUM}:{SUM+1}] op_sel_hi:[1,0]")
    A(cvt(OA + 2, OA + 4)); A(cvt(OA + 3, OA + 6))
    A(f"ds_write_b64 v{OW}, v[{OA+2}:{OA+3}] offset:32")
    stamp(3)
    for r in (RB, RB + 2, RB + 4, RB + 6): A(z2(r))
    A("s_waitcnt lgkmcnt(0)")
    A("s_barrier")
    OP = RE
    A(f"ds_read_b128 v[{OP}:{OP+3}], v{OR_}")
    A(f"ds_read_b128 v[{OP+4}:{OP+7}], v{OR_} offset:128")
    for i in range(24, 32, 2): A(f"v_mov_b64 v[{RB+i}:{RB+i+1}], 0")
    def osrc(u, j, i):
        p = ("o", u, j)
        if p in LSLOT:
            m = {(0, 0): RA, (0, 1): RA + 8, (0, 2): RA + 16, (0, 3): RA + 24, (1, 2): RC, (1, 3): RC + 8, (1, 0): RD, (1, 1): RA + 16}
            return v(m[(j, i)], 8)
        pre, b = OCT[(p, i)]
        return rng(pre, b, 8)
    def wo(u, j, i, *extra):
        acc = RB + 16 * u + 4 * i
        A(f"v_smfmac_f32_16x16x64_bf16 v[{acc}:{acc+3}], v[{OP+4*j}:{OP+4*j+3}], {osrc(u, j, i)}, v{IDX}")
        for x in extra: A(x)
    PS = RE + 8
    def f0(u, i): acc = RB + 16 * u + 4 * i; return add(acc, acc, acc + 2)
    def f1(u, i): acc = RB + 16 * u + 4 * i; return add(acc + 1, acc + 1, acc + 3)
    def pack(u, i): return cvt(PS + 4 * u + i, RB + 16 * u + 4 * i)
    tag0 = f"v_and_or_b32 v{PS}, v{PS}, -2, s{S_TAG}"; tag1 = f"v_and_or_b32 v{PS+4}, v{PS+4}, -2, s{S_TAG}"
    st0 = f"global_store_dwordx4 v{PST}, v[{PS}:{PS+3}], s[{S_P0}:{S_P0+1}]"; st1 = f"global_store_dwordx4 v{PST}, v[{PS+4}:{PS+7}], s[{S_P1}:{S_P1+1}]"
    o11 = lambda d, t, r: wl(d, ("o", 1, 1), t, r)
    A("s_waitcnt lgkmcnt(1)")
    wo(0, 0, 0, "s_waitcnt lgkmcnt(0)"); wo(0, 1, 0, o11(RC + 8, 3, 0)); wo(0, 0, 1, o11(RC + 8, 3, 1)); wo(0, 1, 1, o11(RD, 0, 0)); wo(0, 0, 2, o11(RD, 0, 1)); wo(0, 1, 2)
    wo(0, 0, 3, f0(0, 0), f1(0, 0)); wo(0, 1, 3, pack(0, 0), f0(0, 1))
    wo(1, 0, 2, f1(0, 1), o11(RA + 16, 1, 0), pack(0, 1)); wo(1, 1, 2, f0(0, 2), o11(RA + 16, 1, 1), f1(0, 2))
    wo(1, 0, 3, pack(0, 2), f0(0, 3), "s_waitcnt lgkmcnt(2)"); wo(1, 1, 3, f1(0, 3), tag0)
    wo(1, 0, 0, pack(0, 3), st0); wo(1, 1, 0, f0(1, 2), f1(1, 2))
    wo(1, 0, 1, f0(1, 3), f1(1, 3), "s_waitcnt lgkmcnt(0)"); wo(1, 1, 1, pack(1, 2), pack(1, 3))
    for x in (f0(1, 0), f1(1, 0), pack(1, 0), tag1, f0(1, 1), f1(1, 1), pack(1, 1)): A(x)
    A(st1)
    stamp(4)
    NOTRED = A.newlabel("Lnr")
    A(f"s_cmp_lg_u32 s{S_WAVE}, 0"); A(f"s_cbranch_scc1 {NOTRED}")
    SEL, DR = RA + 4, RA + 8
    A(f"ds_read_b128 v[{SEL}:{SEL+3}], v{L16} offset:{LDS_SEL}")
    def rdelay(na, nb):
        lo, hi = min(na, nb), max(na, nb)
        for i in range(lo): A("s_nop 7")
        if hi > lo:
            L = A.newlabel("Lrd")
            A(f"s_cmp_lt_u32 s{S_RANK}, 16"); A(f"s_cbranch_scc{1 if na < nb else 0} {L}")
            for i in range(hi - lo): A("s_nop 7")
            A.label(L)
    rdelay(d1 - dA, d1)
    A(f"s_mov_b32 s{S_SPIN}, 0")
    def ploads():
        for u in range(8):
            b = S_PL0 if u < 4 else S_PL1
            A(f"global_load_dwordx4 v[{RB+4*u}:{RB+4*u+3}], v{L16}, s[{b}:{b+1}] offset:{(u%4)*1024} sc1")
    for _ in range(pdepth - 1): ploads()
    PP = A.newlabel("Lp")
    A.label(PP)
    stamp(5)
    ploads()
    A(f"s_add_u32 s{S_SPIN}, s{S_SPIN}, 1"); A(f"s_cmp_gt_u32 s{S_SPIN}, 200000"); A(f"s_cbranch_scc1 {fail_label}")
    A("s_waitcnt lgkmcnt(0)")
    for u in range(0, 8, 2):
        A(f"s_waitcnt vmcnt({8*pdepth-2-u})")
        A(f"v_bitop3_b32 v{CK2 if u > 1 else CK}, v{RB+4*u}, v{RB+4*u+4}, s{S_TAG} bitop3:0x7e")
        mf(DR, RB + 4 * u, SEL, u == 0)
        if u > 1: A(f"v_or_b32 v{CK}, v{CK}, v{CK2}")
        mf(DR, RB + 4 * u + 4, SEL, False)
    A(f"v_and_b32 v{CK}, 1, v{CK}")
    A(f"v_cmp_ne_u32 vcc, 0, v{CK}")
    A(f"s_cbranch_vccnz {PP}")
    if timing: A(f"s_add_u32 s80, s80, s{S_SPIN}")
    A(cvt(DR, DR)); A(cvt(DR + 1, DR + 2))
    A(f"v_and_or_b32 v{DR}, v{DR}, -2, s{S_TAG}")
    if qmask: A(f"s_mov_b64 exec, s[{S_QMASK}:{S_QMASK+1}]")
    A(f"global_store_dwordx2 v{QST}, v[{DR}:{DR+1}], s[{S_Q0}:{S_Q0+1}]")
    if qmask: A("s_mov_b64 exec, -1")
    def earlyflag(wait):
        L = A.newlabel("Lef")
        A(f"s_cmp_lg_u32 s{S_STEP}, {nsteps-2}"); A(f"s_cbranch_scc1 {L}")
        set_flag(A, S_KMF, 16, L16, RA + 12, wait=wait)
        A.label(L)
    earlyflag("s_nop 0")
    stamp(6)
    A("s_barrier")
    def tailwork():
        prefetch_qk()
        zero_acc()
        A(f"s_xor_b32 s{S_KXB}, s{S_KXB}, 0x6000"); A(f"s_xor_b32 s{S_KXR}, s{S_KXR}, 0x6000")
        A(f"v_add_u32 v{MR1}, s{S_MR1}, v{L16}")
        A(f"s_add_u32 s{S_STEP}, s{S_STEP}, 1")
        A(f"s_add_u32 s{S_KM}, s{S_KM}, {REC_SZ}"); A(f"s_addc_u32 s{S_KM+1}, s{S_KM+1}, 0")
        A(f"s_add_u32 s{S_KMF}, s{S_KMF}, 16"); A(f"s_addc_u32 s{S_KMF+1}, s{S_KMF+1}, 0")
        A(f"s_add_u32 s{S_VM}, s{S_VM}, {REC_SZ}"); A(f"s_addc_u32 s{S_VM+1}, s{S_VM+1}, 0")
        A(f"s_mov_b32 s{S_SPIN}, 0")
    def qpre():
        for _ in range(qdepth - 1):
            A(f"global_load_dwordx4 v[{RA}:{RA+3}], v{QLD}, s[{S_Q0}:{S_Q0+1}] sc1")
            for _ in range(qgap): A("s_nop 7")
    if pdepth > 1: A("s_waitcnt vmcnt(1)")
    tailwork()
    rdelay(d3, max(0, d3 - dA))
    stamp(7)
    qpre()
    A(f"s_branch {LOOP}")
    A.label(NOTRED)
    stamp(5)
    earlyflag("s_waitcnt vmcnt(2)")
    tailwork()
    if stampw:
        LS = A.newlabel("Lss")
        A(f"s_cmp_lg_u32 s{S_RANK}, 0"); A(f"s_cbranch_scc1 {LS}"); A(f"s_cmp_lg_u32 s{S_WAVE}, 1"); A(f"s_cbranch_scc1 {LS}")
        A("s_memrealtime s[92:93]"); A("s_memtime s[94:95]"); A("s_waitcnt lgkmcnt(0)")
        A(f"s_lshl_b32 s93, s{S_STEP}, 3"); A(f"s_add_u32 s93, s93, {TST_OFF + 0x4000}")
        A(f"v_mov_b32 v{RA+4}, s92"); A(f"v_mov_b32 v{RA+5}, s94"); A(f"v_mov_b32 v{RA+6}, s93"); A("s_mov_b64 exec, 1")
        A(f"global_store_dwordx2 v{RA+6}, v[{RA+4}:{RA+5}], s[{S_WS}:{S_WS+1}]"); A("s_mov_b64 exec, -1")
        A.label(LS)
    if not standalone:
        A(f"s_add_u32 s{T}, s{S_STEP}, 2"); A(f"s_min_u32 s{T}, s{T}, 63"); A(f"s_lshl_b32 s{T}, s{T}, 2")
        A(f"v_lshlrev_b32 v{RA+4}, 4, v{L16}"); A(f"v_add_u32 v{RA+4}, s{T}, v{RA+4}")
        wait_flags(A, S_KVF, RA + 4, 2, fail_label, RA + 5)
        A(f"s_mov_b32 s{S_SPIN}, 0")
    A("s_barrier")
    stamp(6)
    rdelay(d2, max(0, d2 - dA))
    stamp(7)
    qpre()
    A(f"s_branch {LOOP}")
    A.label(FIN)
    vlist.extend(vrest); vv(len(vrest))
    A("s_nop 7")
    for x in (cvt(RD, RD), cvt(RD + 1, RD + 2), cvt(RD + 2, RD + 4), cvt(RD + 3, RD + 6)): A(x)
    A(f"global_store_dwordx4 v{L16}, v[{RD}:{RD+3}], s[{S_VM}:{S_VM+1}] sc1")
    A("s_waitcnt vmcnt(0)")
    A("s_mov_b64 exec, 1")
    A(f"v_mov_b32 v{RC+15}, s{S_NONCE}")
    A(f"global_store_dword v{L16}, v{RC+15}, s[{S_KMF}:{S_KMF+1}] offset:16 sc1")
    A("s_mov_b64 exec, -1")
    if timing:
        A(f"s_memtime s[{T}:{T+1}]"); A("s_waitcnt lgkmcnt(0)")
        A(f"s_sub_u32 s{T}, s{T}, s{S_T0}")
        A(f"s_mov_b32 s89, s{T}")
        A("s_mov_b64 exec, 1")
        LT = A.newlabel("Lt")
        A(f"s_cmp_lg_u32 s{S_RANK}, 5"); A(f"s_cbranch_scc1 {LT}")
        for k in range(12): A(f"v_mov_b32 v{RB+k}, s{80+k}")
        A(f"s_lshl_b32 s{T+2}, s{S_WAVE}, 6")
        A(f"s_add_u32 s{T+2}, s{T+2}, {TST_OFF + tslot*256}")
        A(f"v_mov_b32 v{RD+1}, s{T+2}")
        A(f"global_store_dwordx4 v{RD+1}, v[{RB}:{RB+3}], s[{S_WS}:{S_WS+1}]")
        A(f"global_store_dwordx4 v{RD+1}, v[{RB+4}:{RB+7}], s[{S_WS}:{S_WS+1}] offset:16")
        A(f"global_store_dwordx4 v{RD+1}, v[{RB+8}:{RB+11}], s[{S_WS}:{S_WS+1}] offset:32")
        A.label(LT)
        A("s_mov_b64 exec, -1")
    A("s_waitcnt vmcnt(0)")
    A(f"s_branch {done_label}")

def np_f32_bits(x):
    import struct
    return struct.unpack("<I", struct.pack("<f", x))[0]

def gen_wait_flag(A, sbase, off, expect, fail_label, t0, t1):
    L = A.newlabel("Lw")
    A(f"s_mov_b32 s{S_SPIN}, 0")
    A(f"v_mov_b32 v{t1}, {off}")
    A.label(L)
    A(f"global_load_dword v{t0}, v{t1}, s[{sbase}:{sbase+1}] sc1")
    A(f"s_add_u32 s{S_SPIN}, s{S_SPIN}, 1"); A(f"s_cmp_gt_u32 s{S_SPIN}, 400000"); A(f"s_cbranch_scc1 {fail_label}")
    A("s_waitcnt vmcnt(0)")
    A(f"v_cmp_gt_u32 vcc, {expect}, v{t0}") if expect <= 64 else (A(f"v_cmp_gt_u32 vcc, {expect:#x}, v{t0}"))
    A(f"s_cbranch_vccnz {L}")
```

```python
import sys
from asm import *
from layout import *
from team import gen_team, S_WS, S_DBG, S_RANK, S_WAVE, S_T, S_SPIN
from common import *
from pre import gen_mod, gen_ln1
from flags import wait_flags
from qkv import gen_qkv_setup, gen_unit
from attn import gen_attn
from rz import gen_red, gen_z
from go import gen_g, gen_o, gen_o_weights
NAME = "adaLN_cond__memory_aug_recurrent_mem_tr__mixer_gmlp__prompt_kernel"
def build(timing=0, stamps=False, depth=3, wnt='', tail=False, diag=None, hold=4, tk={}, linger=0):
    A = Asm()
    F, D = "Lfail", "Ldone"
    T = S_T
    S_W, S_B, S_NEXT = 96, 3, 94
    def stampw(k, r=254):
        if stamps:
            L = A.newlabel("Lst")
            A(f"s_cmp_lg_u32 s{S_WAVE}, 0"); A(f"s_cbranch_scc1 {L}")
            A("s_memrealtime s[92:93]"); A("s_waitcnt lgkmcnt(0)")
            A(f"s_lshl_b32 s93, s{S_WIDX}, 5"); A(f"s_add_u32 s93, s93, {TST_OFF + 4*k}")
            A(f"v_mov_b32 v{r}, s92"); A(f"v_mov_b32 v{r+1}, s93"); A("s_mov_b64 exec, 1")
            A(f"global_store_dword v{r+1}, v{r}, s[{S_WS}:{S_WS+1}]"); A("s_mov_b64 exec, -1")
            A.label(L)
    gen_entry(A, 256, D)
    if stamps: A("s_memrealtime s[90:91]"); A("s_waitcnt lgkmcnt(0)"); A("s_mov_b32 s101, s90")
    gen_register(A)
    A.label("Lstart")
    restore_tid(A)
    def conf(tv, lf=0x27FF0):
        def f():
            gen_confirm(A, "Lstart", F, tv, lf); stampw(5, tv)
        return f
    A(f"s_cmp_ge_u32 s{S_WIDX}, 32"); A("s_cbranch_scc1 Lworker")
    A(f"s_mov_b32 s{S_RANK}, s{S_WIDX}")
    gen_team(A, F, "Lteamdone", standalone=False, tslot=96, **{**dict(d1=11, d2=4, d3=0, dA=3, qdepth=3, qgap=2), **tk}, confirm=conf(56, 0x7A00), depth=depth, wnt=wnt, timing=timing, early_l=('Lend' if diag == 'teamonly' else None), stampw=(lambda k: stampw(k, 20)) if stamps else None)
    A.label("Lteamdone")
    restore_tid(A)
    stampw(3)
    if diag == "exit": A(f"s_branch Lend")
    A("s_branch Lidle" if linger & 1 else "s_branch Lend")
    A.label("Lworker")
    if diag == "teamonly": A(f"s_branch Lend")
    A(f"s_sub_u32 s{S_W}, s{S_WIDX}, 32")
    S_R, S_N = 95, 94
    A(f"s_mul_i32 s{T}, s{S_W}, 9363"); A(f"s_lshr_b32 s{T}, s{T}, 16")
    A(f"s_mul_i32 s{T+1}, s{T}, 7"); A(f"s_sub_u32 s{T+1}, s{S_W}, s{T+1}"); A(f"s_lshl_b32 s{T+1}, s{T+1}, 5"); A(f"s_add_u32 s{T}, s{T}, s{T+1}")
    A(f"s_mul_i32 s{S_RANK}, s{T}, 9363"); A(f"s_lshr_b32 s{S_RANK}, s{S_RANK}, 16")
    A(f"s_mul_i32 s{T+1}, s{S_RANK}, 7"); A(f"s_sub_u32 s{S_W}, s{T}, s{T+1}")
    A(f"s_cmp_lt_u32 s{S_W}, 2"); A("s_cbranch_scc1 Lp1")
    A(f"s_mul_i32 s{S_B}, s{S_RANK}, 5"); A(f"s_add_u32 s{S_B}, s{S_B}, s{S_W}"); A(f"s_sub_u32 s{S_B}, s{S_B}, 2")
    A(f"s_cmp_lt_u32 s{S_B}, 96"); A("s_cbranch_scc0 Lln1")
    gen_mod(A, S_B, confirm=conf(24), flag=True)
    A("s_branch Lp1")
    A.label("Lln1")
    A(f"s_sub_u32 s{S_B}, s{S_B}, 96"); A(f"s_lshl_b32 s{S_B}, s{S_B}, 2"); A(f"s_add_u32 s{S_B}, s{S_B}, s{S_WAVE}")
    def wm():
        conf(12)()
        A("v_and_b32 v12, 63, v0"); A("v_lshlrev_b32 v12, 6, v12"); A(f"v_add_u32 v12, {MOD_OFF + 32}, v12")
        wait_flags(A, S_WS, 12, 64, F, 13)
        stampw(6, 14)
    gen_ln1(A, S_B, wait_mod=wm, flag=True)
    A.label("Lp1")
    stampw(1)
    gen_qkv_setup(A)
    if hold:
        A(f"s_cmp_lt_u32 s{S_W}, {hold}"); A("s_cbranch_scc1 Lnohold")
        A(f"s_lshl_b32 s{T}, s{S_RANK}, 10"); A(f"s_add_u32 s{T}, s{T}, {QKVFLAG}")
        A("v_and_b32 v2, 3, v0"); A("v_lshlrev_b32 v2, 2, v2"); A(f"v_add_u32 v2, s{T}, v2")
        wait_flags(A, S_WS, 2, 4, F, 3, drain=True)
        A.label("Lnohold")
    A(f"s_cmp_lt_u32 s{S_W}, 4"); A("s_cbranch_scc0 Lp3a")
    A(f"s_lshr_b32 s{S_B}, s{S_W}, 1")
    A(f"s_bitcmp1_b32 s{S_W}, 0"); A("s_cbranch_scc1 Lp2")
    gen_unit(A, S_B, S_RANK, mats=("k", "q"), flags=True, fail=F, confirm=conf(20), split=True)
    A(f"s_cmp_lg_u32 s{S_W}, 0"); A("s_cbranch_scc1 Lp4")
    A(f"s_mov_b32 s{S_B}, 5"); A("s_branch Lp3")
    A.label("Lp2")
    gen_unit(A, S_B, S_RANK, mats=("v",), flags=True, fail=F, confirm=conf(20), split=True, st=(stampw if diag == "exit" else (lambda k, r: None)))
    stampw(6)
    A(f"s_add_u32 s{S_B}, s{S_B}, 6"); A("s_branch Lp3")
    A.label("Lp3a")
    A(f"s_sub_u32 s{S_B}, s{S_W}, 2")
    A.label("Lp3")
    gen_unit(A, S_B, S_RANK, mats=("k", "v", "q"), flags=True, fail=F, wfirst=False)
    A.label("Lp4")
    stampw(2)
    if diag == "exit": A(f"s_branch Lend")
    A(f"s_cmp_eq_u32 s{S_W}, 2"); A(f"s_cselect_b32 s{T}, 3, s{S_W}")
    A(f"s_cmp_eq_u32 s{S_W}, 3"); A(f"s_cselect_b32 s{T}, 2, s{T}")
    A(f"s_cmp_lt_u32 s{T}, 3"); A("s_cbranch_scc1 Llate")
    A(f"s_lshl_b32 s{S_W}, s{S_RANK}, 2"); A(f"s_add_u32 s{S_W}, s{S_W}, s{T}"); A(f"s_sub_u32 s{S_W}, s{S_W}, 3")
    A(f"s_cmp_lt_u32 s{S_W}, 64"); A("s_cbranch_scc0 Lnota")
    A(f"s_lshr_b32 s{S_RANK}, s{S_W}, 2"); A(f"s_and_b32 s{S_B}, s{S_W}, 3")
    gen_attn(A, S_RANK, S_B, 4, F, st=(stampw if tail else (lambda k, r=254: None)))
    stampw(3)
    if not (linger & 2): A("s_branch Lend")
    A.label("Lidle")
    A(f"v_mov_b32 v2, {YFLAG}")
    wait_flags(A, S_WS, 2, 1, F, 3, sleep=16, drain=True)
    A("s_branch Lend")
    A.label("Llate")
    A(f"s_mul_i32 s{S_W}, s{S_RANK}, 3"); A(f"s_add_u32 s{S_W}, s{S_W}, s{T}"); A(f"s_add_u32 s{S_W}, s{S_W}, 128")
    A.label("Lnota")
    S_OS, S_OQ = 94, 95
    A(f"s_and_b32 s{S_OQ}, s{S_W}, 3")
    A(f"s_sub_u32 s{S_OS}, s{S_W}, 64"); A(f"s_sub_u32 s{T}, s{S_W}, 128"); A(f"s_cmp_ge_u32 s{S_W}, 204"); A(f"s_cselect_b32 s{S_OS}, s{T}, s{S_OS}")
    A(f"s_lshr_b32 s{S_OS}, s{S_OS}, 2"); A(f"s_lshl_b32 s{S_OS}, s{S_OS}, 1")
    gen_o_weights(A, S_OQ)
    A(f"s_cmp_ge_u32 s{S_W}, 204"); A("s_cbranch_scc1 Lout")
    A(f"s_cmp_lt_u32 s{S_W}, 108"); A("s_cbranch_scc1 Lnotr")
    A(f"s_cmp_ge_u32 s{S_W}, 140"); A("s_cbranch_scc1 Lg1")
    A(f"s_sub_u32 s{S_B}, s{S_W}, 108"); A(f"s_and_b32 s{S_RANK}, s{S_B}, 7"); A(f"s_lshr_b32 s{S_B}, s{S_B}, 3")
    gen_red(A, S_RANK, S_B, 4, F, st=(stampw if tail else (lambda k, r=254: None)))
    stampw(3)
    A("s_branch Lout")
    A.label("Lnotr")
    A(f"s_sub_u32 s{S_RANK}, s{S_W}, 64"); A(f"s_cmp_ge_u32 s{S_RANK}, 22"); A(f"s_cselect_b32 s{S_B}, 1, 0"); A(f"s_cselect_b32 s{T}, 22, 0"); A(f"s_sub_u32 s{S_RANK}, s{S_RANK}, s{T}")
    gen_z(A, S_RANK, S_B, 2, F, st=(stampw if tail else (lambda k, r=254: None)))
    stampw(3)
    A("s_branch Lout")
    A.label("Lg1")
    A(f"s_sub_u32 s{S_W}, s{S_W}, 140")
    A(f"s_and_b32 s{S_RANK}, s{S_W}, 3"); A(f"s_lshr_b32 s{S_B}, s{S_W}, 2")
    gen_g(A, S_B, S_RANK, F, st=(stampw if tail else (lambda k, r=254: None)))
    stampw(3)
    A(f"s_sub_u32 s{S_B}, 63, s{S_B}")
    gen_o(A, S_B, S_OQ, 1, F, st=(stampw if tail else (lambda k, r=254: None)))
    stampw(4)
    A("s_branch Lend")
    A.label("Lout")
    gen_o(A, S_OS, S_OQ, 2, F, st=(stampw if tail else (lambda k, r=254: None)))
    stampw(4)
    A.label("Lend")
    if stamps:
        A("s_mov_b32 s92, s101"); A(f"s_lshl_b32 s93, s{S_WIDX}, 5"); A(f"s_add_u32 s93, s93, {TST_OFF}")
        A("v_mov_b32 v254, s92"); A("v_mov_b32 v255, s93"); A("s_mov_b64 exec, 1")
        A(f"global_store_dword v255, v254, s[{S_WS}:{S_WS+1}]"); A("s_mov_b64 exec, -1")
    A(f"s_branch {D}")
    gen_fail(A, F)
    A.label(D); A("s_waitcnt vmcnt(0)"); A("s_endpgm")
    A.fix_hazards()
    hdr = f"; @launch kernel={NAME} grid=(256,1,1) block=(256,1,1) lds=163840\n"
    return hdr + '.amdgcn_target "amdgcn-amd-amdhsa--gfx950"\n.text\n' + kernel_header(NAME) + A.text() + '.section .rodata,"a"\n' + kernel_desc(NAME, nsgpr=102)
if __name__ == "__main__":
    open("../dev/mega.s", "w").write(build(stamps=True))
    open("../dev/mega_ns.s", "w").write(build(stamps=False))
    import json
    V = eval(sys.argv[1]) if len(sys.argv) > 1 else []
    for i, kw in enumerate(V):
        open(f"../dev/mega_v{i}.s", "w").write(build(**{**dict(stamps=True), **kw}))
```

```python
from asm import *
from layout import *
from team import S_WS, S_DBG, S_RANK, S_WAVE, S_T, S_SPIN, np_f32_bits
from pre import unpack
from attn import wait_flags, set_flag
from rz import wait_mod, mkbase, adv, load_w16, S_A, S_B, S_C2, S_D, S_E, S_F, S_SEG
S_G, S_H = 78, 80

def gen_g(A, s_tb, s_fg, fail, check=True, st=lambda k, r=254: None):
    T = S_T
    L16, FA, WA0, WA1, STA, UW, PW, PR = 1, 2, 3, 4, 5, 6, 7, 8
    t = 10
    UL, STL, RS, WS, UB, UN = 16, 28, 40, 56, 72, 120
    AC = 128
    Z1 = 16
    LDS_U, LDS_P = 0, 0x6000
    A(f"s_load_dwordx4 s[{T}:{T+3}], s[0:1], {KA['w_sp']}")
    ln, n_, g_, t0, t1 = 16, 17, 18, 19, 20
    A(f"v_and_b32 v{ln}, 63, v0"); A(f"v_and_b32 v{n_}, 15, v{ln}"); A(f"v_lshrrev_b32 v{g_}, 4, v{ln}")
    A(f"v_lshlrev_b32 v{L16}, 4, v{ln}"); A(f"v_min_u32 v{FA}, 11, v{ln}"); A(f"v_lshlrev_b32 v{FA}, 7, v{FA}")
    A(f"v_lshrrev_b32 v{t0}, 2, v{n_}"); A(f"v_lshlrev_b32 v{t0}, 3, v{t0}"); A(f"v_and_b32 v{t1}, 3, v{n_}"); A(f"v_add_u32 v{t0}, v{t0}, v{t1}")
    A(f"v_lshlrev_b32 v{t+4}, 1, v{t0}")
    A(f"v_lshlrev_b32 v{WA0}, 12, v{t0}"); A(f"v_lshl_add_u32 v{WA0}, v{g_}, 4, v{WA0}"); A(f"v_add_u32 v{WA1}, {4*4096}, v{WA0}")
    A(f"v_and_b32 v{t0}, 31, v{ln}"); A(f"v_lshlrev_b32 v{t0}, 3, v{t0}")
    A(f"v_lshrrev_b32 v{t1}, 5, v{ln}"); A(f"v_mul_u32_u24 v{t1}, {6*256}, v{t1}"); A(f"v_add_u32 v{STA}, v{t0}, v{t1}")
    A(f"s_mul_i32 s{T+4}, s{S_WAVE}, 3072"); A(f"v_add_u32 v{UW}, s{T+4}, v{L16}")
    A(f"s_lshl_b32 s{T+5}, s{S_WAVE}, 8"); A(f"s_add_u32 s{T+5}, s{T+5}, {LDS_P}")
    A(f"v_add_u32 v{PW}, s{T+5}, v{t0}")
    A(f"v_lshlrev_b32 v{t1}, 6, v{g_}"); A(f"v_add_u32 v{PR}, s{T+5}, v{t1}")
    A(f"s_lshl_b32 s{T+6}, s{s_tb}, 2"); A(f"s_add_u32 s{T+6}, s{T+6}, s{S_WAVE}")
    A(f"s_mul_i32 s{T+7}, s{s_fg}, 12"); A(f"s_cmp_eq_u32 s{s_fg}, 3"); A(f"s_cselect_b32 s{T+7}, 34, s{T+7}")
    A("s_waitcnt lgkmcnt(0)")
    mkbase(A, S_A, 0, [(T + 6, 17)], src=T)
    mkbase(A, S_B, UF_OFF, [(T + 7, 10)])
    mkbase(A, S_C2, STAT_OFF, [])
    mkbase(A, S_E, ZFLAG + 10 * 128, [(S_WAVE, 12)])
    mkbase(A, S_G, 0, [(T + 6, 6)], src=T + 2)
    A(f"global_load_ushort v{t+2}, v{t+4}, s[{S_G}:{S_G+1}]")
    A(f"global_load_ushort v{t+3}, v{t+4}, s[{S_G}:{S_G+1}] offset:8")
    A("s_waitcnt vmcnt(0)")
    A(f"v_lshlrev_b32 v{t+2}, 16, v{t+2}"); A(f"v_lshlrev_b32 v{t+3}, 16, v{t+3}")
    for i in range(96): A(f"v_mov_b32 v{AC+i}, v{t+2+((i>>2)&1)}")
    A(f"global_load_dwordx4 v[{WS}:{WS+3}], v{WA0}, s[{S_A}:{S_A+1}]")
    A(f"global_load_dwordx4 v[{WS+4}:{WS+7}], v{WA1}, s[{S_A}:{S_A+1}]")
    A(f"s_mov_b32 s{S_SEG}, 0")
    A(f"s_mul_i32 s{T+8}, s{T+6}, {44*1024}")
    mkbase(A, S_D, Z1F_OFF, [(T + 7, 10), (T + 8, 0)])
    mkbase(A, S_F, ZFLAG, [(T + 6, 14), (S_WAVE, 12)])
    A("s_barrier")
    def loads():
        for k in range(6): A(f"global_load_dwordx2 v[{STL+2*k}:{STL+2*k+1}], v{STA}, s[{S_C2}:{S_C2+1}] offset:{k*256} sc1")
        for k in range(3): A(f"global_load_dwordx4 v[{UL+4*k}:{UL+4*k+3}], v{UW}, s[{S_B}:{S_B+1}] offset:{k*1024} sc1")
    def z1loads():
        if check: wait_flags(A, S_F, FA, 11, fail, 9)
        A(f"v_add_u32 v{t}, 4096, v{L16}"); A(f"v_add_u32 v{t+1}, 8192, v{L16}")
        for j in range(12): A(f"global_load_dwordx4 a[{176+4*j}:{179+4*j}], v{(L16, t, t+1)[j>>2]}, s[{S_D}:{S_D+1}] offset:{(j&3)*1024} sc1")
    if check: wait_flags(A, S_E, FA, 12, fail, 9)
    loads()
    LOOP = A.newlabel("Lg")
    A.label(LOOP)
    for par in range(2):
        wc, wn = WS + 8 * par, WS + 8 * (par ^ 1)
        if par == 1:
            LZ3 = A.newlabel("Lgz3")
            A(f"s_cmp_lg_u32 s{S_SEG}, 62"); A(f"s_cbranch_scc1 {LZ3}")
            A(f"s_cmp_lg_u32 s{s_tb}, 15"); A(f"s_cbranch_scc1 {LZ3}")
            z1loads()
            A.label(LZ3)
        adv(A, [(S_B, 44 * 1024), (S_C2, 4096), (S_E, 16384)])
        A(f"global_load_dword v{t+5}, v{FA}, s[{S_E}:{S_E+1}] sc1")
        A(f"s_add_u32 s{T}, s{S_SEG}, {par+1}"); A(f"s_and_b32 s{T}, s{T}, 63"); A(f"s_lshl_b32 s{T}, s{T}, 6")
        A(f"v_add_u32 v{t}, s{T}, v{WA0}"); A(f"v_add_u32 v{t+1}, s{T}, v{WA1}")
        A(f"global_load_dwordx4 v[{wn}:{wn+3}], v{t}, s[{S_A}:{S_A+1}]")
        A(f"global_load_dwordx4 v[{wn+4}:{wn+7}], v{t+1}, s[{S_A}:{S_A+1}]")
        A("s_waitcnt vmcnt(6)")
        for k in range(1, 6): A(f"v_add_f32 v{STL}, v{STL}, v{STL+2*k}"); A(f"v_add_f32 v{STL+1}, v{STL+1}, v{STL+2*k+1}")
        A(f"v_mov_b32 v{STL+2}, v{STL}"); A(f"v_mov_b32 v{STL+3}, v{STL+1}")
        A(f"v_permlane32_swap_b32 v{STL}, v{STL+2}"); A(f"v_permlane32_swap_b32 v{STL+1}, v{STL+3}")
        A(f"v_add_f32 v{STL}, v{STL}, v{STL+2}"); A(f"v_add_f32 v{STL+1}, v{STL+1}, v{STL+3}")
        A(f"v_mul_f32 v{STL}, {np_f32_bits(1.0/688):#x}, v{STL}")
        A(f"v_mul_f32 v{STL+1}, {np_f32_bits(1.0/688):#x}, v{STL+1}")
        A(f"v_fma_f32 v{STL+1}, -v{STL}, v{STL}, v{STL+1}")
        A(f"v_max_f32 v{STL+1}, 0, v{STL+1}")
        A(f"v_add_f32 v{STL+1}, {np_f32_bits(1e-5):#x}, v{STL+1}")
        A(f"v_rsq_f32 v{STL+2}, v{STL+1}")
        A(f"v_mul_f32_e64 v{STL+3}, -v{STL}, v{STL+2}")
        A(f"ds_write_b64 v{PW}, v[{STL+2}:{STL+3}]")
        A("s_waitcnt lgkmcnt(0)")
        for k in range(4): A(f"ds_read_b128 v[{RS+4*k}:{RS+4*k+3}], v{PR} offset:{16*k}")
        A("s_waitcnt vmcnt(3)")
        for k in range(3):
            unpack(A, UN, UL + 4 * k, 4)
            if k == 0: A("s_waitcnt lgkmcnt(0)")
            for e in range(8): A(f"v_fma_f32 v{UN+e}, v{UN+e}, v{RS+2*e}, v{RS+2*e+1}")
            for e in range(4): A(f"v_cvt_pk_bf16_f32 v{UL+4*k+e}, v{UN+2*e}, v{UN+2*e+1}")
            A(f"ds_write_b128 v{UW}, v[{UL+4*k}:{UL+4*k+3}] offset:{LDS_U + par*12288 + k*1024}")
        LNP = A.newlabel("Lgn"); LB = A.newlabel("Lgb")
        A("s_waitcnt vmcnt(2) lgkmcnt(0)")
        A(f"v_cmp_ne_u32 vcc, s{S_NONCE}, v{t+5}")
        A(f"s_and_b32 s{T+1}, vcc_lo, 0xfff")
        if not check: A(f"s_mov_b32 s{T+1}, 0")
        if par == 1:
            A(f"s_cmp_eq_u32 s{S_SEG}, 62"); A(f"s_cselect_b32 s{T+1}, 0, s{T+1}"); A(f"s_cbranch_scc1 {LNP}")
        A(f"s_cmp_lg_u32 s{T+1}, 0"); A(f"s_cbranch_scc1 {LNP}")
        loads()
        A.label(LNP)
        A("s_barrier")
        for j in range(12): A(f"ds_read_b128 v[{UB+4*j}:{UB+4*j+3}], v{L16} offset:{LDS_U + par*12288 + j*1024}")
        for j in range(12):
            A(f"s_waitcnt lgkmcnt({11-j})")
            for mt in range(2):
                ac = AC + 8 * j + 4 * mt
                A(f"v_mfma_f32_16x16x32_bf16 v[{ac}:{ac+3}], v[{UB+4*j}:{UB+4*j+3}], v[{wc+4*mt}:{wc+4*mt+3}], v[{ac}:{ac+3}]")
        if par == 1:
            LZ1 = A.newlabel("Lgz1")
            A(f"s_cmp_lg_u32 s{S_SEG}, 60"); A(f"s_cbranch_scc1 {LZ1}")
            A(f"s_cmp_eq_u32 s{s_tb}, 15"); A(f"s_cbranch_scc1 {LZ1}")
            z1loads()
            A.label(LZ1)
        A(f"s_cmp_eq_u32 s{T+1}, 0"); A(f"s_cbranch_scc1 {LB}")
        wait_flags(A, S_E, FA, 12, fail, 9)
        st(5)
        loads()
        A.label(LB)
    A(f"s_add_u32 s{S_SEG}, s{S_SEG}, 2")
    A(f"s_cmp_lt_u32 s{S_SEG}, 64"); A(f"s_cbranch_scc1 {LOOP}")
    st(6)
    A(f"v_add_u32 v{t}, 4096, v{L16}")
    A(f"s_mov_b32 s{T}, s{T+8}")
    A(f"s_lshr_b32 s{T+1}, s{T+7}, 1")
    mkbase(A, S_H, YF_OFF, [(T, 0), (T + 1, 10)])
    mkbase(A, S_F, YFLAG, [(T + 6, 9), (s_fg, 7)])
    A(f"v_add_u32 v{WA0}, {22*1024}, v{L16}"); A(f"v_add_u32 v{WA1}, {22*1024+4096}, v{L16}")
    YP = 72
    LSK = A.newlabel("Lgs")
    for jj in range(6):
        if jj == 5: A(f"s_cmp_ge_u32 s{s_fg}, 2"); A(f"s_cbranch_scc1 {LSK}")
        if jj == 0: A("s_waitcnt vmcnt(0)")
        yp = YP + 8 * (jj & 1)
        for h in range(2):
            j = 2 * jj + h
            for e in range(4): A(f"v_accvgpr_read_b32 v{Z1+e}, a{176+4*j+e}")
            unpack(A, UN, Z1, 4)
            for mt in range(2):
                ac = AC + 8 * j + 4 * mt
                for r in (0, 2): A(f"v_pk_mul_f32 v[{ac+r}:{ac+r+1}], v[{ac+r}:{ac+r+1}], v[{UN+4*mt+r}:{UN+4*mt+r+1}]")
                A(f"v_cvt_pk_bf16_f32 v{yp+4*mt+2*h}, v{ac}, v{ac+1}"); A(f"v_cvt_pk_bf16_f32 v{yp+4*mt+2*h+1}, v{ac+2}, v{ac+3}")
        if jj == 4:
            LZ = A.newlabel("Lgz")
            A(f"s_cmp_lg_u32 s{s_fg}, 3"); A(f"s_cbranch_scc1 {LZ}")
            A(f"v_mov_b64 v[{yp+2}:{yp+3}], 0"); A(f"v_mov_b64 v[{yp+6}:{yp+7}], 0")
            A.label(LZ)
        A(f"global_store_dwordx4 v{L16 if jj < 4 else t}, v[{yp}:{yp+3}], s[{S_H}:{S_H+1}] offset:{(jj&3)*1024} sc1")
        A(f"global_store_dwordx4 v{WA0 if jj < 4 else WA1}, v[{yp+4}:{yp+7}], s[{S_H}:{S_H+1}] offset:{(jj&3)*1024} sc1")
    A.label(LSK)
    st(7)
    set_flag(A, S_F, 0, L16, t)

def gen_o_weights(A, s_cq):
    T = S_T
    A(f"s_load_dwordx2 s[{T}:{T+1}], s[0:1], {KA['w_out']}")
    A(f"s_lshl_b32 s{T+6}, s{s_cq}, 8"); A(f"s_lshl_b32 s{T+7}, s{S_WAVE}, 6"); A(f"s_add_u32 s{T+6}, s{T+6}, s{T+7}")
    A(f"s_lshl_b32 s{T+8}, s{S_WAVE}, 15")
    A("s_waitcnt lgkmcnt(0)")
    A(f"s_add_u32 s{T}, s{T}, s{T+6}"); A(f"s_addc_u32 s{T+1}, s{T+1}, 0")
    A("s_barrier")
    load_w16(A, T, 1024, 22, lambda g, e: 4 * g + (e % 4) + 16 * (e // 4), 2, lambda nt, ks: ("a", (ks * 2 + nt) * 4), T + 8, 16, rowmax=687, inter=True)
    A("s_barrier")

def gen_o(A, s_S, s_cq, NS, fail, check=True, st=lambda k, r=254: None):
    T = S_T
    L16, FA, YW, XA = 1, 2, 3, 4
    t = 8
    YL, YB, AC, XV, GB, XR = 16, 104, 136, 152, 160, 176
    A(f"s_load_dwordx2 s[{T+2}:{T+3}], s[0:1], {KA['out']}")
    A(f"s_lshl_b32 s{T+6}, s{s_cq}, 8"); A(f"s_lshl_b32 s{T+7}, s{S_WAVE}, 6"); A(f"s_add_u32 s{T+6}, s{T+6}, s{T+7}")
    A("s_waitcnt lgkmcnt(0)")
    A("s_barrier")
    if check: wait_mod(A, fail, 16, 17, 80, 16)
    ln, n_, g_, t0, t1 = 16, 17, 18, 19, 20
    A(f"v_and_b32 v{ln}, 63, v0"); A(f"v_and_b32 v{n_}, 15, v{ln}"); A(f"v_lshrrev_b32 v{g_}, 4, v{ln}")
    A(f"v_lshlrev_b32 v{L16}, 4, v{ln}"); A(f"v_lshlrev_b32 v{FA}, 2, v{ln}")
    A(f"s_mul_i32 s{T+9}, s{S_WAVE}, {11*1024}"); A(f"v_add_u32 v{YW}, s{T+9}, v{L16}")
    A(f"v_lshrrev_b32 v{t0}, 2, v{n_}"); A(f"v_lshlrev_b32 v{t0}, 3, v{t0}"); A(f"v_and_b32 v{t1}, 3, v{n_}"); A(f"v_add_u32 v{t0}, v{t0}, v{t1}")
    A(f"v_lshlrev_b32 v{XA}, 10, v{t0}"); A(f"v_lshl_add_u32 v{XA}, v{g_}, 4, v{XA}"); A(f"v_add_u32 v{XA}, s{T+6}, v{XA}")
    A(f"v_add_u32 v{XA+1}, 4096, v{XA}"); A(f"v_add_u32 v{t+4}, 32768, v{XA}"); A(f"v_add_u32 v{t+5}, {32768+4096}, v{XA}")
    xa = [XA, XA + 1, t + 4, t + 5]
    A(f"v_lshlrev_b32 v{t0}, 4, v{g_}"); A(f"v_and_b32 v{t1}, 32, v{t0}"); A(f"v_add_u32 v{t0}, v{t0}, v{t1}"); A(f"s_lshl_b32 s{T+9}, s{T+6}, 1"); A(f"v_add_u32 v{t0}, s{T+9}, v{t0}"); A(f"v_add_u32 v{t0}, {MOD_OFF + 80*128}, v{t0}")
    A(f"global_load_dwordx4 v[{GB+8}:{GB+11}], v{t0}, s[{S_WS}:{S_WS+1}] sc1")
    A(f"s_mul_i32 s{T+9}, s{s_S}, {44*1024}")
    mkbase(A, S_A, YF_OFF, [(T + 9, 0)])
    mkbase(A, S_B, X1_OFF, [(s_S, 15)])
    mkbase(A, S_C2, 0, [(s_S, 15)], src=T + 2)
    mkbase(A, S_E, YFLAG, [(s_S, 9)])
    A(f"v_lshlrev_b32 v7, 3, v{L16}")
    A(f"v_lshlrev_b32 v{t0}, 4, v{n_}"); A(f"v_lshrrev_b32 v{t1}, 1, v{g_}"); A(f"v_lshl_add_u32 v{t0}, v{t1}, 9, v{t0}")
    A(f"v_and_b32 v{t1}, 1, v{g_}"); A(f"v_lshl_add_u32 v{t0}, v{t1}, 3, v{t0}"); A(f"s_lshl_b32 s{T+9}, s{T+6}, 4")
    for k in range(2 * NS): A(f"v_add_u32 v{224+k}, s{T+9}, v{t0}"); A(f"v_add_u32 v{224+k}, {16384*k}, v{224+k}")
    NY = 11 * NS
    for k in range(1, 3 * NS): A(f"v_add_u32 v{200+k}, {4096*(k%3) + 44*1024*(k//3)}, v{YW}")
    A(f"v_mov_b32 v200, v{YW}")
    if check: wait_flags(A, S_E, 7, 4 * NS, fail, t + 2)
    st(1)
    for i in range(NY): A(f"global_load_dwordx4 v[{YL+4*i}:{YL+4*i+3}], v{200 + 3*(i//11) + ((i%11) >> 2)}, s[{S_A}:{S_A+1}] offset:{((i%11)&3)*1024} sc1")
    for k in range(2 * NS):
        for b in range(2): A(f"global_load_dwordx2 v[{XR+4*k+2*b}:{XR+4*k+2*b+1}], v{224+k}, s[{S_B}:{S_B+1}] offset:{256*b} sc1")
    NX = 4 * NS
    def ywr(i): return f"s_waitcnt vmcnt({NY-1-i+NX})\nds_write_b128 v{200 + 3*(i//11)}, v[{YL+4*i}:{YL+4*i+3}] offset:{(i%11)*1024}"
    A(f"v_add_u32 v{t}, {44*1024}, v{L16}")
    unpack(A, GB, GB + 8, 4)
    for i in range(11): A(ywr(i))
    A("s_waitcnt lgkmcnt(0)"); A("s_barrier")
    st(2)
    fr = [(q, mt, j) for q in range(NS) for j in range(22) for mt in range(2)]
    def rd(i): q, mt, j = fr[i]; return f"ds_read_b128 v[{YB+4*(i&7)}:{YB+4*(i&7)+3}], v{L16 if q == 0 else t} offset:{(mt*22+j)*1024}"
    def epi(q):
        if q == 0: A("s_waitcnt vmcnt(0)")
        for mt in range(2):
            unpack(A, XV, XR + 8 * q + 4 * mt, 4)
            for e in range(8): A(f"v_fmac_f32 v{XV+e}, v{ACQ[q]+8*mt+e}, v{GB+e}")
            for e in range(4): A(f"v_cvt_pk_bf16_f32 v{YL+8*q+4*mt+e}, v{XV+2*e}, v{XV+2*e+1}")
            A(f"global_store_dwordx4 v{xa[2*q+mt]}, v[{YL+8*q+4*mt}:{YL+8*q+4*mt+3}], s[{S_C2}:{S_C2+1}]")
    ACQ = [AC, 208]
    for q in range(NS):
        base = 44 * q
        for i in range(7): A(rd(base + i))
        for i in range(base, base + 44):
            _, mt, j = fr[i]
            k = i - base
            A(f"s_waitcnt lgkmcnt({min(6, 43-k)})") if not (NS == 2 and q == 0 and 20 <= k < 33) else A("s_waitcnt lgkmcnt(6)" if k == 20 else "s_waitcnt lgkmcnt(7)")
            for nt in range(2):
                ac = ACQ[q] + 8 * mt + 4 * nt
                A(f"v_mfma_f32_16x16x32_bf16 v[{ac}:{ac+3}], {a((j*2+nt)*4, 4)}, v[{YB+4*(i&7)}:{YB+4*(i&7)+3}], " + ("0" if j == 0 else f"v[{ac}:{ac+3}]"))
                if nt == 0 and k + 7 < 44: A(rd(i + 7))
                if nt == 1 and NS == 2 and q == 0 and 20 <= k < 31: A(ywr(11 + k - 20))
            if NS == 2 and q == 1 and k == 6: epi(0)
        if NS == 2 and q == 0: A("s_waitcnt lgkmcnt(0)"); A("s_barrier")
    epi(NS - 1)
```

```python
from asm import *
from layout import *
from flags import wait_flags, set_flag
from team import S_WS, S_DBG, S_RANK, S_WAVE, S_T, S_SPIN

ACC, WF = 128, 64
V_TR, V_DS, V_HL, V_SK, V_SQ, V_PK = 8, 12, 13, 14, 15, 32
S_QF = 74
S_W, S_H, S_REC, S_M0B, S_SLOT, S_NW = 64, 66, 68, 70, 71, 72
NSLOT = 5

def gen_qkv_setup(A):
    T = S_T
    A("v_and_b32 v1, 63, v0")
    A("v_lshrrev_b32 v2, 5, v1"); A("v_lshlrev_b32 v2, 11, v2")
    A("v_bfe_u32 v3, v1, 2, 2"); A("v_lshl_add_u32 v2, v3, 8, v2")
    A("v_bfe_u32 v4, v1, 4, 1"); A("v_lshl_add_u32 v2, v4, 5, v2")
    A("v_and_b32 v4, 3, v1"); A("v_lshl_add_u32 v2, v4, 3, v2")
    for nt in range(4):
        A(f"v_xor_b32 v4, {nt}, v3"); A(f"v_lshl_add_u32 v{V_TR+nt}, v4, 6, v2")
    A("v_lshrrev_b32 v2, 4, v1"); A("v_xor_b32 v4, v3, v2")
    A("v_lshlrev_b32 v2, 13, v2"); A("v_lshl_add_u32 v2, v4, 6, v2")
    A("v_and_b32 v4, 3, v1"); A("v_lshl_add_u32 v2, v4, 4, v2")
    A(f"s_lshl_b32 s{T}, s{S_WAVE}, 15")
    A(f"v_add_u32 v{V_DS}, s{T}, v2")
    A(f"s_lshl_b32 s{S_M0B}, s{S_WAVE}, 10")
    A(f"v_lshlrev_b32 v2, 4, v1"); A(f"s_lshl_b32 s{T}, s{S_WAVE}, 15"); A(f"v_add_u32 v{V_HL}, s{T}, v2")
    A("v_lshlrev_b32 v17, 4, v1")
    A("v_bfe_u32 v2, v1, 3, 1"); A("v_lshlrev_b32 v2, 12, v2")
    A("v_lshrrev_b32 v3, 5, v1"); A("v_lshl_add_u32 v2, v3, 8, v2")
    A("v_bfe_u32 v4, v1, 4, 1"); A("v_lshl_add_u32 v2, v4, 7, v2")
    A("v_and_b32 v4, 7, v1"); A(f"v_lshl_add_u32 v{V_SK}, v4, 4, v2")
    A("v_and_b32 v4, 15, v1"); A("v_lshlrev_b32 v4, 4, v4"); A(f"v_lshl_add_u32 v{V_SQ}, v3, 8, v4")
    A("v_bfe_u32 v16, v1, 4, 1")

def dma_group(A, sw, g, slot_sreg_or_const):
    T = S_T
    for i in range(8):
        A(f"s_add_u32 m0, s{S_SLOT}, {i*4096}")
        A(f"v_add_u32 v{2+(i&1)}, {(128*g + 16*i)*8192}, v{V_DS}")
        A(f"global_load_lds_dwordx4 v{2+(i&1)}, s[{sw}:{sw+1}]")

def gen_chunk(A, mat, first, has_next, coh="sc1", prev=None):
    T = S_T
    for i in range(0, 128, 2): A(f"v_mov_b64 v[{ACC+i}:{ACC+i+1}], 0")
    for g in range(4):
        slot = (A.ring + g) % NSLOT
        A(f"s_waitcnt vmcnt({A.pend[g]})")
        if g == 1 and prev is not None:
            set_flag(A, S_QF, "kvq".index(prev) * 256, 17, 18, wait=f"s_waitcnt vmcnt({8 if has_next else 0})", lanes=2)
        A("s_barrier")
        if has_next and (g > 0 or True):
            ng = g if True else None
        base = slot * 32768
        for nt in range(4): A(f"v_add_u32 v{24+nt}, {base}, v{V_TR+nt}")
        def rd(ks, buf):
            L = []
            for nt in range(4):
                L.append(f"ds_read_b64_tr_b16 v[{WF+16*buf+4*nt}:{WF+16*buf+4*nt+1}], v{24+nt} offset:{ks*4096}")
                L.append(f"ds_read_b64_tr_b16 v[{WF+16*buf+4*nt+2}:{WF+16*buf+4*nt+3}], v{24+nt} offset:{ks*4096+1024}")
            return L
        for x in rd(0, 0): A(x)
        extra = []
        if has_next:
            ns = (A.ring + 4 + g) % NSLOT
            for i in range(8):
                extra.append(f"s_add_u32 m0, s{S_M0B}, {ns*32768 + i*4096}\nv_add_u32 v{2+(i&1)}, {(128*g + 16*i)*8192}, v{V_DS}\nglobal_load_lds_dwordx4 v{2+(i&1)}, s[{S_NW}:{S_NW+1}]")
        for ks in range(8):
            buf = ks & 1
            nxt = rd(ks + 1, buf ^ 1) if ks < 7 else []
            A(f"s_waitcnt lgkmcnt(0)")
            kk = 8 * g + ks
            for j in range(8):
                tt, nt = j >> 2, j & 3
                acc = ACC + 16 * (4 * tt + nt)
                h = a((kk * 2 + tt) * 4, 4); w = v(WF + 16 * buf + 4 * nt, 4)
                ops = (h, w) if mat == "v" else (w, h)
                A(f"v_mfma_f32_32x32x16_bf16 v[{acc}:{acc+15}], {ops[0]}, {ops[1]}, v[{acc}:{acc+15}]")
                if nxt and j < 4: A(nxt[2 * j]); A(nxt[2 * j + 1])
                if j == 5 and extra: A(extra.pop(0))
    A.ring = (A.ring + 4) % NSLOT
    epilogue(A, mat, (0, 1), coh)

def epilogue(A, mat, tts, coh):
    off = {"k": R_KX, "v": R_VX, "q": R_QX}[mat]
    if mat == "k": A(f"v_mov_b32 v28, v{V_SK}")
    else: A(f"v_lshl_add_u32 v28, v16, {12 if mat == 'q' else 10}, v{V_SQ}")
    A(f"v_add_u32 v28, {off}, v28")
    A(f"v_add_u32 v29, {4 * REC_SZ}, v28")
    if mat == "v": A("v_add_u32 v30, 4096, v28"); A("v_add_u32 v31, 4096, v29")
    n = 0
    for tt in tts:
        for nt in range(4):
            acc = ACC + 16 * (4 * tt + nt)
            pk = V_PK + 8 * (n & 1); n += 1
            for e in range(8): A(f"v_cvt_pk_bf16_f32 v{pk+e}, v{acc+2*e}, v{acc+2*e+1}")
            if mat == "v": ar, o = 28 + tt + 2 * (nt >> 1), (nt & 1) * 2048
            else: ar, o = 28 + tt, nt * 1024
            A(f"global_store_dwordx4 v{ar}, v[{pk}:{pk+3}], s[{S_REC}:{S_REC+1}] offset:{o} {coh}")
            A(f"global_store_dwordx4 v{ar}, v[{pk+4}:{pk+7}], s[{S_REC}:{S_REC+1}] offset:{o+512} {coh}")

def gen_split_chunk(A, mat, coh, st=lambda k, r: None):
    A("s_barrier")
    st(7, 48)
    A(f"v_mov_b32 v19, 0")
    for tt in range(2):
        def rd(kk, buf):
            L = []
            for nt in range(4):
                ar = (V_TR + nt) if kk < 16 else 24 + nt
                L.append(f"ds_read_b64_tr_b16 v[{WF+16*buf+4*nt}:{WF+16*buf+4*nt+1}], v{ar} offset:{(kk&15)*4096}")
                L.append(f"ds_read_b64_tr_b16 v[{WF+16*buf+4*nt+2}:{WF+16*buf+4*nt+3}], v{ar} offset:{(kk&15)*4096+1024}")
            return L
        if tt == 0:
            for nt in range(4): A(f"v_add_u32 v{24+nt}, 65536, v{V_TR+nt}")
        for x in rd(0, 0): A(x)
        for kk in range(32):
            buf = kk & 1
            nxt = rd(kk + 1, buf ^ 1) if kk < 31 else []
            if tt == 0 and kk % 4 == 0: A(f"s_waitcnt vmcnt({min(63, 60 - kk)})")
            if tt == 1 and kk == 0: A("s_waitcnt vmcnt(8)")
            if tt == 1 and kk == 10: set_flag(A, S_QF, "kvq".index(mat) * 256, 19, 18); st(4, 48)
            A(f"s_waitcnt lgkmcnt(0)")
            for nt in range(4):
                acc = ACC + 16 * (4 * tt + nt)
                h = a((kk * 2 + tt) * 4, 4); w = v(WF + 16 * buf + 4 * nt, 4)
                ops = (h, w) if mat == "v" else (w, h)
                A(f"v_mfma_f32_32x32x16_bf16 v[{acc}:{acc+15}], {ops[0]}, {ops[1]}, " + ("0" if kk == 0 else f"v[{acc}:{acc+15}]"))
                if nxt and nt < 2:
                    for x in nxt[4 * nt:4 * nt + 4]: A(x)
        if tt == 0: st(3, 48)
        epilogue(A, mat, (tt,), coh)
    set_flag(A, S_QF, "kvq".index(mat) * 256 + 16, 19, 18)

def gen_unit(A, s_blk, s_head, mats=("k", "v", "q"), coh="sc1", flags=False, fail=None, confirm=None, wfirst=True, split=False, st=lambda k, r: None, warm=None):
    T = S_T
    A(f"s_load_dwordx4 s[{T}:{T+3}], s[0:1], {KA['Wq']}")
    A(f"s_load_dwordx2 s[{T+4}:{T+5}], s[0:1], {KA['Wv']}")
    A(f"s_lshl_b32 s{T+6}, s{s_blk}, 18")
    A(f"s_add_u32 s{S_H}, s{S_WS}, {H1F_OFF}"); A(f"s_addc_u32 s{S_H+1}, s{S_WS+1}, 0")
    A(f"s_add_u32 s{S_H}, s{S_H}, s{T+6}"); A(f"s_addc_u32 s{S_H+1}, s{S_H+1}, 0")
    A(f"s_lshl_b32 s{T+7}, s{s_head}, 21"); A(f"s_add_u32 s{T+7}, s{T+7}, s{T+6}")
    A(f"s_lshl_b32 s{T+8}, s{S_WAVE}, 15"); A(f"s_add_u32 s{T+7}, s{T+7}, s{T+8}")
    A(f"s_add_u32 s{T+7}, s{T+7}, {REC_OFF}")
    A(f"s_add_u32 s{S_REC}, s{S_WS}, s{T+7}"); A(f"s_addc_u32 s{S_REC+1}, s{S_WS+1}, 0")
    A(f"s_lshl_b32 s{T+8}, s{s_head}, 8")
    A("s_waitcnt lgkmcnt(0)")
    for m in range(3):
        A(f"s_add_u32 s{T+2*m}, s{T+2*m}, s{T+8}"); A(f"s_addc_u32 s{T+2*m+1}, s{T+2*m+1}, 0")
    wp = {"q": T, "k": T + 2, "v": T + 4}
    A.ring = 0
    A("s_barrier")
    if flags:
        if wfirst:
            for g in range(4):
                A(f"s_add_u32 s{S_SLOT}, s{S_M0B}, {g*32768}")
                dma_group(A, wp[mats[0]], g, None)
        if warm:
            LW = A.newlabel("Lwm")
            A(f"s_cmp_lg_u32 s{s_blk}, 0"); A(f"s_cbranch_scc1 {LW}")
            if warm == "q":
                A("v_lshrrev_b32 v2, 2, v0"); A("v_lshlrev_b32 v2, 13, v2"); A("v_and_b32 v3, 3, v0"); A("v_lshl_add_u32 v2, v3, 6, v2")
                for i in range(8):
                    A(f"global_load_dword v48, v2, s[{T}:{T+1}]")
                    if i < 7: A(f"v_add_u32 v2, {64*8192}, v2")
            else:
                A(f"s_load_dwordx2 s[{T+12}:{T+13}], s[0:1], {KA['Wo']}")
                A("v_lshlrev_b32 v2, 6, v0"); A(f"s_lshl_b32 s{T+9}, s{s_head}, 17"); A(f"v_add_u32 v2, s{T+9}, v2")
                A("s_waitcnt lgkmcnt(0)")
                for i in range(8):
                    A(f"global_load_dword v48, v2, s[{T+12}:{T+13}]")
                    if i < 7: A(f"v_add_u32 v2, 16384, v2")
            A.label(LW)
        if confirm: confirm()
        A(f"s_lshl_b32 s{T+9}, s{s_head}, 10"); A(f"s_lshl_b32 s{T+10}, s{s_blk}, 5"); A(f"s_add_u32 s{T+9}, s{T+9}, s{T+10}")
        A(f"s_lshl_b32 s{T+10}, s{S_WAVE}, 2"); A(f"s_add_u32 s{T+9}, s{T+9}, s{T+10}"); A(f"s_add_u32 s{T+9}, s{T+9}, {QKVFLAG}")
        A(f"s_add_u32 s{S_QF}, s{S_WS}, s{T+9}"); A(f"s_addc_u32 s{S_QF+1}, s{S_WS+1}, 0")
        A(f"s_lshl_b32 s{T+9}, s{s_blk}, 10"); A(f"s_lshl_b32 s{T+10}, s{S_WAVE}, 7"); A(f"s_add_u32 s{T+9}, s{T+9}, s{T+10}"); A(f"s_add_u32 s{T+9}, s{T+9}, {H1FLAG}")
        A("v_and_b32 v2, 1, v0"); A("v_lshlrev_b32 v2, 9, v2"); A(f"v_add_u32 v2, s{T+9}, v2")
        wait_flags(A, S_WS, 2, 2, fail, 19)
    if split:
        st(5, 48)
        for tt in range(2):
            for ks in range(32):
                if ks % 4 == 0: A(f"v_add_u32 v4, {ks*1024 + tt*131072}, v{V_HL}")
                A(f"global_load_dwordx4 {a((ks*2+tt)*4, 4)}, v4, s[{S_H}:{S_H+1}] offset:{(ks%4)*1024} {coh}")
                if tt == 1 and ks == 28: A("s_waitcnt vmcnt(58)")
        gen_split_chunk(A, mats[0], coh, st)
        for mat in mats[1:]:
            A("s_barrier")
            for g in range(4):
                A(f"s_add_u32 s{S_SLOT}, s{S_M0B}, {g*32768}")
                dma_group(A, wp[mat], g, None)
            A.ring = 0; A.pend = [24, 16, 8, 0]
            gen_chunk(A, mat, False, False, coh)
            set_flag(A, S_QF, "kvq".index(mat) * 256, 17, 18, lanes=2)
        return
    for g in range(4):
        if not (flags and wfirst):
            A(f"s_add_u32 s{S_SLOT}, s{S_M0B}, {g*32768}")
            dma_group(A, wp[mats[0]], g, None)
        for ks in range(8 * g, 8 * g + 8):
            if ks % 4 == 0: A(f"v_add_u32 v4, {ks*1024}, v{V_HL}"); A(f"v_add_u32 v5, {ks*1024 + 131072}, v{V_HL}")
            for tt in range(2):
                A(f"global_load_dwordx4 {a((ks*2+tt)*4, 4)}, v{4+tt}, s[{S_H}:{S_H+1}] offset:{(ks%4)*1024} {coh}")
        if not (flags and wfirst):
            if g == 1: A("s_waitcnt vmcnt(24)")
            if g == 2: A("s_waitcnt vmcnt(24)")
        elif g == 2: A("s_waitcnt vmcnt(32)")
    for ci, mat in enumerate(mats):
        has_next = ci + 1 < len(mats)
        if has_next: A(f"s_mov_b64 s[{S_NW}:{S_NW+1}], s[{wp[mats[ci+1]]}:{wp[mats[ci+1]]+1}]")
        nx = 8 if has_next else 0
        if ci == 0: A.pend = [48, 32 + nx, 16 + 2 * nx, 3 * nx] if (flags and wfirst) else [48, 48 + nx, 24 + 2 * nx, 3 * nx]
        else: A.pend = [24 + 16, 16 + 16 + nx, 8 + 16 + 2 * nx, 16 + 3 * nx]
        A.pend = [min(p, 63) for p in A.pend]
        gen_chunk(A, mat, ci == 0, has_next, coh, prev=(mats[ci - 1] if flags and ci > 0 else None))
    if flags: set_flag(A, S_QF, "kvq".index(mats[-1]) * 256, 17, 18, lanes=2)
```

```python
from asm import *
from layout import *
from flags import wait_flags, set_flag
import math

IDX, L16, MEMW, MR1, MR2, MR3, XW, XR0, XR1, OW, OR_, WL, SPARE, PST, QST, QLD = range(16)
JUNK2 = 20
S_KXR, S_MR1, S_BM = 56, 57, 54
RA, RB, RC, RD, RE, RF = 16, 48, 80, 96, 104, 120
LDS_MEM, LDS_KX, LDS_X, LDS_O, LDS_MISC, LDS_W = 0x0, 0x2000, 0x6000, 0x7000, 0x7A00, 0x8000
LDS_SEL = 0x7C00
OS = 288
S_WS, S_DBG, S_RANK, S_WAVE, S_STEP, S_TAG = 4, 6, 8, 9, 10, 11
S_P0, S_P1, S_PL0, S_PL1, S_Q0, S_Q1 = 12, 14, 16, 18, 20, 22
S_KX, S_VX, S_KM, S_VM, S_C, S_QMASK = 24, 26, 28, 30, 32, 34
S_KMF, S_KVF = 36, 38
S_T = 40
S_SPIN = 60
S_CKM = 58
S_VMI = 59
S_KXB = 61
S_T0 = 62

LDS_UNITS = [("m", 1), ("m", 2), ("o", 1, 0), ("o", 1, 1)]
REG_UNITS = [("m", i) for i in (0, 3, 4, 5, 6, 7)] + [("v", i) for i in range(8)] + [("o", 0, 0), ("o", 0, 1)]
def octet_reg(k):
    return ("v", 128 + 8 * k) if k < 16 else ("a", 8 * (k - 16))
OCT = {}
_k = 0
for p in REG_UNITS:
    for t in range(2 if p[0] == "v" else 4):
        OCT[(p, t)] = octet_reg(_k); _k += 1
assert _k == 48
LSLOT = {p: i for i, p in enumerate(LDS_UNITS)}
TRA = 32
TRV = 36

def tr_octet(A, dst, slot, areg):
    pre, b = dst
    for r in range(4):
        A(f"ds_read_b64_tr_b16 {rng(pre, b + 2 * r, 2)}, v{areg} offset:{slot * 8192 + (r & 1) * 256 + (r >> 1) * 4096}")

def gen_team(A, fail_label, done_label, standalone=True, nsteps=64, d1=0, d2=0, timing=False, nopub=0, nokv=False, tslot=0, vsplit=(2,2,8,0), qdepth=1, qgap=0, pdepth=1, d3=0, qmask=True, wov=1, confirm=None, stampw=None, depth=3, wnt='', early_l=None, pfe=False, stage=True, dA=4, bpos=(-1,), bwith=1, bwait=1):
    T = S_T
    NST = 8
    def stamp(k):
        if timing == 2: A(f"s_memtime s[{64+2*k}:{65+2*k}]")
    def accum():
        if timing == 2:
            for k in range(1, NST):
                A(f"s_sub_u32 s{96}, s{64+2*k}, s{64+2*(k-1)}")
                A(f"s_add_u32 s{80+k}, s{80+k}, s{96}")
            A(f"s_sub_u32 s96, s90, s{64+2*(NST-1)}"); A("s_add_u32 s88, s88, s96")
            A("s_mov_b64 s[64:65], s[90:91]")
    ln, n_, g_, t0, t1, t2, t3 = RA, RA + 1, RA + 2, RA + 3, RA + 4, RA + 5, RA + 6
    DSRC, DSRO = RA + 8, RA + 14
    A(f"v_and_b32 v{ln}, 63, v0")
    A(f"v_and_b32 v{n_}, 15, v{ln}")
    A(f"v_lshrrev_b32 v{g_}, 4, v{ln}")
    A(f"s_load_dwordx4 s[{T}:{T+3}], s[0:1], {KA['Wq']}")
    A(f"s_load_dwordx4 s[{T+4}:{T+7}], s[0:1], {KA['Wv']}")
    A(f"s_load_dwordx2 s[{T+8}:{T+9}], s[0:1], {KA['mem0']}")
    A(f"v_lshrrev_b32 v{t3}, 3, v{ln}")
    A(f"v_bfe_u32 v{t0}, v{ln}, 1, 2"); A(f"v_lshrrev_b32 v{t1}, 5, v{ln}"); A(f"v_xor_b32 v{t0}, v{t0}, v{t1}")
    A(f"v_lshlrev_b32 v{t0}, 5, v{t0}"); A(f"v_and_b32 v{t1}, 1, v{ln}"); A(f"v_lshl_add_u32 v{t0}, v{t1}, 4, v{t0}")
    A(f"v_lshl_add_u32 v{DSRC}, v{t3}, 13, v{t0}"); A(f"v_xor_b32 v{DSRC+1}, 64, v{DSRC}")
    A(f"v_lshl_add_u32 v{DSRO}, v{t3}, 10, v{t0}"); A(f"v_xor_b32 v{DSRO+1}, 64, v{DSRO}")
    A(f"v_bfe_u32 v{t0}, v{ln}, 5, 1"); A(f"v_lshlrev_b32 v{t0}, 11, v{t0}")
    A(f"v_bfe_u32 v{t1}, v{ln}, 3, 1"); A(f"v_lshl_add_u32 v{t0}, v{t1}, 10, v{t0}")
    A(f"v_bfe_u32 v{t2}, v{ln}, 4, 1"); A(f"v_lshl_add_u32 v{t0}, v{t2}, 9, v{t0}")
    A(f"v_lshl_add_u32 v{t2}, v{t1}, 1, v{t2}")
    A(f"v_bfe_u32 v{t1}, v{ln}, 2, 1"); A(f"v_lshl_add_u32 v{t0}, v{t1}, 7, v{t0}")
    A(f"v_and_b32 v{t1}, 3, v{ln}"); A(f"v_lshl_add_u32 v{t0}, v{t1}, 3, v{t0}")
    A(f"s_lshl_b32 s{T+10}, s{S_WAVE}, 15")
    A(f"s_add_u32 s{T+10}, s{T+10}, {LDS_W}")
    A(f"v_add_u32 v{t0}, s{T+10}, v{t0}")
    for t in range(4):
        A(f"v_xor_b32 v{t1}, {t}, v{t2}"); A(f"v_lshl_add_u32 v{TRA+t}, v{t1}, 5, v{t0}")
    A(f"s_and_b32 s{T+11}, s{S_WAVE}, 1"); A(f"s_lshl_b32 s{T+11}, s{T+11}, 6")
    A(f"v_xor_b32 v{TRV}, s{T+11}, v{TRA}"); A(f"v_xor_b32 v{TRV+1}, s{T+11}, v{TRA+1}")
    A("s_waitcnt lgkmcnt(0)")
    A(f"s_cmp_lt_u32 s{S_WAVE}, 2"); A(f"s_cselect_b64 s[{T}:{T+1}], s[{T}:{T+1}], s[{T+2}:{T+3}]")
    A(f"s_lshl_b32 s{T+12}, s{S_RANK}, 8"); A(f"s_lshl_b32 s{T+11}, s{T+11}, 1"); A(f"s_add_u32 s{T+11}, s{T+11}, s{T+12}")
    A(f"s_add_u32 s{T}, s{T}, s{T+11}"); A(f"s_addc_u32 s{T+1}, s{T+1}, 0")
    A(f"s_lshr_b32 s{T+11}, s{S_WAVE}, 1"); A(f"s_lshl_b32 s{T+11}, s{T+11}, 7"); A(f"s_add_u32 s{T+11}, s{T+11}, s{T+12}")
    A(f"s_add_u32 s{T+4}, s{T+4}, s{T+11}"); A(f"s_addc_u32 s{T+5}, s{T+5}, 0")
    A(f"s_lshl_b32 s{T+11}, s{S_RANK}, 17")
    A(f"s_lshl_b32 s{T+12}, s{S_WAVE}, 7")
    A(f"s_add_u32 s{T+11}, s{T+11}, s{T+12}")
    A(f"s_add_u32 s{T+6}, s{T+6}, s{T+11}")
    A(f"s_addc_u32 s{T+7}, s{T+7}, 0")
    for i in range(4):
        A(f"s_add_u32 s{T+12+i}, s{S_WAVE}, {i}")
        A(f"s_and_b32 s{T+12+i}, s{T+12+i}, 3")
        A(f"s_lshl_b32 s{T+12+i}, s{T+12+i}, 19")
    VT = RA + 10
    def dma_piece(p, slot):
        for i in range(8):
            A(f"s_add_u32 m0, s{T+10}, {slot * 8192 + i * 1024}")
            if p[0] in "mv":
                b = T if p[0] == "m" else T + 4; sl = p[1]
                A(f"s_add_u32 s{T+16}, s{T+12+(sl & 3)}, {(sl >> 2) * (4 << 19) + i * 8 * 8192}")
                A(f"v_add_u32 v{VT + (i & 1)}, s{T+16}, v{DSRC + (i & 1)}")
                A(f"global_load_lds_dwordx4 v{VT + (i & 1)}, s[{b}:{b+1}] {wnt}")
            else:
                _, u, j = p
                A(f"v_add_u32 v{VT + (i & 1)}, {(64 * j + 8 * i) * 1024 + u * 512}, v{DSRO + (i & 1)}")
                A(f"global_load_lds_dwordx4 v{VT + (i & 1)}, s[{T+6}:{T+7}] {wnt}")
    order = REG_UNITS + LDS_UNITS
    for i in range(depth): dma_piece(order[i], i)
    A(f"v_lshlrev_b32 v{L16}, 4, v{ln}")
    A(f"s_lshl_b32 s{T+16}, s{S_WAVE}, 10")
    A(f"v_add_u32 v{MEMW}, s{T+16}, v{L16}")
    for i in (1, 2, 3):
        A(f"s_lshr_b32 s{T+17}, s{T+12+i}, 9")
        A(f"v_add_u32 v{MR1+i-1}, s{T+17}, v{L16}")
    A(f"v_bfe_u32 v{t0}, v{ln}, 1, 1")
    A(f"v_mul_u32_u24 v{t0}, 0xAAAA, v{t0}")
    A(f"v_add_u32 v{IDX}, 0x4444, v{t0}")
    A(f"v_lshrrev_b32 v{t0}, 2, v{n_}")
    A(f"v_xor_b32 v{t0}, v{t0}, v{g_}")
    A(f"v_lshlrev_b32 v{t0}, 3, v{t0}")
    A(f"v_lshl_add_u32 v{t0}, v{n_}, 5, v{t0}")
    A(f"s_and_b32 s{T+17}, s{S_WAVE}, 1"); A(f"s_lshl_b32 s{T+17}, s{T+17}, 11"); A(f"s_add_u32 s{T+17}, s{T+17}, {LDS_X}")
    A(f"s_cmp_lt_u32 s{S_WAVE}, 2"); A(f"s_cselect_b32 s{T+18}, 4, 0"); A(f"s_add_u32 s{T+17}, s{T+17}, s{T+18}")
    A(f"v_add_u32 v{XW}, s{T+17}, v{t0}")
    A(f"v_bfe_u32 v{t0}, v{ln}, 5, 1")
    A(f"v_lshlrev_b32 v{t0}, 4, v{t0}")
    A(f"v_bfe_u32 v{t1}, v{ln}, 4, 1")
    A(f"v_lshl_add_u32 v{t0}, v{t1}, 2, v{t0}")
    A(f"v_lshrrev_b32 v{t2}, 2, v{n_}")
    A(f"v_add_u32 v{t0}, v{t0}, v{t2}")
    A(f"v_and_b32 v{t2}, 3, v{ln}")
    A(f"v_xor_b32 v{t2}, v{t2}, v{t1}")
    A(f"v_lshlrev_b32 v{t2}, 3, v{t2}")
    A(f"v_lshl_add_u32 v{t0}, v{t0}, 5, v{t2}")
    A(f"v_add_u32 v{XR0}, {LDS_X}, v{t0}")
    A(f"v_xor_b32 v{t0}, 16, v{t0}")
    A(f"v_add_u32 v{XR1}, {LDS_X + 256}, v{t0}")
    A(f"v_lshrrev_b32 v{t0}, 2, v{n_}")
    A(f"v_and_b32 v{t1}, 1, v{n_}")
    A(f"v_lshl_add_u32 v{t0}, v{t0}, 1, v{t1}")
    A(f"v_mul_u32_u24 v{t1}, {OS}, v{t0}")
    A(f"v_lshl_add_u32 v{t2}, v{g_}, 3, v{t1}")
    A(f"s_lshl_b32 s{T+17}, s{S_WAVE}, 6")
    A(f"s_add_u32 s{T+17}, s{T+17}, {LDS_O}")
    A(f"v_add_u32 v{OW}, s{T+17}, v{t2}")
    A(f"v_bfe_u32 v{t3}, v{ln}, 1, 1")
    A(f"v_cmp_eq_u32 vcc, 0, v{t3}")
    A(f"v_lshlrev_b32 v{t3}, 2, v{ln}")
    A(f"v_add_u32 v{t3}, {LDS_MISC + 64}, v{t3}")
    A(f"v_and_b32 v{t3}, -8, v{t3}")
    A(f"v_cndmask_b32 v{OW}, v{OW}, v{t3}, vcc")
    A(f"v_lshl_add_u32 v{t2}, v{g_}, 5, v{t1}")
    A(f"v_bfe_u32 v{t3}, v{ln}, 1, 1")
    A(f"v_lshl_add_u32 v{t2}, v{t3}, 4, v{t2}")
    A(f"v_add_u32 v{OR_}, {LDS_O}, v{t2}")
    M0A = RA + 12
    A(f"v_lshlrev_b32 v{t0}, 10, v{t0}")
    A(f"v_lshl_add_u32 v{t0}, v{g_}, 5, v{t0}")
    A(f"v_lshl_add_u32 v{t0}, v{t3}, 4, v{t0}")
    A(f"s_lshl_b32 s{T+17}, s{S_WAVE}, 7")
    A(f"v_add_u32 v{M0A}, s{T+17}, v{t0}")
    A(f"v_lshlrev_b32 v{t0}, 13, v{g_}")
    A(f"v_lshl_add_u32 v{t0}, v{n_}, 4, v{t0}")
    A(f"s_lshl_b32 s{T+17}, s{S_WAVE}, 15")
    A(f"s_lshl_b32 s{T+18}, s{S_RANK}, 8")
    A(f"s_add_u32 s{T+17}, s{T+17}, s{T+18}")
    A(f"v_add_u32 v{PST}, s{T+17}, v{t0}")
    A(f"v_and_b32 v{t0}, 7, v{ln}")
    A(f"v_lshlrev_b32 v{t0}, 5, v{t0}")
    A(f"v_lshl_add_u32 v{t0}, v{g_}, 3, v{t0}")
    A(f"s_lshl_b32 s{T+17}, s{S_RANK}, 8")
    A(f"v_add_u32 v{QST}, s{T+17}, v{t0}")
    A(f"v_lshrrev_b32 v{t0}, 2, v{n_}")
    A(f"v_lshlrev_b32 v{t0}, 8, v{t0}")
    A(f"v_lshl_add_u32 v{t0}, v{g_}, 6, v{t0}")
    A(f"v_and_b32 v{t1}, 1, v{ln}")
    A(f"v_lshl_add_u32 v{t0}, v{t1}, 5, v{t0}")
    A(f"v_bfe_u32 v{t1}, v{ln}, 1, 1")
    A(f"v_lshl_add_u32 v{t0}, v{t1}, 4, v{t0}")
    A(f"v_add_u32 v{QLD}, s{T+16}, v{t0}")
    def base(dst, off_const, sreg=None, shift=0):
        A(f"s_add_u32 s{dst}, s{S_WS}, {off_const}")
        A(f"s_addc_u32 s{dst+1}, s{S_WS+1}, 0")
        if sreg is not None:
            A(f"s_lshl_b32 s{T+17}, s{sreg}, {shift}")
            A(f"s_add_u32 s{dst}, s{dst}, s{T+17}")
            A(f"s_addc_u32 s{dst+1}, s{dst+1}, 0")
    base(S_P0, P_OFF); base(S_P1, P_OFF + 0x20000)
    base(S_PL0, P_OFF, S_RANK, 13); base(S_PL1, P_OFF + 4096, S_RANK, 13)
    base(S_Q0, Q_OFF); base(S_Q1, Q_OFF + 4096)
    base(S_KX, REC_OFF + R_KX, S_RANK, 21); base(S_VX, REC_OFF + R_VX, S_RANK, 21)
    base(S_KM, REC_OFF + R_KM, S_RANK, 21); base(S_VM, REC_OFF + R_VM, S_RANK, 21)
    A(f"s_lshl_b32 s{T+18}, s{S_RANK}, 9")
    A(f"s_add_u32 s{T+18}, s{T+18}, s{S_WAVE}")
    base(S_KMF, KMFLAG, T + 18, 2)
    base(S_KVF, QKVFLAG, S_RANK, 10)
    A(f"s_lshl_b32 s{T+17}, s{S_WAVE}, 11")
    for b in (S_KX, S_VX):
        A(f"s_add_u32 s{b}, s{b}, s{T+17}"); A(f"s_addc_u32 s{b+1}, s{b+1}, 0")
    A(f"s_lshl_b32 s{T+17}, s{S_WAVE}, 10")
    A(f"s_add_u32 s{S_KM}, s{S_KM}, s{T+17}"); A(f"s_addc_u32 s{S_KM+1}, s{S_KM+1}, 0")
    A(f"v_add_u32 v{WL}, s{T+10}, v{L16}")
    A(f"v_lshlrev_b32 v{SPARE}, 1, v{L16}")
    A(f"v_add_u32 v{SPARE}, {2*REC_SZ}, v{SPARE}")
    A(f"v_and_b32 v{t0}, 7, v{ln}")
    for i in range(4):
        A(f"v_cmp_eq_u32 vcc, {2*i}, v{t0}")
        A(f"v_mov_b32 v{t1}, 0x3f80")
        A(f"v_cndmask_b32 v{RB+4+i}, 0, v{t1}, vcc")
        A(f"v_cmp_eq_u32 vcc, {2*i+1}, v{t0}")
        A(f"v_mov_b32 v{t1}, 0x3f800000")
        A(f"v_cndmask_b32 v{RB+4+i}, v{RB+4+i}, v{t1}, vcc")
    A(f"ds_write_b128 v{L16}, v[{RB+4}:{RB+7}] offset:{LDS_SEL}")
    A(f"s_lshl_b32 s{T+17}, s{S_WAVE}, 10")
    A(f"s_add_u32 s{S_VM}, s{S_VM}, s{T+17}"); A(f"s_addc_u32 s{S_VM+1}, s{S_VM+1}, 0")
    cval = np_f32_bits(128 ** -0.5 * math.log2(math.e))
    A(f"s_mov_b32 s{S_C}, {cval:#x}"); A(f"s_mov_b32 s{S_C+1}, {cval:#x}")
    A(f"s_mov_b32 s{S_QMASK}, 0x00ff00ff"); A(f"s_mov_b32 s{S_QMASK+1}, 0x00ff00ff")
    Z = RB
    for i in range(4): A(f"v_mov_b32 v{Z+i}, 0")
    CI = 8
    for i in range(16):
        A(f"s_waitcnt vmcnt({8 * (depth - 1)})")
        p = order[i]
        nt = 2 if p[0] == "v" else 4
        for t in range(nt): tr_octet(A, OCT[(p, t)], i % 4, (TRV if p[0] == "v" else TRA) + t)
        if depth == 4: A("s_waitcnt lgkmcnt(0)")
        else: A(f"s_waitcnt lgkmcnt({min(15, 4 * nt)})")
        if i == CI:
            if confirm: confirm()
            A(f"global_store_dwordx4 v{MEMW}, v[{Z}:{Z+3}], s[{S_PL0}:{S_PL0+1}]")
            A(f"global_store_dwordx4 v{MEMW}, v[{Z}:{Z+3}], s[{S_PL1}:{S_PL1+1}]")
            A(f"global_store_dwordx2 v{QST}, v[{Z}:{Z+1}], s[{S_Q0}:{S_Q0+1}]")
        dma_piece(order[i + depth], (i + depth) % 4)
        if i == CI + depth:
            A(f"s_lshl_b32 s{T+17}, s{S_RANK}, 4"); A(f"s_lshl_b32 s{T+18}, s{S_WAVE}, 2"); A(f"s_add_u32 s{T+17}, s{T+17}, s{T+18}"); A(f"s_add_u32 s{T+17}, s{T+17}, {TINITF}")
            A(f"v_mov_b32 v{t1}, s{T+17}")
            set_flag(A, S_WS, 0, t1, t0, wait="s_nop 0")
    for i in range(16 + depth, 20):
        A("s_waitcnt lgkmcnt(0)")
        dma_piece(order[i], i % 4)
    if stampw: stampw(1)
    if early_l: A(f"s_branch {early_l}")
    if not standalone:
        A(f"v_lshrrev_b32 v{t1}, 2, v{ln}"); A(f"v_lshlrev_b32 v{t1}, 8, v{t1}"); A(f"v_and_b32 v{t2}, 3, v{ln}"); A(f"v_lshl_add_u32 v{t1}, v{t2}, 2, v{t1}")
        wait_flags(A, S_KVF, t1, 8, fail_label, t0, sleep=0)
    A(f"s_lshl_b32 s{T+17}, s{S_WAVE}, 11")
    A(f"s_add_u32 s{S_KXB}, s{T+17}, {LDS_KX}")
    A(f"s_mov_b32 m0, s{S_KXB}")
    A("s_nop 0")
    A(f"global_load_lds_dwordx4 v{L16}, s[{S_KX}:{S_KX+1}] sc1")
    A(f"global_load_lds_dwordx4 v{L16}, s[{S_KX}:{S_KX+1}] offset:1024 sc1")
    A(f"global_load_dwordx4 v[{RF}:{RF+3}], v{L16}, s[{S_VX}:{S_VX+1}] sc1")
    A(f"global_load_dwordx4 v[{RF+4}:{RF+7}], v{L16}, s[{S_VX}:{S_VX+1}] offset:1024 sc1")
    A(f"global_load_dwordx4 v[{RC}:{RC+3}], v{M0A}, s[{T+8}:{T+9}]")
    A(f"global_load_dwordx4 v[{RC+4}:{RC+7}], v{M0A}, s[{T+8}:{T+9}] offset:512")
    A(f"v_lshrrev_b32 v{t1}, 1, v{L16}"); A(f"v_add_u32 v{t1}, {TINITF}, v{t1}")
    A(f"global_load_dwordx2 v[{RD}:{RD+1}], v{t1}, s[{S_WS}:{S_WS+1}] sc1")
    A("s_waitcnt vmcnt(7)")
    for i in range(4):
        for t in range(4): tr_octet(A, ("v", RB + 8 * t), i, TRA + t)
        A("s_waitcnt lgkmcnt(0)")
        for r in range(8): A(f"ds_write_b128 v{WL}, v[{RB+4*r}:{RB+4*r+3}] offset:{i*8192 + r*1024}")
    LI = A.newlabel("Lti")
    A("s_waitcnt vmcnt(0)")
    A(f"v_cmp_ne_u32 vcc, s{S_NONCE}, v{RD}"); A(f"v_cmp_ne_u32 s[{T+18}:{T+19}], s{S_NONCE}, v{RD+1}")
    A(f"s_or_b64 vcc, vcc, s[{T+18}:{T+19}]"); A(f"s_cbranch_scc0 {LI}")
    A(f"v_lshrrev_b32 v{t1}, 2, v{L16}"); A(f"v_add_u32 v{t1}, {TINITF}, v{t1}")
    wait_flags(A, S_WS, t1, 64, fail_label, t0)
    A(f"v_add_u32 v{t1}, 256, v{t1}")
    wait_flags(A, S_WS, t1, 64, fail_label, t0)
    A.label(LI)
    A("s_waitcnt vmcnt(0) lgkmcnt(0)")
    for i in range(4):
        A(f"v_mov_b32 v{RA+i}, v{RC+i}"); A(f"v_mov_b32 v{RA+16+i}, v{RC+4+i}")
    A(f"s_mov_b32 s{S_STEP}, 0")
    A(f"s_mov_b32 s{S_SPIN}, 0")
    A(f"s_mov_b32 s{S_TAG}, 0")
    A(f"s_mov_b32 s{S_CKM}, 0"); A(f"s_mov_b64 s[{S_BM}:{S_BM+1}], 0")
    A(f"s_mov_b32 s{S_KXR}, {LDS_KX}"); A(f"s_lshr_b32 s{S_MR1}, s{T+13}, 9")
    A(f"s_mov_b32 s{S_VMI}, 0")
    def wl(dst, p, t, r):
        return f"ds_read_b128 v[{dst+4*r}:{dst+4*r+3}], v{WL} offset:{LSLOT[p]*8192 + t*2048 + r*1024}"
    def wl2(dst, p, t): return [wl(dst, p, t, 0), wl(dst, p, t, 1)]
    def prefetch_qk():
        for d, p, t in ((RB, ("m", 1), 0), (RB + 8, ("m", 1), 1), (RB + 16, ("m", 2), 0), (RB + 24, ("m", 2), 1), (RE + 8, ("m", 1), 2), (RE, ("m", 1), 3)):
            for x in wl2(d, p, t): A(x)
    def zero_acc():
        for i in range(0, 16, 2): A(f"v_mov_b64 v[{RC+i}:{RC+i+1}], 0")
        for i in range(0, 8, 2): A(f"v_mov_b64 v[{RD+i}:{RD+i+1}], 0")
    prefetch_qk(); zero_acc()
    if stampw: A("s_waitcnt lgkmcnt(0)"); stampw(2)
    if timing:
        A(f"s_memtime s[{S_T0}:{S_T0+1}]"); A("s_waitcnt lgkmcnt(0)")
        for k in range(NST): A(f"s_mov_b32 s{80+k}, 0"); A(f"s_mov_b64 s[{64+2*k}:{65+2*k}], s[{S_T0}:{S_T0+1}]")
        A("s_mov_b32 s88, 0")
    A("s_barrier")
    LOOP = A.newlabel("Lteam"); FIN = A.newlabel("Lfin")
    ENTER = A.newlabel("Lent"); RETRY = A.newlabel("Lretry")
    CK, CK2 = RA + 12, RA + 13
    VP = RF
    A(f"s_branch {ENTER}")
    A.label(RETRY)
    A("s_nop 5")
    for r in (RC, RC + 2, RC + 4, RC + 6): A(f"v_mov_b64 v[{r}:{r+1}], 0")
    A(f"s_add_u32 s{S_SPIN}, s{S_SPIN}, 1"); A(f"s_cmp_gt_u32 s{S_SPIN}, 200000"); A(f"s_cbranch_scc1 {fail_label}")
    A.raw(".p2align 3")
    A.label(LOOP)
    A(f"global_load_dwordx4 v[{RA}:{RA+3}], v{QLD}, s[{S_Q0}:{S_Q0+1}] sc1")
    if bwith: A(f"global_load_dwordx4 v[{RA+16}:{RA+19}], v{QLD}, s[{S_Q1}:{S_Q1+1}] sc1")
    A(f"s_waitcnt vmcnt({qdepth-1+bwith})")
    A.label(ENTER)
    def wsrc(mat, slot, t):
        p = (mat, slot)
        if p in LSLOT:
            m = {(1, 0): RB, (1, 1): RB + 8, (2, 0): RB + 16, (2, 1): RB + 24, (1, 2): RE + 8, (1, 3): RE, (2, 2): RB, (2, 3): RB + 8}
            return v(m[(slot, t)], 8)
        pre, b = OCT[(p, t)]
        return rng(pre, b, 8)
    def smf(acc, slot, src):
        A(f"v_smfmac_f32_16x16x64_bf16 v[{acc}:{acc+3}], v[{RA+4*slot}:{RA+4*slot+3}], {src}, v{IDX}")
    def qk(t, slot, *extra):
        smf(RC + 4 * t, slot, wsrc("m", slot, t))
        for x in extra: A(x)
    vlist = [(sl, t) for sl in (0, 4, 1, 2, 3, 5, 6, 7) for t in range(2)]
    def vv(n, *extra):
        ex = list(extra)
        for _ in range(n):
            sl, t = vlist.pop(0)
            smf(RD + 4 * t, sl, wsrc("v", sl, t))
            if ex: A(ex.pop(0))
        for x in ex: A(x)
    def mr(i): return f"ds_read_b128 v[{RA+4*i}:{RA+4*i+3}], v{MR1+(i&3)-1} offset:{LDS_MEM + (i>>2)*4096}"
    def add(d, x, y): return f"v_add_f32 v{d}, v{x}, v{y}"
    def cvt(d, x): return f"v_cvt_pk_bf16_f32 v{d}, v{x}, v{x+1}"
    A(f"v_bitop3_b32 v{CK}, v{RA}, v{RA+2}, s{S_TAG} bitop3:0x7e")
    A(f"ds_write_b128 v{MEMW}, v[{RA}:{RA+3}] offset:{LDS_MEM}")
    qk(0, 0, f"v_and_b32 v{CK}, s{S_CKM}, v{CK}", f"v_cmp_ne_u32 vcc, 0, v{CK}")
    qk(1, 0, f"s_cbranch_vccnz {RETRY}")
    if timing == 2: A('s_memtime s[90:91]')
    if timing: A(f"s_lshl_b32 s96, s{S_SPIN}, 16"); A("s_add_u32 s80, s80, s96")
    A("s_waitcnt lgkmcnt(0)")
    accum()
    A("s_barrier")
    bl = f"global_load_dwordx4 v[{RA+16}:{RA+19}], v{QLD}, s[{S_Q1}:{S_Q1+1}] sc1"
    blm = f"s_mov_b64 exec, s[{S_BM}:{S_BM+1}]\n{bl}\ns_mov_b64 exec, -1"
    A(mr(1))
    if -1 in bpos: A(blm)
    qk(2, 0, mr(2)); qk(3, 0, mr(3))
    vv(2, f"s_add_u32 s{S_KX}, s{S_KX}, {REC_SZ}\ns_addc_u32 s{S_KX+1}, s{S_KX+1}, 0", "s_waitcnt lgkmcnt(2)")
    seqA = [(0, 1, [wl(RB, ("m", 2), 2, 0)]), (1, 1, [wl(RB, ("m", 2), 2, 1)]), (2, 1, [wl(RB + 8, ("m", 2), 3, 0)]), (3, 1, [wl(RB + 8, ("m", 2), 3, 1), "s_waitcnt lgkmcnt(5)"]),
            (0, 2, []), (1, 2, ["s_waitcnt lgkmcnt(4)"]), (0, 3, []), (1, 3, []), (2, 3, []), (3, 3, ["s_waitcnt lgkmcnt(0)"]), (2, 2, []), (3, 2, [])]
    for k, (t, sl, ex) in enumerate(seqA):
        qk(t, sl, *(ex + ([blm] if k in bpos else [])))
    CB = RA + 28
    RETB = A.newlabel("Lretb"); OKB = A.newlabel("Lokb")
    A(f"s_waitcnt vmcnt({bwait})")
    A.label(RETB)
    A(f"v_bitop3_b32 v{CB}, v{RA+16}, v{RA+18}, s{S_TAG} bitop3:0x7e")
    A(f"ds_write_b128 v{MEMW}, v[{RA+16}:{RA+19}] offset:{LDS_MEM + 4096}")
    A(f"v_and_b32 v{CB}, s{S_CKM}, v{CB}")
    A(f"v_cmp_ne_u32 vcc, 0, v{CB}")
    A(f"s_cbranch_vccz {OKB}")
    A(bl)
    if timing: A("s_add_u32 s80, s80, 0x100")
    A(f"s_add_u32 s{S_SPIN}, s{S_SPIN}, 1"); A(f"s_cmp_gt_u32 s{S_SPIN}, 200000"); A(f"s_cbranch_scc1 {fail_label}")
    A("s_waitcnt vmcnt(1)")
    A(f"s_branch {RETB}")
    A.label(OKB)
    qk(0, 4, f"s_xor_b32 s{S_TAG}, s{S_TAG}, 1", f"s_mov_b32 s{S_CKM}, 1", f"s_mov_b64 s[{S_BM}:{S_BM+1}], -1")
    qk(1, 4, "s_waitcnt lgkmcnt(0)")
    A("s_barrier")
    A(mr(5))
    qk(2, 4, mr(6), f"v_add_u32 v{MR1}, s{S_KXR}, v{L16}"); qk(3, 4, mr(7), f"s_xor_b32 m0, s{S_KXB}, 0x6000")
    KXA = MR1
    def kx(i): return f"ds_read_b128 v[{RB+4*i}:{RB+4*i+3}], v{KXA} offset:{i*1024}"
    kvops = [f"global_load_lds_dwordx4 v{L16}, s[{S_KX}:{S_KX+1}] sc1", f"global_load_lds_dwordx4 v{L16}, s[{S_KX}:{S_KX+1}] offset:1024 sc1",
             f"s_mov_b32 m0, {LDS_MISC + 64}\ns_nop 0\nglobal_load_lds_dword v{SPARE}, s[{S_VX}:{S_VX+1}] sc1"]
    vv(2, kvops[0], kvops[1] + "\ns_waitcnt lgkmcnt(2)")
    PK = RE
    qk(0, 5, kx(0)); qk(1, 5, kx(1), "s_waitcnt lgkmcnt(3)")
    qk(0, 6, kx(2)); qk(1, 6, kx(3), "s_waitcnt lgkmcnt(4)")
    qk(0, 7, kx(4)); qk(1, 7, kx(5))
    qk(2, 5, kvops[2]); qk(3, 5, kx(6), f"s_add_u32 s{S_VX}, s{S_VX}, {REC_SZ}", f"s_addc_u32 s{S_VX+1}, s{S_VX+1}, 0")
    qk(2, 6, kx(7), add(RC, RC, RC + 2))
    qk(3, 6, add(RC + 1, RC + 1, RC + 3), add(RC + 4, RC + 4, RC + 6))
    qk(2, 7, add(RC + 5, RC + 5, RC + 7), cvt(PK, RC))
    qk(3, 7, cvt(PK + 1, RC + 4), f"ds_write2st64_b32 v{XW}, v{PK}, v{PK+1} offset0:0 offset1:2")
    vv(vsplit[0])
    A(add(RC + 8, RC + 8, RC + 10)); A(add(RC + 9, RC + 9, RC + 11))
    A(add(RC + 12, RC + 12, RC + 14)); A(add(RC + 13, RC + 13, RC + 15))
    A(cvt(PK + 2, RC + 8)); A(cvt(PK + 3, RC + 12))
    A(f"ds_write2st64_b32 v{XW}, v{PK+2}, v{PK+3} offset0:4 offset1:6")
    ex = [f"global_store_dwordx4 v{L16}, v[{PK}:{PK+3}], s[{S_KM}:{S_KM+1}] sc1"]
    vv(vsplit[1], *ex)
    stamp(1)
    A("s_waitcnt lgkmcnt(0)")
    A("s_barrier")
    xr = []
    for kb in range(4):
        xr.append(f"ds_read_b64_tr_b16 v[{RE+4*kb}:{RE+4*kb+1}], v{XR0} offset:{kb*1024}")
        xr.append(f"ds_read_b64_tr_b16 v[{RE+4*kb+2}:{RE+4*kb+3}], v{XR1} offset:{kb*1024}")
    for x in xr: A(x)
    ex = []
    if not (nopub & 2): ex += [f"v_mov_b32 v{RC+15}, s{S_NONCE}", f"s_mov_b64 exec, 1\nglobal_store_dword v{L16}, v{RC+15}, s[{S_KMF}:{S_KMF+1}] sc1\ns_mov_b64 exec, -1"]
    vv(vsplit[2], *ex)
    A(f"s_cmp_eq_u32 s{S_STEP}, {nsteps-1}"); A(f"s_cbranch_scc1 {FIN}")
    vrest = list(vlist)
    S0, S1, S2 = RC, RC + 4, RC + 8
    def mf(d, a_, b_, first, *extra):
        A(f"v_mfma_f32_16x16x32_bf16 v[{d}:{d+3}], v[{a_}:{a_+3}], v[{b_}:{b_+3}], " + ("0" if first else f"v[{d}:{d+3}]"))
        for x in extra: A(x)
    for kb in range(4):
        A(f"s_waitcnt lgkmcnt({6-2*kb})")
        mf(S0, RE + 4 * kb, RE + 4 * kb, kb == 0)
    for kb in range(4): mf(S1, RB + 4 * kb, RE + 4 * kb, kb == 0)
    M_, T_, R_ = RC + 12, RC + 13, RC + 14
    ONES, SUM = RB, RB + 4
    def z2(r): return f"v_mov_b64 v[{r}:{r+1}], 0"
    g2 = [[f"v_mov_b32 v{ONES}, 0x3f803f80", f"v_mov_b32 v{ONES+1}, 0x3f803f80"], [f"v_mov_b32 v{ONES+2}, 0x3f803f80", f"v_mov_b32 v{ONES+3}, 0x3f803f80"],
          [z2(RB + 8), z2(RB + 10)], [z2(RB + 12), f"v_max3_f32 v{M_}, v{S0}, v{S0+1}, v{S1}"]]
    for kb in range(4): mf(S2, RB + 16 + 4 * kb, RE + 4 * kb, kb == 0, *g2[kb])
    stamp(2)
    vv(vsplit[3], f"v_max3_f32 v{M_}, v{M_}, v{S1+1}, v{S1+2}", z2(RB + 14), z2(RB + 16), z2(RB + 18))
    assert not vlist
    A(f"v_max3_f32 v{M_}, v{M_}, v{S1+3}, v{S2}")
    A(f"v_max3_f32 v{M_}, v{M_}, v{S2+1}, v{S2+2}")
    A(f"v_max_f32 v{T_}, v{M_}, v{S2+3}")
    A(f"v_max_f32 v{M_}, v{M_}, v{S2+3}")
    A(wl(RA, ("o", 1, 0), 0, 0)); A(wl(RA, ("o", 1, 0), 0, 1))
    A(f"v_permlane32_swap_b32 v{M_}, v{T_}")
    A(f"v_max_f32 v{R_}, v{M_}, v{T_}")
    A(f"v_max_f32 v{M_}, v{M_}, v{T_}")
    A(cvt(RD, RD)); A(cvt(RD + 1, RD + 2))
    A(f"v_permlane16_swap_b32 v{M_}, v{R_}")
    A(f"v_max_f32 v{M_}, v{M_}, v{R_}")
    A(f"v_mul_f32 v{M_}, s{S_C}, v{M_}")
    for r in (S1, S1 + 2, S2, S2 + 2, S0):
        A(f"v_pk_fma_f32 v[{r}:{r+1}], v[{r}:{r+1}], s[{S_C}:{S_C+1}], v[{M_}:{M_+1}] op_sel_hi:[1,0,0] neg_lo:[0,0,1] neg_hi:[0,0,1]")
    PX, PM = RE, RE + 4
    o10 = lambda t, r: wl(RA + 8 * t, ("o", 1, 0), t, r)
    early = [o10(1, 0), o10(1, 1), o10(2, 0), o10(2, 1), o10(3, 0), o10(3, 1)] if pfe else []
    for r in (S1, S1 + 1, S1 + 2, S1 + 3, S2, S2 + 1, S2 + 2, S2 + 3):
        A(f"v_exp_f32 v{r}, v{r}")
        if early: A(early.pop(0))
    if pfe: o10 = lambda t, r: "; -"
    A(cvt(PX, S1)); A(cvt(PX + 1, S1 + 2)); A(cvt(PX + 2, S2)); A(cvt(PX + 3, S2 + 2))
    OA = RE + 8
    A(f"v_exp_f32 v{S0}, v{S0}")
    A(f"v_exp_f32 v{S0+1}, v{S0+1}")
    mf(SUM, ONES, PX, True, cvt(RD + 2, RD + 4), cvt(PM, S0), o10(1, 0))
    mf(OA, RF, PX, True, cvt(PM + 1, S0), f"v_mov_b32 v{ONES+1}, 0", o10(1, 1))
    mf(OA + 4, RF + 4, PX, True, cvt(RD + 3, RD + 6), o10(2, 0))
    def mf16(d, a_, *extra):
        A(f"v_mfma_f32_16x16x16_bf16 v[{d}:{d+3}], v[{a_}:{a_+1}], v[{PM}:{PM+1}], v[{d}:{d+3}]")
        for x in extra: A(x)
    mf16(SUM, ONES, o10(2, 1), z2(RB + 20))
    mf16(OA, RD, wl(RC, ("o", 1, 1), 2, 0), z2(RB + 22))
    mf16(OA + 4, RD + 2, wl(RC, ("o", 1, 1), 2, 1))
    if not (nopub & 1): A(f"global_store_dwordx4 v{L16}, v[{RD}:{RD+3}], s[{S_VM}:{S_VM+1}] sc1")
    A(o10(3, 0)); A(o10(3, 1))
    A(f"v_rcp_f32 v{SUM}, v{SUM}")
    if not nokv:
        A(f"global_load_dwordx4 v[{RF}:{RF+3}], v{L16}, s[{S_VX}:{S_VX+1}] sc1")
        A(f"global_load_dwordx4 v[{RF+4}:{RF+7}], v{L16}, s[{S_VX}:{S_VX+1}] offset:1024 sc1")
    for i in range(0, 4, 2):
        A(f"v_pk_mul_f32 v[{OA+i}:{OA+i+1}], v[{OA+i}:{OA+i+1}], v[{SUM}:{SUM+1}] op_sel_hi:[1,0]")
    A(cvt(OA, OA)); A(cvt(OA + 1, OA + 2))
    A(f"ds_write_b64 v{OW}, v[{OA}:{OA+1}]")
    for i in range(4, 8, 2):
        A(f"v_pk_mul_f32 v[{OA+i}:{OA+i+1}], v[{OA+i}:{OA+i+1}], v[{SUM}:{SUM+1}] op_sel_hi:[1,0]")
    A(cvt(OA + 2, OA + 4)); A(cvt(OA + 3, OA + 6))
    A(f"ds_write_b64 v{OW}, v[{OA+2}:{OA+3}] offset:32")
    stamp(3)
    for r in (RB, RB + 2, RB + 4, RB + 6): A(z2(r))
    A("s_waitcnt lgkmcnt(0)")
    A("s_barrier")
    OP = RE
    A(f"ds_read_b128 v[{OP}:{OP+3}], v{OR_}")
    A(f"ds_read_b128 v[{OP+4}:{OP+7}], v{OR_} offset:128")
    for i in range(24, 32, 2): A(f"v_mov_b64 v[{RB+i}:{RB+i+1}], 0")
    def osrc(u, j, i):
        p = ("o", u, j)
        if p in LSLOT:
            m = {(0, 0): RA, (0, 1): RA + 8, (0, 2): RA + 16, (0, 3): RA + 24, (1, 2): RC, (1, 3): RC + 8, (1, 0): RD, (1, 1): RA + 16}
            return v(m[(j, i)], 8)
        pre, b = OCT[(p, i)]
        return rng(pre, b, 8)
    def wo(u, j, i, *extra):
        acc = RB + 16 * u + 4 * i
        A(f"v_smfmac_f32_16x16x64_bf16 v[{acc}:{acc+3}], v[{OP+4*j}:{OP+4*j+3}], {osrc(u, j, i)}, v{IDX}")
        for x in extra: A(x)
    PS = RE + 8
    def f0(u, i): acc = RB + 16 * u + 4 * i; return add(acc, acc, acc + 2)
    def f1(u, i): acc = RB + 16 * u + 4 * i; return add(acc + 1, acc + 1, acc + 3)
    def pack(u, i): return cvt(PS + 4 * u + i, RB + 16 * u + 4 * i)
    tag0 = f"v_and_or_b32 v{PS}, v{PS}, -2, s{S_TAG}"; tag1 = f"v_and_or_b32 v{PS+4}, v{PS+4}, -2, s{S_TAG}"
    st0 = f"global_store_dwordx4 v{PST}, v[{PS}:{PS+3}], s[{S_P0}:{S_P0+1}]"; st1 = f"global_store_dwordx4 v{PST}, v[{PS+4}:{PS+7}], s[{S_P1}:{S_P1+1}]"
    o11 = lambda d, t, r: wl(d, ("o", 1, 1), t, r)
    A("s_waitcnt lgkmcnt(1)")
    wo(0, 0, 0, "s_waitcnt lgkmcnt(0)"); wo(0, 1, 0, o11(RC + 8, 3, 0)); wo(0, 0, 1, o11(RC + 8, 3, 1)); wo(0, 1, 1, o11(RD, 0, 0)); wo(0, 0, 2, o11(RD, 0, 1)); wo(0, 1, 2)
    wo(0, 0, 3, f0(0, 0), f1(0, 0)); wo(0, 1, 3, pack(0, 0), f0(0, 1))
    wo(1, 0, 2, f1(0, 1), o11(RA + 16, 1, 0), pack(0, 1)); wo(1, 1, 2, f0(0, 2), o11(RA + 16, 1, 1), f1(0, 2))
    wo(1, 0, 3, pack(0, 2), f0(0, 3), "s_waitcnt lgkmcnt(2)"); wo(1, 1, 3, f1(0, 3), tag0)
    wo(1, 0, 0, pack(0, 3), st0); wo(1, 1, 0, f0(1, 2), f1(1, 2))
    wo(1, 0, 1, f0(1, 3), f1(1, 3), "s_waitcnt lgkmcnt(0)"); wo(1, 1, 1, pack(1, 2), pack(1, 3))
    for x in (f0(1, 0), f1(1, 0), pack(1, 0), tag1, f0(1, 1), f1(1, 1), pack(1, 1)): A(x)
    A(st1)
    stamp(4)
    NOTRED = A.newlabel("Lnr")
    A(f"s_cmp_lg_u32 s{S_WAVE}, 0"); A(f"s_cbranch_scc1 {NOTRED}")
    SEL, DR = RA + 4, RA + 8
    A(f"ds_read_b128 v[{SEL}:{SEL+3}], v{L16} offset:{LDS_SEL}")
    def rdelay(na, nb):
        lo, hi = min(na, nb), max(na, nb)
        if lo: A(f"s_sleep {lo}")
        if hi > lo:
            L = A.newlabel("Lrd")
            A(f"s_cmp_lt_u32 s{S_RANK}, 16"); A(f"s_cbranch_scc{1 if na < nb else 0} {L}")
            A(f"s_sleep {hi - lo}")
            A.label(L)
    def tail_a():
        for x in wl2(RE + 8, ("m", 1), 2) + wl2(RE, ("m", 1), 3): A(x)
        zero_acc()
        A(f"s_xor_b32 s{S_KXB}, s{S_KXB}, 0x6000"); A(f"s_xor_b32 s{S_KXR}, s{S_KXR}, 0x6000")
        A(f"v_add_u32 v{MR1}, s{S_MR1}, v{L16}")
        A(f"s_add_u32 s{S_KM}, s{S_KM}, {REC_SZ}"); A(f"s_addc_u32 s{S_KM+1}, s{S_KM+1}, 0")
        A(f"s_add_u32 s{S_VM}, s{S_VM}, {REC_SZ}"); A(f"s_addc_u32 s{S_VM+1}, s{S_VM+1}, 0")
    def tail_b():
        for d, p, t in ((RB, ("m", 1), 0), (RB + 8, ("m", 1), 1), (RB + 16, ("m", 2), 0), (RB + 24, ("m", 2), 1)):
            for x in wl2(d, p, t): A(x)
        A(f"s_add_u32 s{S_STEP}, s{S_STEP}, 1")
        A(f"s_add_u32 s{S_KMF}, s{S_KMF}, 16"); A(f"s_addc_u32 s{S_KMF+1}, s{S_KMF+1}, 0")
        A(f"s_mov_b32 s{S_SPIN}, 0")
    tail_a()
    rdelay(d1 - dA, d1)
    A(f"s_mov_b32 s{S_SPIN}, 0")
    def ploads():
        for u in range(8):
            b = S_PL0 if u < 4 else S_PL1
            A(f"global_load_dwordx4 v[{RB+4*u}:{RB+4*u+3}], v{L16}, s[{b}:{b+1}] offset:{(u%4)*1024} sc1")
    for _ in range(pdepth - 1): ploads()
    PP = A.newlabel("Lp")
    A.label(PP)
    stamp(5)
    ploads()
    A(f"s_add_u32 s{S_SPIN}, s{S_SPIN}, 1"); A(f"s_cmp_gt_u32 s{S_SPIN}, 200000"); A(f"s_cbranch_scc1 {fail_label}")
    A("s_waitcnt lgkmcnt(0)")
    for u in range(0, 8, 2):
        A(f"s_waitcnt vmcnt({8*pdepth-2-u})")
        A(f"v_bitop3_b32 v{CK2 if u > 1 else CK}, v{RB+4*u}, v{RB+4*u+4}, s{S_TAG} bitop3:0x7e")
        mf(DR, RB + 4 * u, SEL, u == 0)
        if u > 1: A(f"v_or_b32 v{CK}, v{CK}, v{CK2}")
        mf(DR, RB + 4 * u + 4, SEL, False)
    A(f"v_and_b32 v{CK}, 1, v{CK}")
    A(f"v_cmp_ne_u32 vcc, 0, v{CK}")
    A(f"s_cbranch_vccnz {PP}")
    if timing: A(f"s_add_u32 s80, s80, s{S_SPIN}")
    A(cvt(DR, DR)); A(cvt(DR + 1, DR + 2))
    A(f"v_and_or_b32 v{DR}, v{DR}, -2, s{S_TAG}")
    if qmask: A(f"s_mov_b64 exec, s[{S_QMASK}:{S_QMASK+1}]")
    A(f"global_store_dwordx2 v{QST}, v[{DR}:{DR+1}], s[{S_Q0}:{S_Q0+1}]")
    if qmask: A("s_mov_b64 exec, -1")
    def earlyflag(wait):
        L = A.newlabel("Lef")
        A(f"s_cmp_lg_u32 s{S_STEP}, {nsteps-2}"); A(f"s_cbranch_scc1 {L}")
        set_flag(A, S_KMF, 16, L16, RA + 12, wait=wait)
        A.label(L)
    earlyflag("s_nop 0")
    stamp(6)
    A("s_barrier")
    def tailwork(): tail_a(); tail_b()
    def qpre():
        for _ in range(qdepth - 1):
            A(f"global_load_dwordx4 v[{RA}:{RA+3}], v{QLD}, s[{S_Q0}:{S_Q0+1}] sc1")
            if qgap: A(f"s_sleep {qgap}")
    tail_b()
    rdelay(d3, max(0, d3 - dA))
    stamp(7)
    qpre()
    A(f"s_branch {LOOP}")
    A.label(NOTRED)
    stamp(5)
    earlyflag("s_waitcnt vmcnt(2)")
    tailwork()
    if stampw:
        LS = A.newlabel("Lss")
        A(f"s_cmp_lg_u32 s{S_RANK}, 0"); A(f"s_cbranch_scc1 {LS}"); A(f"s_cmp_lg_u32 s{S_WAVE}, 1"); A(f"s_cbranch_scc1 {LS}")
        A("s_memrealtime s[92:93]"); A("s_memtime s[94:95]"); A("s_waitcnt lgkmcnt(0)")
        A(f"s_lshl_b32 s93, s{S_STEP}, 3"); A(f"s_add_u32 s93, s93, {TST_OFF + 0x4000}")
        A(f"v_mov_b32 v{RA+4}, s92"); A(f"v_mov_b32 v{RA+5}, s94"); A(f"v_mov_b32 v{RA+6}, s93"); A("s_mov_b64 exec, 1")
        A(f"global_store_dwordx2 v{RA+6}, v[{RA+4}:{RA+5}], s[{S_WS}:{S_WS+1}]"); A("s_mov_b64 exec, -1")
        A.label(LS)
    if not standalone:
        A(f"s_add_u32 s{T}, s{S_STEP}, 2"); A(f"s_min_u32 s{T}, s{T}, 63"); A(f"s_lshl_b32 s{T}, s{T}, 2")
        A(f"v_lshlrev_b32 v{RA+4}, 4, v{L16}"); A(f"v_add_u32 v{RA+4}, s{T}, v{RA+4}")
        wait_flags(A, S_KVF, RA + 4, 2, fail_label, RA + 5)
        A(f"s_mov_b32 s{S_SPIN}, 0")
    A("s_barrier")
    stamp(6)
    rdelay(d2, max(0, d2 - dA))
    stamp(7)
    qpre()
    A(f"s_branch {LOOP}")
    A.label(FIN)
    vlist.extend(vrest); vv(len(vrest))
    A("s_nop 7")
    for x in (cvt(RD, RD), cvt(RD + 1, RD + 2), cvt(RD + 2, RD + 4), cvt(RD + 3, RD + 6)): A(x)
    A(f"global_store_dwordx4 v{L16}, v[{RD}:{RD+3}], s[{S_VM}:{S_VM+1}] sc1")
    A("s_waitcnt vmcnt(0)")
    A("s_mov_b64 exec, 1")
    A(f"v_mov_b32 v{RC+15}, s{S_NONCE}")
    A(f"global_store_dword v{L16}, v{RC+15}, s[{S_KMF}:{S_KMF+1}] offset:16 sc1")
    A("s_mov_b64 exec, -1")
    if timing:
        A(f"s_memtime s[{T}:{T+1}]"); A("s_waitcnt lgkmcnt(0)")
        A(f"s_sub_u32 s{T}, s{T}, s{S_T0}")
        A(f"s_mov_b32 s89, s{T}")
        A("s_mov_b64 exec, 1")
        LT = A.newlabel("Lt")
        A(f"s_cmp_lg_u32 s{S_RANK}, 5"); A(f"s_cbranch_scc1 {LT}")
        for k in range(12): A(f"v_mov_b32 v{RB+k}, s{80+k}")
        A(f"s_lshl_b32 s{T+2}, s{S_WAVE}, 6")
        A(f"s_add_u32 s{T+2}, s{T+2}, {TST_OFF + tslot*256}")
        A(f"v_mov_b32 v{RD+1}, s{T+2}")
        A(f"global_store_dwordx4 v{RD+1}, v[{RB}:{RB+3}], s[{S_WS}:{S_WS+1}]")
        A(f"global_store_dwordx4 v{RD+1}, v[{RB+4}:{RB+7}], s[{S_WS}:{S_WS+1}] offset:16")
        A(f"global_store_dwordx4 v{RD+1}, v[{RB+8}:{RB+11}], s[{S_WS}:{S_WS+1}] offset:32")
        A.label(LT)
        A("s_mov_b64 exec, -1")
    A("s_waitcnt vmcnt(0)")
    A(f"s_branch {done_label}")

def np_f32_bits(x):
    import struct
    return struct.unpack("<I", struct.pack("<f", x))[0]

def gen_wait_flag(A, sbase, off, expect, fail_label, t0, t1):
    L = A.newlabel("Lw")
    A(f"s_mov_b32 s{S_SPIN}, 0")
    A(f"v_mov_b32 v{t1}, {off}")
    A.label(L)
    A(f"global_load_dword v{t0}, v{t1}, s[{sbase}:{sbase+1}] sc1")
    A(f"s_add_u32 s{S_SPIN}, s{S_SPIN}, 1"); A(f"s_cmp_gt_u32 s{S_SPIN}, 400000"); A(f"s_cbranch_scc1 {fail_label}")
    A("s_waitcnt vmcnt(0)")
    A(f"v_cmp_gt_u32 vcc, {expect}, v{t0}") if expect <= 64 else (A(f"v_cmp_gt_u32 vcc, {expect:#x}, v{t0}"))
    A(f"s_cbranch_vccnz {L}")
```

```python
import sys
from asm import *
from layout import *
from team import gen_team, S_WS, S_DBG, S_RANK, S_WAVE, S_T, S_SPIN
from common import *
from pre import gen_mod, gen_ln1
from flags import wait_flags
from qkv import gen_qkv_setup, gen_unit
from attn import gen_attn
from rz import gen_red, gen_z
from go import gen_g, gen_o, gen_o_weights
NAME = "adaLN_cond__memory_aug_recurrent_mem_tr__mixer_gmlp__prompt_kernel"
def build(timing=0, stamps=False, depth=3, wnt='', tail=False, diag=None, hold=2, tk={}, linger=0, warm=5, fake=False):
    A = Asm()
    F, D = "Lfail", "Ldone"
    T = S_T
    S_W, S_B, S_NEXT = 96, 3, 94
    def stampw(k, r=254):
        if stamps:
            L = A.newlabel("Lst")
            A(f"s_cmp_lg_u32 s{S_WAVE}, 0"); A(f"s_cbranch_scc1 {L}")
            A("s_memrealtime s[92:93]"); A("s_waitcnt lgkmcnt(0)")
            A(f"s_lshl_b32 s93, s{S_WIDX}, 5"); A(f"s_add_u32 s93, s93, {TST_OFF + 4*k}")
            A(f"v_mov_b32 v{r}, s92"); A(f"v_mov_b32 v{r+1}, s93"); A("s_mov_b64 exec, 1")
            A(f"global_store_dword v{r+1}, v{r}, s[{S_WS}:{S_WS+1}]"); A("s_mov_b64 exec, -1")
            A.label(L)
    gen_entry(A, 256, D)
    if stamps: A("s_memrealtime s[90:91]"); A("s_waitcnt lgkmcnt(0)"); A("s_mov_b32 s101, s90")
    gen_register(A, fake)
    A.label("Lstart")
    restore_tid(A)
    def conf(tv, lf=0x27FF0):
        def f():
            gen_confirm(A, "Lstart", F, tv, lf); stampw(5, tv)
        return f
    A(f"s_cmp_ge_u32 s{S_WIDX}, 32"); A("s_cbranch_scc1 Lworker")
    A(f"s_mov_b32 s{S_RANK}, s{S_WIDX}")
    gen_team(A, F, "Lteamdone", standalone=False, tslot=96, **{**dict(d1=3, d2=2, d3=0, dA=1, qdepth=3, qgap=1), **tk}, confirm=conf(56, 0x7A00), depth=depth, wnt=wnt, timing=timing, early_l=('Lend' if diag == 'teamonly' else None), stampw=(lambda k: stampw(k, 20)) if stamps else None)
    A.label("Lteamdone")
    restore_tid(A)
    stampw(3)
    if diag == "exit": A(f"s_branch Lend")
    A("s_branch Lidle" if linger & 1 else "s_branch Lend")
    A.label("Lworker")
    if diag == "teamonly": A(f"s_branch Lend")
    A(f"s_sub_u32 s{S_W}, s{S_WIDX}, 32")
    S_R, S_N = 95, 94
    A(f"s_mul_i32 s{T}, s{S_W}, 9363"); A(f"s_lshr_b32 s{T}, s{T}, 16")
    A(f"s_mul_i32 s{T+1}, s{T}, 7"); A(f"s_sub_u32 s{T+1}, s{S_W}, s{T+1}"); A(f"s_lshl_b32 s{T+1}, s{T+1}, 5"); A(f"s_add_u32 s{T}, s{T}, s{T+1}")
    A(f"s_mul_i32 s{S_RANK}, s{T}, 9363"); A(f"s_lshr_b32 s{S_RANK}, s{S_RANK}, 16")
    A(f"s_mul_i32 s{T+1}, s{S_RANK}, 7"); A(f"s_sub_u32 s{S_W}, s{T}, s{T+1}")
    A(f"s_cmp_lt_u32 s{S_W}, 2"); A("s_cbranch_scc1 Lp1")
    A(f"s_mul_i32 s{S_B}, s{S_RANK}, 5"); A(f"s_add_u32 s{S_B}, s{S_B}, s{S_W}"); A(f"s_sub_u32 s{S_B}, s{S_B}, 2")
    A(f"s_cmp_lt_u32 s{S_B}, 96"); A("s_cbranch_scc0 Lln1")
    gen_mod(A, S_B, confirm=conf(24), flag=True)
    A("s_branch Lp1")
    A.label("Lln1")
    A(f"s_sub_u32 s{S_B}, s{S_B}, 96"); A(f"s_lshl_b32 s{S_B}, s{S_B}, 2"); A(f"s_add_u32 s{S_B}, s{S_B}, s{S_WAVE}")
    def wm():
        conf(12)()
        A("v_and_b32 v12, 63, v0"); A("v_lshlrev_b32 v12, 6, v12"); A(f"v_add_u32 v12, {MOD_OFF + 32}, v12")
        wait_flags(A, S_WS, 12, 64, F, 13)
        stampw(6, 14)
    gen_ln1(A, S_B, wait_mod=wm, flag=True)
    A.label("Lp1")
    stampw(1)
    gen_qkv_setup(A)
    if hold:
        A(f"s_cmp_lt_u32 s{S_W}, {hold}"); A("s_cbranch_scc1 Lnohold")
        if warm & 4:
            A(f"s_cmp_lg_u32 s{S_W}, 4"); A("s_cbranch_scc1 Lnowarm")
            A(f"s_load_dwordx2 s[{T+12}:{T+13}], s[0:1], {KA['Wo']}")
            A("v_lshlrev_b32 v2, 6, v0"); A(f"s_lshl_b32 s{T+9}, s{S_RANK}, 17"); A(f"v_add_u32 v2, s{T+9}, v2")
            A("s_waitcnt lgkmcnt(0)")
            for i in range(8):
                A(f"global_load_dword v48, v2, s[{T+12}:{T+13}]")
                if i < 7: A(f"v_add_u32 v2, 16384, v2")
            A.label("Lnowarm")
        A(f"s_lshl_b32 s{T}, s{S_RANK}, 10"); A(f"s_add_u32 s{T}, s{T}, {QKVFLAG}")
        A("v_and_b32 v2, 3, v0"); A("v_lshlrev_b32 v2, 2, v2"); A(f"v_add_u32 v2, s{T}, v2")
        wait_flags(A, S_WS, 2, 4, F, 3, drain=True)
        A.label("Lnohold")
    A(f"s_cmp_lt_u32 s{S_W}, 4"); A("s_cbranch_scc0 Lp3a")
    A(f"s_lshr_b32 s{S_B}, s{S_W}, 1")
    A(f"s_bitcmp1_b32 s{S_W}, 0"); A("s_cbranch_scc1 Lp2")
    gen_unit(A, S_B, S_RANK, mats=("k", "q"), flags=True, fail=F, confirm=conf(20), split=True, warm=("q" if warm & 1 else None))
    A(f"s_cmp_lg_u32 s{S_W}, 0"); A("s_cbranch_scc1 Lp4")
    A(f"s_mov_b32 s{S_B}, 5"); A("s_branch Lp3")
    A.label("Lp2")
    gen_unit(A, S_B, S_RANK, mats=("v",), flags=True, fail=F, confirm=conf(20), split=True, warm=("o" if warm & 2 else None), st=(stampw if diag == "exit" else (lambda k, r: None)))
    stampw(6)
    A(f"s_add_u32 s{S_B}, s{S_B}, 6"); A("s_branch Lp3")
    A.label("Lp3a")
    A(f"s_sub_u32 s{S_B}, s{S_W}, 2")
    A.label("Lp3")
    gen_unit(A, S_B, S_RANK, mats=("k", "v", "q"), flags=True, fail=F, wfirst=False)
    A.label("Lp4")
    stampw(2)
    if diag == "exit": A(f"s_branch Lend")
    A(f"s_cmp_eq_u32 s{S_W}, 2"); A(f"s_cselect_b32 s{T}, 3, s{S_W}")
    A(f"s_cmp_eq_u32 s{S_W}, 3"); A(f"s_cselect_b32 s{T}, 2, s{T}")
    A(f"s_cmp_lt_u32 s{T}, 3"); A("s_cbranch_scc1 Llate")
    A(f"s_lshl_b32 s{S_W}, s{S_RANK}, 2"); A(f"s_add_u32 s{S_W}, s{S_W}, s{T}"); A(f"s_sub_u32 s{S_W}, s{S_W}, 3")
    A(f"s_cmp_lt_u32 s{S_W}, 64"); A("s_cbranch_scc0 Lnota")
    A(f"s_lshr_b32 s{S_RANK}, s{S_W}, 2"); A(f"s_and_b32 s{S_B}, s{S_W}, 3")
    gen_attn(A, S_RANK, S_B, 4, F, st=(stampw if tail else (lambda k, r=254: None)))
    stampw(3)
    if not (linger & 2): A("s_branch Lend")
    A.label("Lidle")
    A(f"v_mov_b32 v2, {YFLAG}")
    wait_flags(A, S_WS, 2, 1, F, 3, sleep=16, drain=True)
    A("s_branch Lend")
    A.label("Llate")
    A(f"s_mul_i32 s{S_W}, s{S_RANK}, 3"); A(f"s_add_u32 s{S_W}, s{S_W}, s{T}"); A(f"s_add_u32 s{S_W}, s{S_W}, 128")
    A.label("Lnota")
    S_OS, S_OQ = 94, 95
    A(f"s_and_b32 s{S_OQ}, s{S_W}, 3")
    A(f"s_sub_u32 s{S_OS}, s{S_W}, 64"); A(f"s_sub_u32 s{T}, s{S_W}, 128"); A(f"s_cmp_ge_u32 s{S_W}, 204"); A(f"s_cselect_b32 s{S_OS}, s{T}, s{S_OS}")
    A(f"s_lshr_b32 s{S_OS}, s{S_OS}, 2"); A(f"s_lshl_b32 s{S_OS}, s{S_OS}, 1")
    gen_o_weights(A, S_OQ)
    A(f"s_cmp_ge_u32 s{S_W}, 204"); A("s_cbranch_scc1 Lout")
    A(f"s_cmp_lt_u32 s{S_W}, 108"); A("s_cbranch_scc1 Lnotr")
    A(f"s_cmp_ge_u32 s{S_W}, 140"); A("s_cbranch_scc1 Lg1")
    A(f"s_sub_u32 s{S_B}, s{S_W}, 108"); A(f"s_and_b32 s{S_RANK}, s{S_B}, 7"); A(f"s_lshr_b32 s{S_B}, s{S_B}, 3")
    gen_red(A, S_RANK, S_B, 4, F, st=(stampw if tail else (lambda k, r=254: None)))
    stampw(3)
    A("s_branch Lout")
    A.label("Lnotr")
    A(f"s_sub_u32 s{S_RANK}, s{S_W}, 64"); A(f"s_cmp_ge_u32 s{S_RANK}, 22"); A(f"s_cselect_b32 s{S_B}, 1, 0"); A(f"s_cselect_b32 s{T}, 22, 0"); A(f"s_sub_u32 s{S_RANK}, s{S_RANK}, s{T}")
    gen_z(A, S_RANK, S_B, 2, F, st=(stampw if tail else (lambda k, r=254: None)))
    stampw(3)
    A("s_branch Lout")
    A.label("Lg1")
    A(f"s_sub_u32 s{S_W}, s{S_W}, 140")
    A(f"s_and_b32 s{S_RANK}, s{S_W}, 3"); A(f"s_lshr_b32 s{S_B}, s{S_W}, 2")
    gen_g(A, S_B, S_RANK, F, st=(stampw if tail else (lambda k, r=254: None)))
    stampw(3)
    A(f"s_sub_u32 s{S_B}, 63, s{S_B}")
    gen_o(A, S_B, S_OQ, 1, F, st=(stampw if tail else (lambda k, r=254: None)))
    stampw(4)
    A("s_branch Lend")
    A.label("Lout")
    gen_o(A, S_OS, S_OQ, 2, F, st=(stampw if tail else (lambda k, r=254: None)))
    stampw(4)
    A.label("Lend")
    if stamps:
        A("s_mov_b32 s92, s101"); A(f"s_lshl_b32 s93, s{S_WIDX}, 5"); A(f"s_add_u32 s93, s93, {TST_OFF}")
        A("v_mov_b32 v254, s92"); A("v_mov_b32 v255, s93"); A("s_mov_b64 exec, 1")
        A(f"global_store_dword v255, v254, s[{S_WS}:{S_WS+1}]"); A("s_mov_b64 exec, -1")
    A(f"s_branch {D}")
    gen_fail(A, F)
    A.label(D); A("s_waitcnt vmcnt(0)"); A("s_endpgm")
    A.fix_hazards()
    hdr = f"; @launch kernel={NAME} grid=(256,1,1) block=(256,1,1) lds=163840\n"
    return hdr + '.amdgcn_target "amdgcn-amd-amdhsa--gfx950"\n.text\n' + kernel_header(NAME) + A.text() + '.section .rodata,"a"\n' + kernel_desc(NAME, nsgpr=102)
if __name__ == "__main__":
    open("../dev/mega.s", "w").write(build(stamps=True))
    open("../dev/mega_ns.s", "w").write(build(stamps=False))
    import json
    V = eval(sys.argv[1]) if len(sys.argv) > 1 else []
    for i, kw in enumerate(V):
        open(f"../dev/mega_v{i}.s", "w").write(build(**{**dict(stamps=True), **kw}))
```
